```python
import torch

def _softmax(x, axis=-1):
    return torch.softmax(x, dim=axis)

def _gelu(x):
    return torch.nn.functional.gelu(x, approximate='tanh')

def _silu(x):
    return torch.nn.functional.silu(x)

def _sigmoid(x):
    return torch.sigmoid(x)

def _layernorm(x, axis=-1, eps=1e-05):
    m = x.mean(dim=axis, keepdim=True)
    v = x.var(dim=axis, keepdim=True, unbiased=False)
    return (x - m) / torch.sqrt(v + eps)

def _scatter_add(tgt, idx, src, axis=0):
    return tgt.clone().index_add_(axis, idx, src)

def _segment_sum(src, seg, n):
    out = torch.zeros((n,) + src.shape[1:], dtype=src.dtype)
    return out.index_add_(0, seg, src)

def _pad(x, pw):
    flat = tuple((v for pair in reversed(pw) for v in pair))
    return torch.nn.functional.pad(x, flat)
kernel_name = 'parallel_sum__sliding_block__mixer_gmlp__prompt'

def setup_inputs():

    _w = lambda a: (lambda t: t.to(torch.bfloat16) if t.is_floating_point() else t)(torch.as_tensor(a))

    def _A_setup():
        B, S, D = (1, 2048, 512)
        return {'x': _w((lambda *s: torch.randn(*s, dtype=torch.bfloat16) * 0.05)(B, S, D)), 'wqkv': _w((lambda *s: torch.randn(*s, dtype=torch.bfloat16) * 0.1)(D, 3 * D)), 'wo': _w((lambda *s: torch.randn(*s, dtype=torch.bfloat16) * 0.05)(D, D))}
    _A_in = _A_setup()

    def _B_setup():
        B, S, D, F = (1, 2048, 512, 1792)
        Fh = F // 2
        return {'x': _w((lambda *s: torch.randn(*s, dtype=torch.bfloat16) * 0.05)(B, S, D)), 'w_in': _w((lambda *s: torch.randn(*s, dtype=torch.bfloat16) * 0.4)(D, 2 * Fh)), 'w_sp': _w(0.01 * (lambda *s: torch.randn(*s, dtype=torch.bfloat16) * 0.4)(S, S)), 'b_sp': _w(1.0 + 0.01 * (lambda *s: torch.randn(*s, dtype=torch.bfloat16) * 0.05)(S)), 'w_out': _w((lambda *s: torch.randn(*s, dtype=torch.bfloat16) * 0.05)(Fh, D))}
    _B_in = _B_setup()
    return {'A_x': _A_in['x'], 'A_wqkv': _A_in['wqkv'], 'A_wo': _A_in['wo'], 'B_x': _B_in['x'], 'B_w_in': _B_in['w_in'], 'B_w_sp': _B_in['w_sp'], 'B_b_sp': _B_in['b_sp'], 'B_w_out': _B_in['w_out']}

def reference(A_x, A_wqkv, A_wo, B_x, B_w_in, B_w_sp, B_b_sp, B_w_out):

    def _A_ref(x, wqkv, wo):
        B, S, D = x.shape
        H = 32
        Dh = D // H
        W = 256
        qkv = (lambda x, *d: x.permute(*d))((x @ wqkv).reshape(B, S, 3, H, Dh), 2, 0, 3, 1, 4)
        q, k, v = (qkv[0], qkv[1], qkv[2])
        scores = torch.einsum('bhqd,bhkd->bhqk', q, k) * Dh ** (-0.5)
        idx = torch.arange(S)
        mask = (idx[:, None] - idx[None, :] >= 0) & (idx[:, None] - idx[None, :] < W)
        scores = torch.where(mask[None, None], scores, -1000000000.0)
        p = _softmax(scores, axis=-1)
        o = torch.einsum('bhqk,bhkd->bhqd', p, v)
        return (lambda x, *d: x.permute(*d))(o, 0, 2, 1, 3).reshape(B, S, D) @ wo

    def _B_ref(x, w_in, w_sp, b_sp, w_out):
        B, S, D = x.shape
        F = w_in.shape[-1]
        Fh = F // 2
        z = _gelu(torch.einsum('bsd,df->bsf', x, w_in))
        z1 = z[..., :Fh].clone()
        z2 = _layernorm(z[..., Fh:], axis=-1)
        g = torch.einsum('ts,bsf->btf', w_sp, z2) + b_sp[None, :, None]
        return torch.einsum('bsf,fd->bsd', z1 * g, w_out)
    x = A_x
    xn = _layernorm(x, axis=-1)
    return x + _A_ref(xn, A_wqkv, A_wo) + _B_ref(xn, B_w_in, B_w_sp, B_b_sp, B_w_out)
```

```python
import re

def v(i, n=1):
    return f"v{i}" if n == 1 else f"v[{i}:{i+n-1}]"
def a(i, n=1):
    return f"a{i}" if n == 1 else f"a[{i}:{i+n-1}]"
def s(i, n=1):
    return f"s{i}" if n == 1 else f"s[{i}:{i+n-1}]"

TRANS = ("v_exp_f32", "v_log_f32", "v_rcp_f32", "v_rsq_f32", "v_sqrt_f32", "v_sin_f32", "v_cos_f32")

class Tok:
    __slots__ = ("cls", "name")
    def __init__(self, cls, name=""):
        self.cls = cls; self.name = name

class Ins:
    __slots__ = ("text", "kind", "tok", "waits", "W", "R", "mf", "pad", "nvm", "nlg", "op", "cost")
    def __init__(self, text, kind=None, tok=None, waits=None):
        self.text = text; self.tok = tok; self.waits = waits; self.pad = 0
        self.nvm = None; self.nlg = None
        self.op = text.split()[0] if text else ""
        self.kind = kind or classify(self.op, text)
        self.W, self.R, self.mf = rw_sets(self)
        self.cost = 2 if self.kind in ("trans", "mfma") else (0 if self.kind == "label" else 1)

def classify(op, text):
    if op.endswith(":"): return "label"
    if op.startswith("v_mfma"): return "mfma"
    if op in TRANS: return "trans"
    if op.startswith("v_dot2"): return "dot"
    if op.startswith("v_"): return "valu"
    if op.startswith("ds_"): return "ds"
    if op.startswith("buffer_") or op.startswith("global_"): return "vmem"
    if op.startswith("s_load") or op.startswith("s_memtime") or op.startswith("s_memrealtime"): return "smem"
    if op == "s_waitcnt": return "rawwait"
    if op == "s_barrier": return "barrier"
    if op == "s_nop": return "nop"
    if op.startswith("s_cbranch") or op in ("s_branch", "s_endpgm", "s_call_b64", "s_setpc_b64"): return "branch"
    if op.startswith("s_"): return "salu"
    return "other"

_reg = re.compile(r"^-?\|?(?:abs\()?([vas])(?:(\d+)|\[(\d+):(\d+)\])\)?\|?$")
def regs(opnd):
    opnd = opnd.strip()
    if opnd == "vcc": return {("s", 106), ("s", 107)}
    if opnd == "exec": return {("s", 126), ("s", 127)}
    if opnd == "m0": return {("s", 124)}
    m = _reg.match(opnd)
    if not m: return set()
    c = m.group(1)
    if m.group(2) is not None: return {(c, int(m.group(2)))}
    return {(c, i) for i in range(int(m.group(3)), int(m.group(4)) + 1)}

def operands(text):
    parts = text.split(None, 1)
    if len(parts) < 2: return []
    out = []
    for p in parts[1].split(","):
        out.append(p.strip().split()[0] if p.strip() else "")
    return out

def rw_sets(ins):
    k = ins.kind; op = ins.op; o = operands(ins.text); W = set(); R = set(); mf = None
    if k == "mfma":
        D, A, B, C = regs(o[0]), regs(o[1]), regs(o[2]), regs(o[3])
        W = D; R = A | B | C; mf = (D, A | B, C, 8 if "32x32" in op else 4)
    elif k in ("valu", "trans", "dot"):
        if op.startswith("v_permlane") and "swap" in op:
            W = regs(o[0]) | regs(o[1]); R = set(W)
        elif op.startswith("v_nop"):
            pass
        else:
            W = regs(o[0])
            for x in o[1:]: R |= regs(x)
            if op.startswith("v_fmac") or op.startswith("v_dot2c") or op.startswith("v_writelane"): R |= W
            if op.startswith("v_cndmask") and len(o) == 3: R |= regs("vcc")
    elif k == "ds":
        if op.startswith("ds_read"):
            W = regs(o[0]); R = regs(o[1])
        else:
            for x in o: R |= regs(x)
    elif k == "vmem":
        lds = ins.text.rstrip().endswith("lds")
        if op.startswith("buffer_load") and not lds:
            W = regs(o[0])
            for x in o[1:]: R |= regs(x)
        elif op.startswith("global_load"):
            W = regs(o[0])
            for x in o[1:]: R |= regs(x)
        else:
            for x in o: R |= regs(x)
            if lds: R |= regs("m0")
    elif k == "smem":
        W = regs(o[0])
        for x in o[1:]: R |= regs(x)
    elif k == "salu":
        if op.startswith("s_cmp") or op.startswith("s_bitcmp") or op in ("s_sleep", "s_setprio"):
            for x in o: R |= regs(x)
        else:
            W = regs(o[0])
            for x in o[1:]: R |= regs(x)
            if "saveexec" in op: W |= regs("exec")
    return W, R, mf

def I(text, tok=None):
    return Ins(text, tok=tok)
def Wait(*toks):
    toks = [t for t in toks if t is not None]
    return Ins("s_waitcnt", kind="wait", waits=toks)
def VM(text, name="", tok=None):
    return Ins(text, tok=tok or Tok("vm", name or text))
def DS(text, name="", tok=None):
    return Ins(text, tok=tok or Tok("lg", name or text))
def Label(name):
    return Ins(name + ":", kind="label")

def flat(x):
    out = []
    for e in x:
        if isinstance(e, (list, tuple)): out.extend(flat(e))
        elif e is not None: out.append(e)
    return out

def weave(main, filler, m0=0, m1=None):
    pos = [i for i, e in enumerate(main) if any(x.kind == "mfma" for x in flat([e]))]
    if m1 is None: m1 = len(pos)
    m1 = min(m1, len(pos))
    sel = pos[m0:m1]
    if not filler: return list(main)
    assert sel, "no MFMA to weave into"
    cost = [sum(x.cost for x in flat([e])) for e in filler]
    load = []
    for j, p in enumerate(sel):
        nxt = pos[pos.index(p) + 1] if pos.index(p) + 1 < len(pos) else len(main)
        load.append(sum(x.cost for e in main[p + 1:nxt] for x in flat([e])))
    total = sum(cost) + sum(load)
    per = total / len(sel)
    ins_at = {p: [] for p in sel}
    acc = 0.0; fi = 0
    for j, p in enumerate(sel):
        acc += load[j]
        target = per * (j + 1)
        while fi < len(filler) and (acc + cost[fi] / 2.0 <= target or j == len(sel) - 1):
            ins_at[p].append(filler[fi]); acc += cost[fi]; fi += 1
    out = []
    for i, e in enumerate(main):
        out.append(e)
        if i in ins_at: out.extend(ins_at[i])
    return out

def resolve_waits(path):
    vm = {}; lg = {}; nvm = 0; nlg = 0; vm_done = 0; lg_done = 0
    for x in path:
        if x.kind == "vmem":
            nvm += 1
            if x.tok: vm[id(x.tok)] = nvm
        elif x.kind == "ds":
            nlg += 1
            if x.tok: lg[id(x.tok)] = nlg
        elif x.kind == "rawwait":
            m = re.search(r"vmcnt\((\d+)\)", x.text)
            if m: vm_done = max(vm_done, nvm - int(m.group(1)))
            m = re.search(r"lgkmcnt\((\d+)\)", x.text)
            if m: lg_done = max(lg_done, nlg - int(m.group(1)))
        elif x.kind == "wait":
            needv = max([vm[id(t)] for t in x.waits if t.cls == "vm" and id(t) in vm], default=0)
            needl = max([lg[id(t)] for t in x.waits if t.cls == "lg" and id(t) in lg], default=0)
            for t in x.waits:
                if id(t) not in vm and id(t) not in lg:
                    raise RuntimeError("wait on token never issued on this path: " + t.name)
            if needv > vm_done:
                n = min(nvm - needv, 63)
                x.nvm = n if x.nvm is None else min(x.nvm, n)
            if needl > lg_done:
                n = min(nlg - needl, 15)
                x.nlg = n if x.nlg is None else min(x.nlg, n)
            if x.nvm is not None: vm_done = max(vm_done, nvm - x.nvm)
            if x.nlg is not None: lg_done = max(lg_done, nlg - x.nlg)

def states(x):
    if x.kind == "label": return 0
    if x.kind == "wait" and x.nvm is None and x.nlg is None: return 0
    if x.kind == "nop": return int(x.text.split()[1]) + 1
    return 1

VALUK = ("valu", "trans", "dot")
def need_states(p, c):
    n = 0
    pv = p.kind in VALUK; cv = c.kind in VALUK
    if pv:
        vw = {r for r in p.W if r[0] in "va"}; sw = {r for r in p.W if r[0] == "s"}
        if c.kind == "mfma" and vw & c.R: n = max(n, 2)
        if p.kind == "trans" and cv and c.kind != "trans" and vw & c.R: n = max(n, 1)
        if p.kind == "trans" and c.kind == "trans" and vw & c.R: n = max(n, 1)
        if c.op.startswith("v_permlane") and vw & c.R: n = max(n, 2)
        if c.op.startswith("v_readfirstlane") or c.op.startswith("v_readlane"):
            if vw & c.R: n = max(n, 1)
        if "dpp" in c.text or "row_" in c.text or "quad_perm" in c.text:
            if vw & c.R: n = max(n, 2)
        if sw:
            if cv and sw & c.R: n = max(n, 2)
            if c.kind == "vmem" and sw & c.R: n = max(n, 5)
            if c.kind in ("salu", "branch", "smem") and (sw & c.R or c.op.startswith("s_cbranch_vcc")): n = max(n, 2)
        if p.kind == "dot":
            if c.kind == "dot" and c.op == p.op:
                o = operands(c.text)
                if vw & (regs(o[1]) | regs(o[2])): n = max(n, 3)
            elif vw & (c.R | c.W): n = max(n, 3)
    if p.kind == "mfma":
        D, AB, C, passes = p.mf
        big = 12 if passes == 8 else 8
        if c.kind == "mfma":
            D2, AB2, C2, p2 = c.mf
            if D & AB2: n = max(n, big)
            if D & C2 and not (D == C2 and p2 == passes): n = max(n, big - 2)
            if D & D2 and not (D == C2 and p2 == passes): n = max(n, big - 2)
        else:
            if D & (c.R | c.W): n = max(n, big)
            if cv and C & c.W: n = max(n, 7 if passes == 8 else 3)
    if p.kind == "salu" and ("s", 124) in p.W and c.kind == "vmem" and ("s", 124) in c.R: n = max(n, 1)
    if p.kind == "vmem" and ("store_dwordx4" in p.op or "store_dwordx3" in p.op):
        data = regs(operands(p.text)[0] if p.op.startswith("buffer") else operands(p.text)[1])
        if data & c.W: n = max(n, 2)
    return n

def pad_hazards(path):
    live = [x for x in path]
    for i, c in enumerate(live):
        if c.kind in ("label", "wait", "rawwait", "nop", "barrier"): continue
        dist = c.pad; j = i - 1; need = 0
        while j >= 0 and dist < 20:
            p = live[j]
            r = need_states(p, c)
            if r > dist: need = max(need, r - dist)
            dist += states(p) + p.pad
            j -= 1
        if need: c.pad += need

def render(seq):
    out = []
    for x in seq:
        p = x.pad
        while p > 0:
            k = min(p, 16); out.append(f"  s_nop {k-1}"); p -= k
        if x.kind == "wait":
            t = []
            if x.nvm is not None: t.append(f"vmcnt({x.nvm})")
            if x.nlg is not None: t.append(f"lgkmcnt({x.nlg})")
            if t: out.append("  s_waitcnt " + " ".join(t))
        elif x.kind == "label": out.append(x.text)
        else: out.append("  " + x.text)
    return "\n".join(out)

def finalize(paths):
    for _ in range(2):
        for p in paths: resolve_waits(p)
    for p in paths: pad_hazards(p)
```

```python
import sys, math, struct
sys.path.insert(0, __file__.rsplit("/", 1)[0])
from asmlib import *

KNAME = "parallel_sum__sliding_block__mixer_gmlp__prompt_kernel"
OPT = dict(stamps=False, spin=20000)
for arg in sys.argv[2:]:
    k, val = arg.split("="); OPT[k] = int(val)

def fbits(x): return struct.unpack("<I", struct.pack("<f", x))[0]
def hx(x): return hex(x & 0xffffffff)

WS_EPOCH = 0
WS_FLAGS = 0x1000
WS_STATS = 0x100000
WS_KV = 0x200000
WS_Z = 0x600000
WS_PART = 0xA00000
WS_O = 0x1200000
WS_Y = 0x1400000
WS_DBG = 0x1800000
F_KV, F_Z, F_PART, F_O, F_Y = range(5)
L_STG = 48 * 1024; L_RING = 96 * 1024; L_ONES = 96 * 1024; L_R = 112 * 1024
sX, sWq, sWi, sWsp, sWo, sWout, sB, sOut, sWs = 4, 8, 12, 16, 20, 24, 28, 32, 36
sRB, sCG, sP, sW, sNonce, sHP, sTB, sT0 = 40, 41, 42, 43, 44, 45, 46, 47
sOI, sOQ, sOO = 48, 52, 56
sMyFlag = 48
sJmin = 52
sN0 = 56
sSpA, sSpB, sRingW, sStg, sZoff, sRingR = 61, 62, 63, 64, 65, 66
sTok3 = 67
sKH = 68
sC10, sC01, sOnes = 70, 71, 72
sKVo, sKVs, sZo = 60, 69, 73
sMask = 74; sSpin = 76; sT1, sT2, sT3 = 77, 78, 79
sStamp = 80
vL16, vTR, vWd, vSpA, vSpB, vSpR, vFL, vR, vGA, vGB, vD, vSum, vSq = 0, 1, 2, 3, 4, 5, 9, 10, 11, 12, 13, 14, 15
T = 16
accA, accB, accD, X = 48, 80, 112, 128
vStA, vStD, vStC = 44, 45, 46
AF = 224

slow = []
_lab = [0]
def newlab(n):
    _lab[0] += 1; return f"L_{n}_{_lab[0]}"

_st = [0]
def stamp():
    if not OPT["stamps"]: return []
    i = _st[0]; _st[0] += 1
    assert sStamp + 2 * i + 1 <= 101
    return [I(f"s_memtime {s(sStamp + 2 * i, 2)}")]
def stamp_at(i):
    if not OPT["stamps"]: return []
    return [I(f"s_memtime {s(sStamp + 2 * i, 2)}")]

def srd(r): return s(r, 4)
def dma(vaddr, r, soff, imm, sc1=False, tok=None):
    o = f" offset:{imm}" if imm else ""
    return VM(f"buffer_load_dwordx4 {v(vaddr)}, {srd(r)}, {soff} offen{o}{' sc1' if sc1 else ''} lds", tok=tok)
def gload(dst, vaddr, r, soff, imm=0, sc1=False, tok=None, op="dwordx4"):
    o = f" offset:{imm}" if imm else ""
    return VM(f"buffer_load_{op} {dst}, {v(vaddr)}, {srd(r)}, {soff} offen{o}{' sc1' if sc1 else ''}", tok=tok)
def gstore(src, vaddr, r, soff, imm=0, sc1=True, op="dwordx4", tok=None):
    o = f" offset:{imm}" if imm else ""
    return VM(f"buffer_store_{op} {src}, {v(vaddr)}, {srd(r)}, {soff} offen{o}{' sc1' if sc1 else ''}", tok=tok)
def dsr(dst, vaddr, imm=0, op="ds_read_b128"):
    o = f" offset:{imm}" if imm else ""
    return DS(f"{op} {dst}, {v(vaddr)}{o}")
def dstr(dst, vaddr, imm=0): return dsr(dst, vaddr, imm, "ds_read_b64_tr_b16")
def dsw(vaddr, src, imm=0, op="ds_write_b128"):
    o = f" offset:{imm}" if imm else ""
    return DS(f"{op} {v(vaddr)}, {src}{o}")
def mfma(d, A, B, C):
    return I(f"v_mfma_f32_32x32x16_bf16 {v(d, 16)}, {A}, {B}, {C}")
def toks(items): return [x.tok for x in flat(items) if x.tok is not None]
def vmtoks(items): return [x.tok for x in flat(items) if x.tok is not None and x.kind == "vmem"]
def lgtoks(items): return [x.tok for x in flat(items) if x.tok is not None and x.kind == "ds"]
BAR = lambda: I("s_barrier")

def rne_bf16(dst, src):
    return [I(f"v_cvt_pk_bf16_f32 {v(dst)}, {v(src)}, {v(src)}"), I(f"v_and_b32 {v(dst)}, 0xffff0000, {v(dst)}")]
def cross_half(op, r, tmp):
    return [I(f"v_mov_b32 {v(tmp)}, {v(r)}"), I(f"v_permlane32_swap_b32 {v(r)}, {v(tmp)}"), I(f"{op} {v(r)}, {v(r)}, {v(tmp)}")]

def flag_store(ftype, vtmp):
    return [I(f"s_add_u32 {s(sT1)}, {s(sMyFlag)}, {ftype * 65536}"), I(f"v_mov_b32 {v(vtmp)}, {s(sNonce)}"),
            gstore(v(vtmp), vFL, sWs, s(sT1), op="dword")]
def poll_issue(vdst, vaddr):
    return gload(v(vdst), vaddr, sWs, "0", sc1=True, op="dword")
def poll_check(ld, vdst, vaddr, sleep=1):
    ls, lb, ll = newlab("slow"), newlab("back"), newlab("loop")
    slow.extend([Label(ls), I(f"s_mov_b32 {s(sSpin)}, {OPT['spin']}"), Label(ll)] + ([I(f"s_sleep {sleep}")] if sleep else []) + [
        gload(v(vdst), vaddr, sWs, "0", sc1=True, op="dword"), I("s_waitcnt vmcnt(0)"),
        I(f"v_cmp_ne_u32 {s(sMask, 2)}, {s(sNonce)}, {v(vdst)}"), I("s_nop 1"), I(f"s_cmp_eq_u64 {s(sMask, 2)}, 0"), I(f"s_cbranch_scc1 {lb}"),
        I(f"s_sub_u32 {s(sSpin)}, {s(sSpin)}, 1"), I(f"s_cmp_lg_u32 {s(sSpin)}, 0"), I(f"s_cbranch_scc1 {ll}"), I(f"s_branch {lb}")])
    return [Wait(ld.tok), I(f"v_cmp_ne_u32 {s(sMask, 2)}, {s(sNonce)}, {v(vdst)}"), I(f"s_cmp_lg_u64 {s(sMask, 2)}, 0"),
            I(f"s_cbranch_scc1 {ls}"), Label(lb)]

def prologue():
    c = []
    c += [I("s_cmp_ge_u32 s2, 256"), I("s_cbranch_scc1 L_end")]
    c += stamp_at(0)
    for r, off in ((sX, 0), (sWq, 8), (sWs, 80), (sWi, 32), (sWsp, 40), (sWo, 16), (sB, 48), (sWout, 56), (sOut, 64)):
        c.append(I(f"s_load_dwordx2 {s(r, 2)}, s[0:1], {off}"))
    c += [I(f"v_lshrrev_b32 {v(16)}, 6, v0"), I(f"v_and_b32 {v(17)}, 63, v0"), I(f"v_readfirstlane_b32 {s(sW)}, {v(16)}"),
          I("v_cmp_ne_u32 vcc, 0, v0"), I(f"v_bfrev_b32 {v(18)}, 1"), I(f"v_lshlrev_b32 {v(vL16)}, 4, {v(17)}"),
          I(f"v_cndmask_b32 {v(vFL)}, 0, {v(18)}, vcc")]
    for r, n in ((sX, 2097152), (sWq, 1572864), (sWi, 1835008), (sWsp, 8388608), (sWo, 524288), (sWout, 917504), (sB, 4096), (sOut, 2097152), (sWs, 0x10000000)):
        c += [I(f"s_mov_b32 {s(r + 2)}, {n}"), I(f"s_mov_b32 {s(r + 3)}, 0x20000")]
    c += [I(f"s_and_b32 {s(sP)}, s2, 1"), I(f"s_bfe_u32 {s(sRB)}, s2, {1 | (2 << 16)}"), I(f"s_lshl_b32 {s(sRB)}, {s(sRB)}, 2"),
          I(f"s_bfe_u32 {s(sT0)}, s2, {3 | (2 << 16)}"), I(f"s_add_u32 {s(sRB)}, {s(sRB)}, {s(sT0)}"),
          I(f"s_lshr_b32 {s(sT0)}, s2, 5"), I(f"s_lshl_b32 {s(sCG)}, {s(sT0)}, 1"), I(f"s_or_b32 {s(sCG)}, {s(sCG)}, {s(sP)}"),
          I(f"s_lshl_b32 {s(sHP)}, {s(sP)}, 3"), I(f"s_add_u32 {s(sHP)}, {s(sHP)}, {s(sT0)}"),
          I(f"s_lshl_b32 {s(sTB)}, {s(sRB)}, 2"), I(f"s_add_u32 {s(sTB)}, {s(sTB)}, {s(sW)}")]
    l = 17
    c += [I(f"v_lshrrev_b32 {v(18)}, 4, {v(l)}"), I(f"v_and_b32 {v(19)}, 15, {v(l)}")]
    for i in range(4):
        c += [I(f"v_or_b32 {v(20 + i)}, {4 * i}, {v(18)}"), I(f"v_xor_b32 {v(20 + i)}, {v(20 + i)}, {v(19)}"),
              I(f"v_lshlrev_b32 {v(20 + i)}, 4, {v(20 + i)}"), I(f"v_lshl_add_u32 {v(20 + i)}, {v(18)}, 10, {v(20 + i)}")]
        if i: c.append(I(f"v_add_u32 {v(20 + i)}, {3072 * i}, {v(20 + i)}"))
    c += [I(f"s_lshl_b32 {s(sT2)}, {s(sTB)}, 15"), I(f"s_lshl_b32 {s(sT3)}, {s(sW)}, 15"), I("s_waitcnt lgkmcnt(0)"),
          I(f"s_load_dword {s(sNonce)}, {s(sWs, 2)}, {WS_EPOCH}")]
    xg = []
    for g in range(4):
        grp = []
        for hh in range(2):
            c += [I(f"s_add_u32 m0, {s(sT3)}, {g * 8192 + hh * 4096}"), I(f"s_add_u32 {s(sT1)}, {s(sT2)}, {hh * 16384 + g * 256}")]
            for i in range(4):
                d = dma(20 + i, sX, s(sT1), 1024 * i); c.append(d); grp.append(d)
        xg.append(grp)
    for base, rs in ((sOI, 3584), (sOQ, 3072), (sOO, 1024)):
        for i in range(1, 4): c.append(I(f"s_mov_b32 {s(base + i)}, {i * (8 * rs - 1024)}"))
    c += [I(f"s_lshl_b32 {s(sRingW)}, {s(sW)}, 12"), I(f"s_add_u32 {s(sRingW)}, {s(sRingW)}, {L_RING}")]
    kr, u, cc = 24, 25, 26
    c += [I(f"v_bfe_u32 {v(kr)}, {v(l)}, 2, 3"), I(f"s_lshl_b32 {s(sT1)}, {s(sW)}, 5"), I(f"v_add_u32 {v(kr)}, {s(sT1)}, {v(kr)}"),
          I(f"v_lshrrev_b32 {v(u)}, 5, {v(l)}"), I(f"v_and_b32 {v(cc)}, 3, {v(l)}"), I(f"v_lshlrev_b32 {v(cc)}, 4, {v(cc)}"),
          I(f"v_mul_u32_u24 {v(27)}, 3072, {v(kr)}"), I(f"v_add_u32 {v(27)}, {v(27)}, {v(cc)}"),
          I(f"s_lshl_b32 {s(sT1)}, {s(sHP)}, 6"), I(f"v_add_u32 {v(27)}, {s(sT1)}, {v(27)}"),
          I(f"v_lshl_add_u32 {v(vWd)}, {v(u)}, 10, {v(27)}"), I(f"v_add_u32 {v(vWd)}, 1024, {v(vWd)}"),
          I(f"v_mul_u32_u24 {v(vStD)}, 786432, {v(u)}"), I(f"v_add_u32 {v(vStD)}, {v(vStD)}, {v(27)}"),
          I(f"v_mul_u32_u24 {v(27)}, 3584, {v(kr)}"), I(f"v_add_u32 {v(27)}, {v(27)}, {v(cc)}"),
          I(f"v_lshl_add_u32 {v(27)}, {v(u)}, 6, {v(27)}"), I(f"s_lshl_b32 {s(sT1)}, {s(sCG)}, 7"),
          I(f"v_add_u32 {v(vStC)}, {s(sT1)}, {v(27)}"), I(f"v_add_u32 {v(vStA)}, 1792, {v(vStC)}")]
    return c, xg, l

def w_dma(kinds, st):
    k = kinds[st]; first = st == 0 or kinds[st - 1] != k
    rs = 3584 if k in "AC" else 3072
    r, so = (sWi, sOI) if k in "AC" else (sWq, sOQ)
    it = [I(f"s_add_u32 m0, {s(sRingW)}, {((st + 2) % 4) * 16384}")]
    if st == 0: pass
    elif first: it.append(I(f"v_mov_b32 {v(vWd)}, {v(dict(A=vStA, D=vStD, C=vStC)[k])}"))
    else: it.append(I(f"v_add_u32 {v(vWd)}, {128 * rs}, {v(vWd)}"))
    for i in range(4): it.append(dma(vWd, r, s(so + i) if i else "0", 1024 * i))
    return it

def sp_dma(w):
    it = [I(f"s_add_u32 m0, {s(sStg)}, {(w % 3) * 4096}")]
    if w: it += [I(f"s_add_u32 {s(sSpA)}, {s(sSpA)}, 128"), I(f"s_add_u32 {s(sSpB)}, {s(sSpB)}, 128")]
    it += [dma(vSpA, sWsp, s(sSpA), 0), dma(vSpB, sWsp, s(sSpA), 1024), dma(vSpA, sWsp, s(sSpB), 2048), dma(vSpB, sWsp, s(sSpB), 3072)]
    return it
def sp_read(w):
    return [dsr(a(16 * w + 4 * j, 4), vSpR + j, (w % 3) * 4096) for j in range(4)]

KFULL = list("BBBBAAAADDCCCC"); KLIGHT = list("BBBBDD")

def front():
    c, xg, l = prologue()
    wd = {}
    for st in (0, 1):
        wd[st] = w_dma(KFULL, st); c += wd[st]
    t, h = 18, 19
    c += [I(f"v_and_b32 {v(t)}, 31, {v(l)}"), I(f"v_lshrrev_b32 {v(h)}, 5, {v(l)}")]
    c += [I(f"v_and_b32 {v(28)}, 15, {v(l)}"), I(f"v_xor_b32 {v(28)}, {v(28)}, {v(h)}"), I(f"v_lshlrev_b32 {v(28)}, 4, {v(28)}"),
          I(f"v_lshl_add_u32 {v(28)}, {v(t)}, 8, {v(28)}"), I(f"v_add_u32 {v(20)}, {s(sT3)}, {v(28)}")]
    for j in range(1, 8): c.append(I(f"v_xor_b32 {v(20 + j)}, {32 * j}, {v(20)}"))
    c += [I(f"v_bfe_u32 {v(28)}, {v(l)}, 2, 2"), I(f"v_lshlrev_b32 {v(28)}, 6, {v(28)}"), I(f"v_lshl_add_u32 {v(28)}, {v(h)}, 10, {v(28)}"),
          I(f"v_bfe_u32 {v(29)}, {v(l)}, 4, 1"), I(f"v_lshl_add_u32 {v(28)}, {v(29)}, 5, {v(28)}"),
          I(f"v_and_b32 {v(29)}, 3, {v(l)}"), I(f"v_lshl_add_u32 {v(28)}, {v(29)}, 3, {v(28)}"), I(f"v_add_u32 {v(vTR)}, {L_RING}, {v(28)}")]
    c += [I(f"s_mul_i32 {s(sStg)}, {s(sW)}, 12288"), I(f"s_add_u32 {s(sStg)}, {s(sStg)}, {L_STG}"),
          I(f"s_lshl_b32 {s(sSpA)}, {s(sTB)}, 17"), I(f"s_lshl_b32 {s(sT1)}, {s(sP)}, 11"), I(f"s_add_u32 {s(sSpA)}, {s(sSpA)}, {s(sT1)}"),
          I(f"s_add_u32 {s(sSpB)}, {s(sSpA)}, 63488"),
          I(f"v_lshrrev_b32 {v(28)}, 4, {v(l)}"), I(f"v_and_b32 {v(29)}, 7, {v(l)}"), I(f"v_lshrrev_b32 {v(30)}, 3, {v(l)}"),
          I(f"v_xor_b32 {v(28)}, {v(28)}, {v(29)}"), I(f"v_lshlrev_b32 {v(28)}, 4, {v(28)}"), I(f"v_lshl_add_u32 {v(vSpA)}, {v(30)}, 12, {v(28)}"),
          I(f"v_xor_b32 {v(vSpB)}, 64, {v(vSpA)}"), I(f"v_add_u32 {v(vSpB)}, 31744, {v(vSpB)}"),
          I(f"v_bfe_u32 {v(28)}, {v(l)}, 1, 3"), I(f"v_xor_b32 {v(28)}, {v(28)}, {v(h)}"), I(f"v_lshlrev_b32 {v(28)}, 4, {v(28)}"),
          I(f"v_lshl_add_u32 {v(28)}, {v(t)}, 7, {v(28)}"), I(f"v_add_u32 {v(vSpR)}, {s(sStg)}, {v(28)}")]
    for j in range(1, 4): c.append(I(f"v_xor_b32 {v(vSpR + j)}, {32 * j}, {v(vSpR)}"))
    c += [I(f"s_mov_b32 {s(sC10)}, 0x3f80"), I(f"s_mov_b32 {s(sC01)}, 0x3f800000"), I(f"s_mov_b32 {s(sOnes)}, 0x3f803f80"),
          I(f"s_lshl_b32 {s(sT1)}, {s(sRB)}, 4"), I(f"s_add_u32 {s(sT1)}, {s(sT1)}, {s(sCG)}"), I(f"s_lshl_b32 {s(sT1)}, {s(sT1)}, 8"),
          I(f"s_add_u32 {s(sMyFlag)}, {s(sT1)}, {WS_FLAGS}"),
          I("s_waitcnt lgkmcnt(0)"), I(f"s_add_u32 {s(sNonce)}, {s(sNonce)}, 1")]
    for i in range(4): c.append(I(f"v_mov_b32 {v(28 + i)}, 0"))
    rd = []
    for g in range(4):
        r = [dsr(v(X + 32 * g + 4 * j, 4), 20 + j, g * 8192) for j in range(8)]
        rd.append(r)
    def dots(g, j):
        o = []
        for q in range(4):
            reg = X + 32 * g + 4 * j + q
            o += [I(f"v_dot2_f32_bf16 {v(28 + (q & 1))}, {v(reg)}, {s(sOnes)}, {v(28 + (q & 1))}"),
                  I(f"v_dot2_f32_bf16 {v(30 + (q & 1))}, {v(reg)}, {v(reg)}, {v(30 + (q & 1))}")]
        return o
    for g in range(4):
        c += [Wait(*toks(xg[g]))] + rd[g]
        if g == 0: c += stamp_at(1)
        if g == 3:
            c += [Wait(rd[3][7].tok), BAR()]
            for st in (2, 3):
                wd[st] = w_dma(KFULL, st); c += wd[st]
        for j in range(8): c += [Wait(rd[g][j].tok)] + dots(g, j)
    c += stamp_at(2)
    return c, wd

def ln_finish():
    c = []
    c += [I(f"v_add_f32 {v(28)}, {v(28)}, {v(29)}"), I(f"v_add_f32 {v(30)}, {v(30)}, {v(31)}")]
    c += cross_half("v_add_f32", 28, 29) + cross_half("v_add_f32", 30, 31)
    c += [I(f"v_mul_f32 {v(28)}, {hx(fbits(1 / 512))}, {v(28)}"), I(f"v_mul_f32 {v(30)}, {hx(fbits(1 / 512))}, {v(30)}"),
          I(f"v_fma_f32 {v(30)}, -{v(28)}, {v(28)}, {v(30)}"), I(f"v_max_f32 {v(30)}, 0, {v(30)}")]
    c += rne_bf16(28, 28) + rne_bf16(30, 30)
    c += [I(f"v_add_f32 {v(30)}, {hx(fbits(1e-5))}, {v(30)}")] + rne_bf16(30, 30)
    c += [I(f"v_sqrt_f32 {v(30)}, {v(30)}"), I(f"v_xor_b32 {v(28)}, 0x80000000, {v(28)}")] + rne_bf16(vD, 30)
    c += [I(f"v_rcp_f32 {v(vR)}, {v(vD)}")]
    k0 = -2.0 * math.log2(math.e) * math.sqrt(2.0 / math.pi)
    c += [I(f"v_mul_f32 {v(vGB)}, {hx(fbits(k0))}, {v(vR)}"), I(f"v_mul_f32 {v(29)}, {v(vR)}, {v(vR)}"),
          I(f"v_mul_f32 {v(29)}, {hx(fbits(0.044715))}, {v(29)}"), I(f"v_mul_f32 {v(vGA)}, {v(29)}, {v(vGB)}")]
    for b in range(0, 128, 4):
        for q in range(4):
            c += [I(f"v_dot2_f32_bf16 {v(32 + 2 * q)}, {v(X + b + q)}, {s(sC10)}, {v(28)}"),
                  I(f"v_dot2_f32_bf16 {v(33 + 2 * q)}, {v(X + b + q)}, {s(sC01)}, {v(28)}")]
        for q in range(4):
            c.append(I(f"v_cvt_pk_bf16_f32 {v(X + b + q)}, {v(32 + 2 * q)}, {v(33 + 2 * q)}"))
    return c

def gelu(base, n, stats):
    it = []
    for g in range(0, n, 4):
        R = [base + g + q for q in range(4)]; t = [T + q for q in range(4)]
        it += [I(f"v_mul_f32 {v(t[q])}, {v(R[q])}, {v(R[q])}") for q in range(4)]
        it += [I(f"v_fma_f32 {v(t[q])}, {v(t[q])}, {v(vGA)}, {v(vGB)}") for q in range(4)]
        it += [I(f"v_mul_f32 {v(t[q])}, {v(t[q])}, {v(R[q])}") for q in range(4)]
        it += [I(f"v_exp_f32 {v(t[q])}, {v(t[q])}") for q in range(4)]
        it += [I(f"v_fma_f32 {v(t[q])}, {v(t[q])}, {v(vD)}, {v(vD)}") for q in range(4)]
        it += [I(f"v_rcp_f32 {v(t[q])}, {v(t[q])}") for q in range(4)]
        it += [I(f"v_mul_f32 {v(R[q])}, {v(R[q])}, {v(t[q])}") for q in range(4)]
        if stats:
            for q in range(4):
                if g == 0 and q == 0:
                    it += [I(f"v_mov_b32 {v(vSum)}, {v(R[q])}"), I(f"v_mul_f32 {v(vSq)}, {v(R[q])}, {v(R[q])}")]
                else:
                    it += [I(f"v_add_f32 {v(vSum)}, {v(vSum)}, {v(R[q])}"), I(f"v_fma_f32 {v(vSq)}, {v(R[q])}, {v(R[q])}, {v(vSq)}")]
    return it

def stats_publish(zero=False):
    g = T + 4
    it = []
    if not zero:
        it += cross_half("v_add_f32", vSum, T) + cross_half("v_add_f32", vSq, T + 1)
        it += [I(f"v_mov_b32 {v(g)}, {v(vSum)}"), I(f"v_mov_b32 {v(g + 2)}, {v(vSq)}")]
    else:
        it += [I(f"v_mov_b32 {v(g)}, 0"), I(f"v_mov_b32 {v(g + 2)}, 0")]
    it += [I(f"v_mov_b32 {v(g + 1)}, {s(sNonce)}"), I(f"v_mov_b32 {v(g + 3)}, {s(sNonce)}"),
           I(f"v_lshlrev_b32 {v(g + 4)}, 22, {v(vL16)}"), I(f"v_and_b32 {v(g + 4)}, 0x80000000, {v(g + 4)}"), I(f"v_or_b32 {v(g + 4)}, {v(g + 4)}, {v(vL16)}"),
           [I(f"s_lshl_b32 {s(sT1)}, {s(sTB)}, 4"), I(f"s_add_u32 {s(sT1)}, {s(sT1)}, {s(sCG)}"), I(f"s_lshl_b32 {s(sT1)}, {s(sT1)}, 9"),
            I(f"s_add_u32 {s(sT1)}, {s(sT1)}, {WS_STATS}"), gstore(v(g, 4), g + 4, sWs, s(sT1))]]
    return it

def rarr_write():
    return [I(f"v_and_b32 {v(T)}, 0x1f0, {v(vL16)}"), I(f"v_lshrrev_b32 {v(T)}, 2, {v(T)}"),
            [I(f"s_lshl_b32 {s(sT1)}, {s(sW)}, 7"), I(f"v_add_u32 {v(T)}, {s(sT1)}, {v(T)}")], dsw(T, v(vR), op="ds_write_b32")]

def kv_epilogue():
    it = []; st = []
    RA = 24; va = 20; vg = 21
    it += [I(f"v_lshrrev_b32 {v(va)}, 9, {v(vL16)}"), I(f"v_lshlrev_b32 {v(va)}, 4, {v(va)}"),
           [I(f"s_lshl_b32 {s(sT1)}, {s(sW)}, 7"), I(f"v_add_u32 {v(va)}, {s(sT1)}, {v(va)}")]]
    rr = [dsr(v(RA + 4 * q, 4), va, 32 * q) for q in range(4)]
    it += rr
    it += [[I(f"s_lshl_b32 {s(sT1)}, {s(sW)}, 12"), I(f"s_add_u32 {s(sT1)}, {s(sT1)}, 32768"), I(f"v_add_u32 {v(vg)}, {s(sT1)}, {v(vL16)}")]]
    it += [I(f"v_mul_f32 {v(accB + e)}, {v(accB + e)}, {v(vR)}") for e in range(16)]
    it += [I(f"v_cvt_pk_bf16_f32 {v(accB + j)}, {v(accB + 2 * j)}, {v(accB + 2 * j + 1)}") for j in range(8)]
    it += [[I(f"s_lshl_b32 {s(sT2)}, {s(sCG)}, 6"), I(f"s_add_u32 {s(sT2)}, {s(sT2)}, {s(sTB)}"), I(f"s_lshl_b32 {s(sT2)}, {s(sT2)}, 12"),
            I(f"s_add_u32 {s(sKVo)}, {s(sT2)}, {WS_KV}")]]
    for i in range(2):
        g = gstore(v(accB + 4 * i, 4), vL16, sWs, s(sKVo), 1024 * i); st.append(g)
        it += [g, dsw(vg, v(accB + 4 * i, 4), 1024 * i)]
    it += [Wait(rr[3].tok)]
    V = accB + 16
    it += [I(f"v_mul_f32 {v(V + e)}, {v(V + e)}, {v(RA + e)}") for e in range(16)]
    it += [I(f"v_cvt_pk_bf16_f32 {v(V + j)}, {v(V + 2 * j)}, {v(V + 2 * j + 1)}") for j in range(8)]
    for i in range(2):
        g = gstore(v(V + 4 * i, 4), vL16, sWs, s(sKVo), 2048 + 1024 * i); st.append(g)
        it += [g, dsw(vg, v(V + 4 * i, 4), 2048 + 1024 * i)]
    return it, st

def q_epilogue():
    it = [I(f"v_mul_f32 {v(T)}, {hx(fbits(0.25 * math.log2(math.e)))}, {v(vR)}")]
    it += [I(f"v_mul_f32 {v(accD + e)}, {v(accD + e)}, {v(T)}") for e in range(16)]
    it += [I(f"v_cvt_pk_bf16_f32 {v(accD + j)}, {v(accD + 2 * j)}, {v(accD + 2 * j + 1)}") for j in range(8)]
    return it

def kv_fetch():
    va, vf = vWd, vR
    pre = [[I(f"s_max_u32 {s(sT1)}, {s(sRB)}, 1"), I(f"s_sub_u32 {s(sT1)}, {s(sT1)}, 1"), I(f"s_max_u32 {s(sT2)}, {s(sRB)}, 2"), I(f"s_sub_u32 {s(sT2)}, {s(sT2)}, 2"),
            I(f"s_sub_u32 {s(sT1)}, {s(sT1)}, {s(sT2)}"), I(f"s_lshl_b32 {s(sT1)}, {s(sT1)}, 8"),
            I(f"s_lshl_b32 {s(sT2)}, {s(sT2)}, 4"), I(f"s_add_u32 {s(sT2)}, {s(sT2)}, {s(sCG)}"), I(f"s_lshl_b32 {s(sT2)}, {s(sT2)}, 8"),
            I(f"s_add_u32 {s(sT2)}, {s(sT2)}, {WS_FLAGS + F_KV * 65536}"),
            I(f"v_and_b32 {v(va)}, 16, {v(vL16)}"), I(f"v_mul_u32_u24 {v(va)}, {s(sT1)}, {v(va)}"), I(f"v_add_u32 {v(va)}, {s(sT2)}, {v(va)}")]]
    ld = poll_issue(vf, va)
    chk = poll_check(ld, vf, va)
    dm = []
    for b in range(2):
        grp = [[I(f"s_lshl_b32 {s(sT1)}, {s(sW)}, 1"), I(f"s_add_u32 {s(sT1)}, {s(sT1)}, {b}"), I(f"s_lshl_b32 m0, {s(sT1)}, 12"),
                I(f"s_lshl_b32 {s(sT2)}, {s(sRB)}, 2"), I(f"s_add_u32 {s(sT1)}, {s(sT1)}, {s(sT2)}"), I(f"s_max_u32 {s(sT1)}, {s(sT1)}, 8"),
                I(f"s_sub_u32 {s(sT1)}, {s(sT1)}, 8"), I(f"s_lshl_b32 {s(sT2)}, {s(sCG)}, 6"), I(f"s_add_u32 {s(sT1)}, {s(sT1)}, {s(sT2)}"),
                I(f"s_lshl_b32 {s(sT1)}, {s(sT1)}, 12"), I(f"s_add_u32 {s(sKVs)}, {s(sT1)}, {WS_KV}")]]
        grp += [dma(vL16, sWs, s(sKVs), 1024 * i, sc1=True) for i in range(4)]
        dm += grp
    return pre + [ld], chk, dm

def stats_recv():
    va = vSum
    pre = [I(f"v_and_b32 {v(va)}, 0x1f0, {v(vL16)}"), I(f"v_and_b32 {v(vSq)}, 0x200, {v(vL16)}"), I(f"v_lshl_add_u32 {v(va)}, {v(vSq)}, 3, {v(va)}"),
           [I(f"s_lshl_b32 {s(sT1)}, {s(sTB)}, 13"), I(f"s_add_u32 {s(sT1)}, {s(sT1)}, {WS_STATS}"), I(f"v_add_u32 {v(va)}, {s(sT1)}, {v(va)}")]]
    def loads(): return [gload(v(T + 4 * k, 4), va, sWs, "0", 512 * k, sc1=True) for k in range(8)]
    def chain():
        o = [I(f"v_xor_b32 {v(vSq)}, {s(sNonce)}, {v(T + 1)}")]
        for k in range(1, 16): o.append(I(f"v_bitop3_b32 {v(vSq)}, {v(vSq)}, {v(T + 2 * k + 1)}, {s(sNonce)} bitop3:0xf6"))
        return o
    ld = loads()
    ls, lb, ll = newlab("slow"), newlab("back"), newlab("loop")
    slow.extend([Label(ls), I(f"s_mov_b32 {s(sSpin)}, {OPT['spin']}"), Label(ll), I("s_sleep 1")] + loads() + [I("s_waitcnt vmcnt(0)")] + chain() + [
        I(f"v_cmp_ne_u32 {s(sMask, 2)}, 0, {v(vSq)}"), I("s_nop 1"), I(f"s_cmp_eq_u64 {s(sMask, 2)}, 0"), I(f"s_cbranch_scc1 {lb}"),
        I(f"s_sub_u32 {s(sSpin)}, {s(sSpin)}, 1"), I(f"s_cmp_lg_u32 {s(sSpin)}, 0"), I(f"s_cbranch_scc1 {ll}"), I(f"s_branch {lb}")])
    post = [Wait(ld[7].tok)] + chain() + [[I(f"v_cmp_ne_u32 {s(sMask, 2)}, 0, {v(vSq)}"), I(f"s_cmp_lg_u64 {s(sMask, 2)}, 0"), I(f"s_cbranch_scc1 {ls}"), Label(lb)]]
    for step in (4, 8, 16):
        for k in range(0, 32, 2 * step):
            post += [I(f"v_add_f32 {v(T + k)}, {v(T + k)}, {v(T + k + step)}"), I(f"v_add_f32 {v(T + k + 2)}, {v(T + k + 2)}, {v(T + k + step + 2)}")]
    S, Q = T, T + 2
    post += cross_half("v_add_f32", S, T + 1) + cross_half("v_add_f32", Q, T + 3)
    post += [I(f"v_mul_f32 {v(S)}, {hx(fbits(1 / 896))}, {v(S)}"), I(f"v_mul_f32 {v(Q)}, {hx(fbits(1 / 896))}, {v(Q)}"),
             I(f"v_fma_f32 {v(Q)}, -{v(S)}, {v(S)}, {v(Q)}"), I(f"v_max_f32 {v(Q)}, 0, {v(Q)}")]
    post += rne_bf16(S, S) + rne_bf16(Q, Q) + [I(f"v_add_f32 {v(Q)}, {hx(fbits(1e-5))}, {v(Q)}")] + rne_bf16(Q, Q)
    post += [I(f"v_sqrt_f32 {v(Q)}, {v(Q)}")] + rne_bf16(Q, Q) + [I(f"v_rcp_f32 {v(vSum)}, {v(Q)}"), I(f"v_mul_f32 {v(vSq)}, {v(S)}, {v(vSum)}"),
                                                                   I(f"v_xor_b32 {v(vSq)}, 0x80000000, {v(vSq)}")]
    return pre + ld, post

def z2_publish():
    it = []; st = []
    va = T + 4
    it += [I(f"v_lshrrev_b32 {v(T)}, 3, {v(vL16)}"), I(f"v_and_b32 {v(T)}, 64, {v(T)}"), I(f"v_add_u32 {v(T)}, {v(T)}, {v(vL16)}"),
           I(f"v_and_b32 {v(T + 1)}, 0x200, {v(vL16)}"),
           I(f"v_and_b32 {v(va)}, 0x1f0, {v(T)}"), I(f"v_or_b32 {v(va)}, {v(va)}, {v(T + 1)}"),
           I(f"v_add_u32 {v(T)}, 128, {v(T)}"), I(f"v_and_b32 {v(va + 1)}, 0x1f0, {v(T)}"), I(f"v_or_b32 {v(va + 1)}, {v(va + 1)}, {v(T + 1)}"),
           [I(f"s_lshl_b32 {s(sT2)}, {s(sCG)}, 6"), I(f"s_add_u32 {s(sT2)}, {s(sT2)}, {s(sTB)}"), I(f"s_lshl_b32 {s(sT2)}, {s(sT2)}, 12"),
            I(f"s_add_u32 {s(sZo)}, {s(sT2)}, {WS_Z}")]]
    for ft in range(2):
        b = accA + 16 * ft
        it += [I(f"v_fma_f32 {v(b + e)}, {v(b + e)}, {v(vSum)}, {v(vSq)}") for e in range(16)]
        it += [I(f"v_cvt_pk_bf16_f32 {v(b + j)}, {v(b + 2 * j)}, {v(b + 2 * j + 1)}") for j in range(8)]
        it += [I(f"v_permlane32_swap_b32 {v(b + x)}, {v(b + x + 2)}") for x in (0, 1, 4, 5)]
        for i in range(2):
            g = gstore(v(b + 4 * i, 4), va + i, sWs, s(sZo), ft * 2048 + i * 1024); st.append(g); it.append(g)
    return it, st

def p1_main(kinds, wd, full):
    nst = len(kinds); nstep = 8 * nst
    rd = {}
    def reads(n):
        st, ks = divmod(n, 8); f = AF + 8 * (n % 4)
        rd[n] = [dstr(a(f + 4 * u + 2 * e, 2), vTR, ((st + 2) % 4) * 16384 + ks * 2048 + u * 512 + e * 256) for u in range(2) for e in range(2)]
        return rd[n]
    pre_bar = {i: [] for i in range(nst + 1)}; post_bar = {i: [] for i in range(nst + 1)}
    def mm(n):
        st, ks = divmod(n, 8); k = kinds[st]; f = AF + 8 * (n % 4)
        st0 = kinds.index(k); ksg = (st - st0) * 8 + ks; first = ksg == 0
        W0, W1 = a(f, 4), a(f + 4, 4); x0 = v(X + 4 * ksg, 4)
        if k == "B": return mfma(accB, W0, x0, "0" if first else v(accB, 16)), mfma(accB + 16, x0, W1, "0" if first else v(accB + 16, 16))
        if k == "D": return mfma(accD, W0, x0, "0" if first else v(accD, 16)), mfma(accD, W1, v(X + 4 * (ksg + 16), 4), v(accD, 16))
        d = accA if k == "A" else accB
        return mfma(d, W0, x0, "0" if first else v(d, 16)), mfma(d + 16, W1, x0, "0" if first else v(d + 16, 16))
    spd = {}; spr = {}
    head = []
    if full:
        for w in range(3): spd[w] = sp_dma(w); head += spd[w]
    head_post = []
    kvi, kvst = kv_epilogue()
    kpre, kchk, kdm = kv_fetch()
    fill = {i: [] for i in range(nst + 1)}
    for st in range(1, nst):
        if st + 3 < nst:
            wd[st + 3] = w_dma(kinds, st + 3); fill[st] += wd[st + 3]
        if full:
            w = st - 1
            spr[w] = sp_read(w)
            fill[st] = [Wait(*toks(spd[w]))] + spr[w] + fill[st]
            if w + 3 < 16:
                spd[w + 3] = sp_dma(w + 3); fill[st] += [Wait(*toks(spr[w]))] + spd[w + 3]
    kvflag_st = 7 if full else None
    if full:
        pre_bar[9] += toks(kvst); post_bar[9] += [flag_store(F_KV, 42)]
        fill[11] = kpre + fill[11]
        fill[12] = fill[12] + [kchk] + kdm
    main = [Wait(*toks(wd[0])), BAR()] + reads(0) + reads(1) + reads(2)
    for n in range(nstep):
        m0, m1 = mm(n)
        main += [Wait(*toks(rd[n])), m0]
        nx = n + 3
        if nx < nstep and nx % 8 == 0:
            st = nx // 8
            main += [Wait(*(toks(rd[n + 2]) + toks(wd[st]) + pre_bar[st])), BAR(), m1] + post_bar[st] + reads(nx)
        elif nx < nstep:
            r = reads(nx); main += r[:2] + [m1] + r[2:]
        else:
            main += [m1]
    for st in range(1, nst):
        lo = 2 * (8 * st - 3) + 1; hi = min(2 * (8 * (st + 1) - 3), 2 * nstep)
        main = weave(main, fill[st], lo, hi)
    tail = []
    if full:
        main = weave(main, rarr_write(), 4, 12)
        main = weave(main, kvi, 64 + 4, 64 + 36)
        main = weave(main, gelu(accA, 32, True) + stats_publish(), 128 + 4, 160 + 2)
        main = weave(main, q_epilogue(), 160 + 2, 160 + 10)
        spre, spost = stats_recv()
        main = weave(main, spre, 160 + 22, 160 + 32)
        zi, zst = z2_publish()
        main = weave(main, spost + zi, 160 + 44, 224)
        w = 13
        spr[w] = sp_read(w); tail += [Wait(*toks(spd[w]))] + spr[w]
        for w in (14, 15):
            spr[w] = sp_read(w); tail += [Wait(*toks(spd[w]))] + spr[w]
    else:
        main = weave(main, rarr_write() + stats_publish(zero=True), 4, 24)
        main = weave(main, kvi, 64 + 4, 96)
        zst = []
        tail += q_epilogue() + [Wait(*toks(kvst)), BAR(), flag_store(F_KV, 42)] + kpre + [kchk] + kdm
    return head, main + tail, kdm, zst

KF, S0, S1, Mc, Ma, Cm, Cx, P0, P1, Vf, O = 128, 164, 180, 196, 212, 228, 48, 64, 72, 32, 16
vM, vKa, vVa, vVs, vTmp = 244, 246, 247, 248, 245
Q = accD

def att_setup(kdm):
    c = []
    c += [I(f"v_mov_b32 {v(250 + i)}, {s(sOnes)}") for i in range(2, 6)]
    c += [I(f"v_mov_b32 {v(vTmp)}, {L_ONES}"), dsw(vTmp, v(252, 4)), dsw(vTmp, v(252, 4), 1024)]
    c += [I(f"s_lshl_b32 {s(sT1)}, {s(sW)}, 12"), I(f"v_add_u32 {v(vKa)}, {s(sT1)}, {v(vL16)}"),
          I(f"v_and_b32 {v(249)}, 0x100, {v(vL16)}"), I(f"v_cmp_eq_u32 vcc, 0, {v(249)}"),
          I(f"v_mov_b32 {v(250)}, 0xfffff000"), I(f"v_cndmask_b32 {v(vVs)}, 0, {v(250)}, vcc")]
    c += [I(f"v_bfe_u32 {v(249)}, {v(vL16)}, 4, 5"), I(f"v_lshrrev_b32 {v(250)}, 9, {v(vL16)}"), I(f"v_lshlrev_b32 {v(250)}, 2, {v(250)}"),
          I(f"v_sub_u32 {v(249)}, {v(249)}, {v(250)}"), I(f"v_mov_b32 {v(251)}, 0xff800000")]
    for r in range(16):
        key = (r & 3) + 8 * (r >> 2)
        c += [I(f"v_cmp_gt_i32 vcc, {key}, {v(249)}"), I(f"v_cndmask_b32 {v(Mc + r)}, 0, {v(251)}, vcc"),
              I(f"v_xor_b32 {v(Ma + r)}, {v(Mc + r)}, {v(251)}")]
    c += [I(f"s_sub_u32 {s(sJmin)}, 8, {s(sTB)}")]
    c += [Wait(*toks(kdm)), I("s_waitcnt lgkmcnt(0)"), BAR()] + stamp_at(6)
    return c

def v_addr(hd):
    return [I(f"v_and_b32 {v(249)}, 0x100, {v(vL16)}"), I(f"v_cmp_eq_u32 vcc, 0, {v(249)}"),
            I(f"v_add_u32 {v(249)}, {8 * 4096 + 2048 + hd * 256}, {v(vKa)}"), I(f"v_mov_b32 {v(250)}, {L_ONES}"),
            I(f"v_cndmask_b32 {v(vVa)}, {v(250)}, {v(249)}, vcc")]
def k_reads(hd):
    return {j: dsr(v(KF + 4 * j, 4), vKa, j * 4096 + hd * 1024) for j in range(8, -1, -1)}
def maxops(S, first):
    o = []
    if first:
        o.append(I(f"v_max3_f32 {v(vM)}, {v(S)}, {v(S + 1)}, {v(S + 2)}"))
        for e in range(3, 15, 2): o.append(I(f"v_max3_f32 {v(vM)}, {v(vM)}, {v(S + e)}, {v(S + e + 1)}"))
        o.append(I(f"v_max_f32 {v(vM)}, {v(vM)}, {v(S + 15)}"))
    else:
        for e in range(0, 16, 2): o.append(I(f"v_max3_f32 {v(vM)}, {v(vM)}, {v(S + e)}, {v(S + e + 1)}"))
    return o
def c_setup():
    o = cross_half("v_max_f32", vM, vTmp)
    o += [I(f"v_sub_f32 {v(Cx + r)}, {v(Mc + r)}, {v(vM)}") for r in range(16)]
    o += [I(f"v_sub_f32 {v(Cm + r)}, 0, {v(vM)}") for r in range(16)]
    return o
def att_final(hd):
    o = [I(f"v_rcp_f32 {v(vTmp)}, {v(O + 8)}")]
    o += [I(f"v_mul_f32 {v(O + e)}, {v(O + e)}, {v(vTmp)}") for e in range(8)]
    o += [I(f"v_cvt_pk_bf16_f32 {v(O + j)}, {v(O + 2 * j)}, {v(O + 2 * j + 1)}") for j in range(4)]
    g = gstore(v(O, 4), vL16, sWs, s(sT1))
    o += [[I(f"s_lshl_b32 {s(sT1)}, {s(sTB)}, 4"), I(f"s_add_u32 {s(sT1)}, {s(sT1)}, {s(sHP)}"), I(f"s_lshl_b32 {s(sT1)}, {s(sT1)}, 11"),
           I(f"s_add_u32 {s(sT1)}, {s(sT1)}, {WS_O + hd * 1024}"), g]]
    return o, g
def v_reads(j):
    f = Vf + 8 * (j & 1)
    return [dsr(v(f, 4), vVa, 0), dsr(v(f + 4, 4), vVa, 1024), I(f"v_add_u32 {v(vVa)}, {v(vVa)}, {v(vVs)}")]

def attention(edge, hooks, otok):
    c = []
    fin_prev = []
    for hd in range(2):
        q = v(Q + 4 * hd, 4)
        kr = k_reads(hd)
        c += list(kr.values())
        SB = [S0, S1, Cm]
        def ms(j, S, C): return mfma(S, v(KF + 4 * j, 4), q, C)
        if not edge:
            js = list(range(8, -1, -1))
            cop = lambda j: v(Mc, 16) if j == 8 else (v(Ma, 16) if j == 0 else "0")
            for k in range(3): c += [Wait(kr[js[k]].tok), ms(js[k], SB[k], cop(js[k]))]
            c += fin_prev + v_addr(hd)
            for k in range(9):
                c += maxops(SB[k % 3], k == 0)
                if k + 3 < 9: c += [Wait(kr[js[k + 3]].tok), ms(js[k + 3], SB[k % 3], cop(js[k + 3]))]
            vr = {8: v_reads(8)}
            c += vr[8] + c_setup() + hooks.get(f"mid{hd}", [])
            SS = [S0, S1]; PP = [P0, P1]
            c2 = lambda j: v(Cx, 16) if j in (8, 0) else v(Cm, 16)
            c += [ms(8, S0, c2(8)), ms(7, S1, c2(7))]
            prev = None
            for k, j in enumerate(js):
                S = SS[k & 1]; P = PP[k & 1]
                ex = [I(f"v_exp_f32 {v(S + e)}, {v(S + e)}") for e in range(16)]
                cv = [I(f"v_cvt_pk_bf16_f32 {v(P + e)}, {v(S + 2 * e)}, {v(S + 2 * e + 1)}") for e in range(8)]
                blk = []
                if prev is None:
                    vr[j - 1] = v_reads(j - 1)
                    blk += vr[j - 1] + [I(f"v_sub_f32 {v(Cx + r)}, {v(Ma + r)}, {v(vM)}") for r in range(16)] + ex
                else:
                    pj, pS, pP = prev
                    f = Vf + 8 * (pj & 1)
                    blk += ex[:2]
                    if pj - 2 >= 0: blk.append(ms(pj - 2, pS, c2(pj - 2)))
                    blk += ex[2:7] + [Wait(vr[pj][1].tok), mfma(O, v(f, 4), v(pP, 4), "0" if pj == 8 else v(O, 16))]
                    blk += ex[7:12] + [mfma(O, v(f + 4, 4), v(pP + 4, 4), v(O, 16))]
                    if j - 1 >= 0:
                        vr[j - 1] = v_reads(j - 1); blk += vr[j - 1]
                    blk += ex[12:]
                blk += cv + hooks.get(f"blk{hd}_{k}", [])
                c += blk
                prev = (j, S, P)
            pj, pS, pP = prev; f = Vf + 8 * (pj & 1)
            c += [Wait(vr[pj][1].tok), mfma(O, v(f, 4), v(pP, 4), v(O, 16)), mfma(O, v(f + 4, 4), v(pP + 4, 4), v(O, 16))]
            fin_prev, g = att_final(hd); g.tok = otok[hd]
        else:
            c += fin_prev + v_addr(hd) + [I("s_waitcnt lgkmcnt(0)")]
            l1 = newlab("e1")
            for j in range(8, 0, -1):
                c += [ms(j, S0, v(Mc, 16) if j == 8 else "0")] + maxops(S0, j == 8)
                if j > 1: c += [I(f"s_cmp_eq_u32 {s(sJmin)}, {j}"), I(f"s_cbranch_scc1 {l1}")]
            c += [Label(l1), I("s_nop 7")] + c_setup() + hooks.get(f"mid{hd}", [])
            l2 = newlab("e2")
            for j in range(8, 0, -1):
                vr = v_reads(j); f = Vf + 8 * (j & 1)
                c += vr + [ms(j, S0, v(Cx, 16) if j == 8 else v(Cm, 16))]
                c += [I(f"v_exp_f32 {v(S0 + e)}, {v(S0 + e)}") for e in range(16)]
                c += [I(f"v_cvt_pk_bf16_f32 {v(P0 + e)}, {v(S0 + 2 * e)}, {v(S0 + 2 * e + 1)}") for e in range(8)]
                c += [I("s_waitcnt lgkmcnt(0)"), mfma(O, v(f, 4), v(P0, 4), "0" if j == 8 else v(O, 16)), mfma(O, v(f + 4, 4), v(P0 + 4, 4), v(O, 16))]
                if j > 1: c += [I(f"s_cmp_eq_u32 {s(sJmin)}, {j}"), I(f"s_cbranch_scc1 {l2}")]
            c += [Label(l2), I("s_nop 11")]
            for k in range(9): c += hooks.get(f"blk{hd}_{k}", [])
            fin_prev, g = att_final(hd); g.tok = otok[hd]
    c += fin_prev
    return c

ZF, acc0, acc1, Cb, vZr, vBv = 128, 160, 192, 224, 240, 244
vTRp, vTRy, vWo, vWout, vRingV, vPoll, vPollA = 245, 246, 247, 248, 249, 250, 251
acc3 = 48; RES = 20; vOut = 28

def z_poll_addr(va):
    return [I(f"v_bfe_u32 {v(va)}, {v(vL16)}, 7, 1"), I(f"v_xor_b32 {v(va)}, {s(sCG)}, {v(va)}"), I(f"v_and_b32 {v(va + 1)}, 0x70, {v(vL16)}"),
            I(f"v_add_u32 {v(va)}, {v(va)}, {v(va + 1)}"), I(f"v_lshlrev_b32 {v(va)}, 8, {v(va)}"),
            [I(f"s_lshl_b32 {s(sT1)}, {s(sP)}, 15"), I(f"s_add_u32 {s(sT1)}, {s(sT1)}, {WS_FLAGS + F_Z * 65536}"), I(f"v_add_u32 {v(va)}, {s(sT1)}, {v(va)}")]]
def row_poll_addr(va, ftype, nmax):
    return [I(f"v_bfe_u32 {v(va)}, {v(vL16)}, 4, 4"), I(f"v_min_u32 {v(va)}, {nmax}, {v(va)}"), I(f"v_lshlrev_b32 {v(va)}, 8, {v(va)}"),
            [I(f"s_lshl_b32 {s(sT1)}, {s(sRB)}, 12"), I(f"s_add_u32 {s(sT1)}, {s(sT1)}, {WS_FLAGS + ftype * 65536}"), I(f"v_add_u32 {v(va)}, {s(sT1)}, {v(va)}")]]

def ring_setup_early():
    return [[I(f"s_lshl_b32 {s(sRingR)}, {s(sW)}, 11"), I(f"s_xor_b32 {s(sT1)}, {s(sCG)}, 1"), I(f"s_lshl_b32 {s(sT1)}, {s(sT1)}, 18"),
             I(f"s_lshl_b32 {s(sT2)}, {s(sP)}, 17"), I(f"s_add_u32 {s(sT1)}, {s(sT1)}, {s(sT2)}"), I(f"s_add_u32 {s(sT1)}, {s(sT1)}, {s(sRingR)}"),
             I(f"s_add_u32 {s(sZoff)}, {s(sT1)}, {WS_Z}"), I(f"s_add_u32 {s(sRingR)}, {s(sRingR)}, {L_R}")]]

RT = {q: [Tok("vm", f"ring{q}a"), Tok("vm", f"ring{q}b")] for q in range(40)}
def ring_dma(q):
    it = [I(f"s_add_u32 m0, {s(sRingR)}, {(q % 6) * 8192}")]
    if q < 32:
        if q == 16:
            it.append([I(f"s_lshl_b32 {s(sT1)}, {s(sP)}, 19"), I(f"s_add_u32 {s(sZoff)}, {s(sZoff)}, {s(sT1)}"),
                       I(f"s_sub_u32 {s(sZoff)}, {s(sZoff)}, {262144 + 15 * 8192}")])
        elif q: it.append(I(f"s_add_u32 {s(sZoff)}, {s(sZoff)}, 8192"))
        it += [dma(vL16, sWs, s(sZoff), 0, sc1=True, tok=RT[q][0]), dma(vL16, sWs, s(sZoff), 1024, sc1=True, tok=RT[q][1])]
    else:
        if q > 32: it.append(I(f"v_add_u32 {v(vWo)}, 32768, {v(vWo)}"))
        it += [dma(vWo, sWo, "0", 0, tok=RT[q][0]), dma(vWo, sWo, s(sOO + 1), 1024, tok=RT[q][1])]
    return it

def p3_setup():
    t0, t1, t2 = T, T + 1, T + 2
    it = [[I(f"s_lshr_b32 {s(sN0)}, {s(sCG)}, 1"), I(f"s_lshl_b32 {s(sN0)}, {s(sN0)}, 7"), I(f"s_lshr_b32 {s(sKH)}, {s(sW)}, 1"),
           I(f"s_and_b32 {s(sT1)}, {s(sW)}, 1"), I(f"s_lshl_b32 {s(sT2)}, {s(sP)}, 1"), I(f"s_add_u32 {s(sT1)}, {s(sT1)}, {s(sT2)}"),
           I(f"s_lshl_b32 {s(sT2)}, {s(sRB)}, 2"), I(f"s_add_u32 {s(sTok3)}, {s(sT1)}, {s(sT2)}")],
          I(f"v_bfe_u32 {v(t0)}, {v(vL16)}, 6, 3"), I(f"v_lshlrev_b32 {v(t0)}, 10, {v(t0)}"), I(f"v_and_b32 {v(t1)}, 48, {v(vL16)}"),
          I(f"v_or_b32 {v(t0)}, {v(t0)}, {v(t1)}"), I(f"v_lshrrev_b32 {v(t1)}, 9, {v(vL16)}"), I(f"v_lshl_add_u32 {v(t0)}, {v(t1)}, 6, {v(t0)}"),
          I(f"v_add_u32 {v(t0)}, {s(sN0)}, {v(t0)}"),
          [I(f"s_mul_i32 {s(sT1)}, {s(sW)}, {14 * 16384}"), I(f"v_add_u32 {v(vWout)}, {s(sT1)}, {v(t0)}")],
          [I(f"s_lshl_b32 {s(sT1)}, {s(sKH)}, 18"), I(f"s_and_b32 {s(sT2)}, {s(sW)}, 1"), I(f"s_lshl_b32 {s(sT2)}, {s(sT2)}, 14"),
           I(f"s_add_u32 {s(sT1)}, {s(sT1)}, {s(sT2)}"), I(f"v_add_u32 {v(vWo)}, {s(sT1)}, {v(t0)}")],
          I(f"v_bfe_u32 {v(t0)}, {v(vL16)}, 6, 2"), I(f"v_lshl_add_u32 {v(t0)}, {v(t1)}, 2, {v(t0)}"), I(f"v_lshlrev_b32 {v(t0)}, 6, {v(t0)}"),
          I(f"v_bfe_u32 {v(t2)}, {v(vL16)}, 8, 1"), I(f"v_lshl_add_u32 {v(t0)}, {v(t2)}, 5, {v(t0)}"),
          I(f"v_bfe_u32 {v(t2)}, {v(vL16)}, 4, 2"), I(f"v_lshl_add_u32 {v(t0)}, {v(t2)}, 3, {v(t0)}"),
          [I(f"s_mul_i32 {s(sT1)}, {s(sKH)}, {28 * 2048}"), I(f"v_add_u32 {v(vTRy)}, {s(sT1)}, {v(t0)}")],
          [I(f"s_lshl_b32 {s(sT1)}, {s(sKH)}, 12"), I(f"s_add_u32 {s(sT1)}, {s(sT1)}, {L_R}"), I(f"v_add_u32 {v(vTRp)}, {s(sT1)}, {v(t0)}")]]
    return it

WT = [Tok("vm", f"wout{i}") for i in range(28)]
def wout_dma(g):
    it = [[I(f"s_mul_i32 {s(sT1)}, {s(sW)}, {14 * 2048}"), I(f"s_add_u32 m0, {s(sT1)}, {g * 4096}")]]
    if g: it.append(I(f"v_add_u32 {v(vWout)}, 32768, {v(vWout)}"))
    it += [dma(vWout, sWout, s(sOO + i) if i else "0", 1024 * i, tok=WT[4 * g + i]) for i in range(4)]
    return it
OT = [Tok("vm", f"o{i}") for i in range(16)]
def o_loads():
    it = [[I(f"s_lshl_b32 {s(sT2)}, {s(sTok3)}, 15"), I(f"s_lshl_b32 {s(sT1)}, {s(sKH)}, 14"), I(f"s_add_u32 {s(sT2)}, {s(sT2)}, {s(sT1)}"),
           I(f"s_add_u32 {s(sT3)}, {s(sT2)}, {WS_O}")]]
    for i in range(16):
        if i and i % 4 == 0: it.append(I(f"s_add_u32 {s(sT3)}, {s(sT3)}, 4096"))
        it.append(gload(a(4 * i, 4), vL16, sWs, s(sT3), 1024 * (i % 4), sc1=True, tok=OT[i]))
    return it
RSD = [Tok("vm", "res0"), Tok("vm", "res1")]
def res_loads():
    return [I(f"v_lshrrev_b32 {v(vOut)}, 7, {v(vL16)}"), I(f"v_lshlrev_b32 {v(vOut)}, 10, {v(vOut)}"), I(f"v_and_b32 {v(vOut + 1)}, 0x70, {v(vL16)}"),
            I(f"v_or_b32 {v(vOut)}, {v(vOut)}, {v(vOut + 1)}"),
            [I(f"s_lshl_b32 {s(sT1)}, {s(sRB)}, 17"), I(f"s_lshl_b32 {s(sT2)}, {s(sP)}, 16"), I(f"s_add_u32 {s(sT1)}, {s(sT1)}, {s(sT2)}"),
             I(f"s_lshl_b32 {s(sT2)}, {s(sW)}, 13"), I(f"s_add_u32 {s(sT1)}, {s(sT1)}, {s(sT2)}"), I(f"s_add_u32 {s(sT1)}, {s(sT1)}, {s(sN0)}"),
             I(f"v_add_u32 {v(vOut)}, {s(sT1)}, {v(vOut)}")],
            I(f"v_add_u32 {v(vOut + 1)}, 32768, {v(vOut)}"),
            gload(v(RES, 4), vOut, sX, "0", tok=RSD[0]), gload(v(RES + 4, 4), vOut + 1, sX, "0", tok=RSD[1])]

def p2_setup():
    t0, t1, t2, t3 = T, T + 1, T + 2, T + 3
    it = [I(f"v_bfe_u32 {v(t0)}, {v(vL16)}, 8, 1"), I(f"v_bfe_u32 {v(t1)}, {v(vL16)}, 5, 1"),
          I(f"v_lshlrev_b32 {v(t2)}, 10, {v(t0)}"), I(f"v_lshl_add_u32 {v(t2)}, {v(t1)}, 9, {v(t2)}"),
          I(f"v_bfe_u32 {v(t3)}, {v(vL16)}, 4, 1"), I(f"v_lshl_add_u32 {v(t2)}, {v(t3)}, 3, {v(t2)}"), I(f"v_add_u32 {v(t2)}, {L_R}, {v(t2)}"),
          I(f"v_lshlrev_b32 {v(t0)}, 3, {v(t0)}"), I(f"v_lshl_add_u32 {v(t0)}, {v(t1)}, 2, {v(t0)}"),
          I(f"v_lshrrev_b32 {v(t1)}, 9, {v(vL16)}"), I(f"v_lshl_add_u32 {v(t0)}, {v(t1)}, 3, {v(t0)}"),
          I(f"v_bfe_u32 {v(t1)}, {v(vL16)}, 6, 2"), I(f"v_add_u32 {v(t0)}, {v(t0)}, {v(t1)}")]
    for u in range(2):
        for e in range(2):
            d = vZr + 2 * u + e
            it += [I(f"v_add_u32 {v(d)}, {16 * u + 4 * e}, {v(t0)}"), I(f"v_and_b32 {v(d)}, 31, {v(d)}"), I(f"v_lshl_add_u32 {v(d)}, {v(d)}, 4, {v(t2)}")]
    bl = gload(v(vBv), t0, sB, s(sT1), op="ushort")
    it += [I(f"v_bfe_u32 {v(t0)}, {v(vL16)}, 4, 5"), I(f"v_lshlrev_b32 {v(t0)}, 1, {v(t0)}"), [I(f"s_lshl_b32 {s(sT1)}, {s(sTB)}, 6"), bl]]
    return it, bl

def phase2(otok):
    rd = {}
    def reads(n):
        q, r = divmod(n, 4); tbl, u = r >> 1, r & 1; f = ZF + 8 * (n % 4)
        rd[n] = [dstr(v(f + 4 * ft + 2 * e, 2), vZr + 2 * u + e, (q % 6) * 8192 + tbl * 4096 + ft * 2048) for ft in range(2) for e in range(2)]
        return rd[n]
    setup, bl = p2_setup()
    pre = {q: [] for q in range(41)}; post = {q: [] for q in range(41)}; fill = {q: [] for q in range(41)}
    for q in range(0, 32):
        fill[q] += ring_dma(q + 5)
    for g in range(7): fill[1 + 2 * g] += wout_dma(g)
    pre[4] += otok; post[4] += [flag_store(F_O, 30)]
    pst = []
    pit = [[I(f"s_lshl_b32 {s(sT2)}, {s(sRB)}, 4"), I(f"s_add_u32 {s(sT2)}, {s(sT2)}, {s(sCG)}"), I(f"s_lshl_b32 {s(sT2)}, {s(sT2)}, 2"),
            I(f"s_add_u32 {s(sT2)}, {s(sT2)}, {s(sW)}"), I(f"s_lshl_b32 {s(sT2)}, {s(sT2)}, 13"), I(f"s_add_u32 {s(sT2)}, {s(sT2)}, {WS_PART}"),
            I(f"s_add_u32 {s(sT3)}, {s(sT2)}, 4096")]]
    for k in range(8):
        g = gstore(v(acc0 + 4 * k, 4), vL16, sWs, s(sT2 if k < 4 else sT3), 1024 * (k & 3)); pst.append(g); pit.append(g)
    fill[17] += pit
    pre[23] += toks(pst); post[23] += [flag_store(F_PART, 30)]
    ol = poll_issue(vPoll, vPollA)
    fill[19] += row_poll_addr(vPollA, F_O, 15) + [ol]
    fill[21] += [poll_check(ol, vPoll, vPollA)]
    oi = o_loads(); fill[21] += oi[:6]; fill[22] += oi[6:12]; fill[23] += oi[12:]
    fill[24] += res_loads()
    pl = poll_issue(vPoll, vPollA)
    fill[27] += [[I(f"s_xor_b32 {s(sT1)}, {s(sMyFlag)}, 256"), I(f"s_add_u32 {s(sT1)}, {s(sT1)}, {F_PART * 65536}"), I(f"v_mov_b32 {v(vPollA)}, {s(sT1)}")], pl]
    pld = []
    pli = [poll_check(pl, vPoll, vPollA),
           [I(f"s_lshl_b32 {s(sT2)}, {s(sRB)}, 4"), I(f"s_xor_b32 {s(sT1)}, {s(sCG)}, 1"), I(f"s_add_u32 {s(sT2)}, {s(sT2)}, {s(sT1)}"), I(f"s_lshl_b32 {s(sT2)}, {s(sT2)}, 2"),
            I(f"s_add_u32 {s(sT2)}, {s(sT2)}, {s(sW)}"), I(f"s_lshl_b32 {s(sT2)}, {s(sT2)}, 13"), I(f"s_add_u32 {s(sT2)}, {s(sT2)}, {WS_PART}"),
            I(f"s_add_u32 {s(sT3)}, {s(sT2)}, 4096")]]
    for k in range(8):
        g = gload(v(acc0 + 4 * k, 4), vL16, sWs, s(sT2 if k < 4 else sT3), 1024 * (k & 3), sc1=True); pld.append(g); pli.append(g)
    pli += [[I(f"s_or_b32 {s(sT1)}, {s(sRB)}, {s(sCG)}"), I(f"s_cmp_eq_u32 {s(sT1)}, 0"), I(f"s_cselect_b32 {s(sT1)}, 0, 0x80000000"),
             I(f"v_or_b32 {v(30)}, {s(sT1)}, {v(vFL)}"), I(f"v_mov_b32 {v(31)}, {s(sNonce)}"), gstore(v(31), 30, sWs, "0", WS_EPOCH, op="dword")]]
    fill[30] += pli
    main = setup + p3_setup() + [Wait(*RT[0]), BAR()] + reads(0) + reads(1) + reads(2)
    for n in range(128):
        ps = n // 64; f = ZF + 8 * (n % 4); d = acc1 if ps else acc0; first = n % 64 == 0
        B = a(4 * (n % 64), 4)
        c0 = ("0" if ps == 0 else v(Cb, 16)) if first else v(d, 16)
        c1 = ("0" if ps == 0 else v(Cb, 16)) if first else v(d + 16, 16)
        m0, m1 = mfma(d, v(f, 4), B, c0), mfma(d + 16, v(f + 4, 4), B, c1)
        main += [Wait(*toks(rd[n])), m0]
        nx = n + 3
        if nx % 4 == 0 and nx <= 128:
            q = nx // 4
            lw = toks(rd[n + 2]) if n + 2 < 128 else []
            main += [Wait(*(lw + RT[q] + pre[q])), BAR(), m1] + post[q]
            if nx < 128: main += reads(nx)
        elif nx < 128:
            r = reads(nx); main += r[:2] + [m1] + r[2:]
        else: main += [m1]
    for q in range(0, 33):
        lo = max(2 * (4 * q - 3) + 1, 0); hi = min(2 * (4 * (q + 1) - 3), 256)
        if q == 32: fill[q] = ring_dma(37)
        main = weave(main, fill[q], lo, hi)
    cb = [Wait(bl.tok), I(f"v_lshlrev_b32 {v(vBv)}, 16, {v(vBv)}")] + [I(f"v_mov_b32 {v(Cb + r)}, {v(vBv)}") for r in range(16)]
    main = weave(main, gelu(accB, 32, False) + cb, 2, 120)
    ep = [Wait(*toks(pld))]
    yst = []
    ep += [[I(f"s_mul_i32 {s(sT2)}, {s(sTB)}, 56"), I(f"s_lshl_b32 {s(sT1)}, {s(sCG)}, 2"), I(f"s_add_u32 {s(sT2)}, {s(sT2)}, {s(sT1)}"),
            I(f"s_lshl_b32 {s(sT2)}, {s(sT2)}, 10"), I(f"s_add_u32 {s(sT2)}, {s(sT2)}, {WS_Y}")]]
    for ft in range(2):
        b = acc1 + 16 * ft
        ep += [I(f"v_add_f32 {v(b + e)}, {v(b + e)}, {v(acc0 + 16 * ft + e)}") for e in range(16)]
        ep += [I(f"v_mul_f32 {v(b + e)}, {v(b + e)}, {v(accB + 16 * ft + e)}") for e in range(16)]
        ep += [I(f"v_cvt_pk_bf16_f32 {v(b + j)}, {v(b + 2 * j)}, {v(b + 2 * j + 1)}") for j in range(8)]
        for i in range(2):
            g = gstore(v(b + 4 * i, 4), vL16, sWs, s(sT2), 1024 * (2 * ft + i)); yst.append(g); ep.append(g)
    return main + stamp_at(7) + ep, yst

YT = [Tok("vm", f"yst{i}") for i in range(4)]
def light2(otok):
    c = ring_setup_early() + p3_setup() + [Wait(*otok), BAR(), flag_store(F_O, 30)]
    for q in range(32, 38): c += ring_dma(q)
    for g in range(7): c += wout_dma(g)
    c += res_loads()
    ol = poll_issue(vPoll, vPollA)
    c += row_poll_addr(vPollA, F_O, 15) + [ol, poll_check(ol, vPoll, vPollA, sleep=8)] + o_loads()
    c += [Wait(*RT[32]), BAR()]
    return c

def phase3():
    c = []
    rd = {}
    F3 = ZF
    def oreads(n):
        sg, j = divmod(n, 2); f = F3 + 8 * (n % 4)
        rd[n] = [dstr(v(f + 4 * u + 2 * e, 2), vTRp, ((32 + sg) % 6) * 8192 + j * 2048 + e * 1024 + u * 512) for u in range(2) for e in range(2)]
        return rd[n]
    def yreads(k):
        n = 16 + k; f = F3 + 8 * (n % 4)
        rd[n] = [dstr(v(f + 4 * u + 2 * e, 2), vTRy, k * 2048 + e * 1024 + u * 512) for u in range(2) for e in range(2)]
        return rd[n]
    c += oreads(0) + oreads(1)
    yflag_at = 8
    for n in range(16):
        f = F3 + 8 * (n % 4)
        B = a(4 * n, 4)
        nx = n + 2
        if nx < 16 and nx % 2 == 0:
            q = 32 + nx // 2
            w = RT[q] + toks(rd[n + 1])
            if nx == yflag_at: w = w + YT + WT
            c += [Wait(*w), BAR()]
            if nx == yflag_at: c += [flag_store(F_Y, T + 14)]
            if q + 5 < 40: c += ring_dma(q + 5)
        if nx < 16: c += oreads(nx)
        c += [Wait(*(toks(rd[n]) + [OT[n]])), mfma(acc3, v(f, 4), B, "0" if n == 0 else v(acc3, 16)),
              mfma(acc3 + 16, v(f + 4, 4), B, "0" if n == 0 else v(acc3 + 16, 16))]
    c += yreads(0) + yreads(1) + yreads(2)
    c += stamp_at(8)
    yl = poll_issue(vPoll, vPollA)
    c += row_poll_addr(vPollA, F_Y, 13) + [yl]
    c += [I(f"s_mul_i32 {s(sT2)}, {s(sTok3)}, 56"), I(f"s_mul_i32 {s(sT1)}, {s(sKH)}, 28"), I(f"s_add_u32 {s(sT2)}, {s(sT2)}, {s(sT1)}"),
          I(f"s_lshl_b32 {s(sT2)}, {s(sT2)}, 10"), I(f"s_add_u32 {s(sT2)}, {s(sT2)}, {WS_Y}"), BAR()]
    c += poll_check(yl, vPoll, vPollA, sleep=0)
    c += stamp_at(9)
    yld = []
    for k in range(28):
        if k and k % 4 == 0: c.append(I(f"s_add_u32 {s(sT2)}, {s(sT2)}, 4096"))
        g = gload(a(64 + 4 * k, 4), vL16, sWs, s(sT2), 1024 * (k % 4), sc1=True); yld.append(g); c.append(g)
    wa, ra = 32, 40
    c += [I(f"v_bfe_u32 {v(T)}, {v(vL16)}, 4, 4"), I(f"v_lshrrev_b32 {v(T + 1)}, 9, {v(vL16)}"), I(f"v_xor_b32 {v(T)}, {v(T)}, {v(T + 1)}"),
          I(f"v_lshlrev_b32 {v(T)}, 4, {v(T)}"), I(f"v_and_b32 {v(T + 1)}, 0x1f0, {v(vL16)}"), I(f"v_lshl_add_u32 {v(T)}, {v(T + 1)}, 4, {v(T)}"),
          I(f"s_and_b32 {s(sT1)}, {s(sW)}, 1"), I(f"s_lshl_b32 {s(sT1)}, {s(sT1)}, 13"), I(f"s_lshl_b32 {s(sT3)}, {s(sKH)}, 14"),
          I(f"s_add_u32 {s(sT1)}, {s(sT1)}, {s(sT3)}"), I(f"s_add_u32 {s(sT1)}, {s(sT1)}, {L_R}"), I(f"v_add_u32 {v(wa)}, {s(sT1)}, {v(T)}")]
    for i in range(1, 8): c.append(I(f"v_xor_b32 {v(wa + i)}, {32 * i}, {v(wa)}"))
    c += [I(f"v_lshrrev_b32 {v(T)}, 7, {v(vL16)}"), I(f"s_lshl_b32 {s(sT1)}, {s(sW)}, 3"), I(f"v_add_u32 {v(T)}, {s(sT1)}, {v(T)}"),
          I(f"v_and_b32 {v(T + 1)}, 15, {v(T)}"), I(f"v_bfe_u32 {v(T + 2)}, {v(vL16)}, 4, 3"), I(f"v_lshlrev_b32 {v(T + 2)}, 1, {v(T + 2)}"),
          I(f"v_xor_b32 {v(T + 1)}, {v(T + 1)}, {v(T + 2)}"), I(f"v_lshlrev_b32 {v(T + 1)}, 4, {v(T + 1)}"), I(f"v_lshl_add_u32 {v(T)}, {v(T)}, 8, {v(T + 1)}"),
          I(f"v_add_u32 {v(ra)}, {L_R}, {v(T)}"), I(f"v_xor_b32 {v(ra + 1)}, 16, {v(ra)}")]
    for k in range(28):
        n = 16 + k; f = F3 + 8 * (n % 4); B = a(64 + 4 * k, 4)
        c += [Wait(*(toks(rd[n]) + [yld[k].tok])), mfma(acc3, v(f, 4), B, v(acc3, 16))]
        r = yreads(k + 3) if k + 3 < 28 else []
        c += r[:2] + [mfma(acc3 + 16, v(f + 4, 4), B, v(acc3 + 16, 16))] + r[2:]
    ws = [dsw(wa + 4 * u + q, v(acc3 + 16 * u + 4 * q, 4)) for u in range(2) for q in range(4)]
    c += ws + [Wait(*toks(ws)), BAR()]
    D = 128
    rr = [[dsr(v(D + 16 * k + 8 * hf + 4 * j, 4), ra + j, k * 8192 + hf * 16384) for hf in range(2) for j in range(2)] for k in range(2)]
    c += rr[0] + rr[1]
    for k in range(2):
        b = D + 16 * k; x = RES + 4 * k
        c += [Wait(*(toks(rr[k]) + [RSD[k]]))]
        c += [I(f"v_add_f32 {v(b + e)}, {v(b + e)}, {v(b + 8 + e)}") for e in range(8)]
        for j in range(4):
            c += [I(f"v_lshlrev_b32 {v(b + 8 + 2 * j)}, 16, {v(x + j)}"), I(f"v_and_b32 {v(b + 9 + 2 * j)}, 0xffff0000, {v(x + j)}")]
        c += [I(f"v_add_f32 {v(b + e)}, {v(b + e)}, {v(b + 8 + e)}") for e in range(8)]
        c += [I(f"v_cvt_pk_bf16_f32 {v(b + j)}, {v(b + 2 * j)}, {v(b + 2 * j + 1)}") for j in range(4)]
        c += [gstore(v(b, 4), vOut + k, sOut, "0", sc1=False)]
    c += stamp_at(10)
    if OPT["stamps"]:
        c += [I("s_waitcnt lgkmcnt(0)")]
        for i in range(11): c.append(I(f"v_mov_b32 {v(128 + i)}, {s(sStamp + 2 * i)}"))
        c += [I(f"v_mov_b32 {v(139)}, 0"), I(f"s_lshl_b32 {s(sT1)}, s2, 8"), I(f"s_lshl_b32 {s(sT2)}, {s(sW)}, 6"), I(f"s_add_u32 {s(sT1)}, {s(sT1)}, {s(sT2)}"),
              I(f"s_add_u32 {s(sT1)}, {s(sT1)}, {WS_DBG}"), I(f"v_mov_b32 {v(140)}, 0")]
        for i in range(3): c.append(gstore(v(128 + 4 * i, 4), 140, sWs, s(sT1), 16 * i, sc1=False))
    return c

def build():
    fr, wd = front()
    lnf = ln_finish()
    wdl = dict(wd)
    headF, p1F, kdmF, zst = p1_main(KFULL, dict(wd), True)
    headL, p1L, kdmL, _ = p1_main(KLIGHT, wdl, False)
    otok = [Tok("vm", "ost0"), Tok("vm", "ost1")]
    def hooks_full():
        zl = poll_issue(254, 252)
        h = {"mid0": [Wait(*toks(zst)), BAR(), flag_store(F_Z, 253)],
             "blk1_1": ring_setup_early() + z_poll_addr(252) + [zl],
             "blk1_4": [poll_check(zl, 254, 252)] + ring_dma(0) + ring_dma(1),
             "blk1_5": ring_dma(2) + ring_dma(3), "blk1_6": ring_dma(4)}
        return h
    segs = {}
    segs["front"] = flat(fr + [I(f"s_cmp_ge_u32 {s(sCG)}, 14"), I("s_cbranch_scc1 L_light")])
    segs["fullP1"] = flat(headF + lnf + stamp_at(3) + p1F + stamp_at(4) + att_setup(kdmF) + [I(f"s_cmp_lt_u32 {s(sRB)}, 2"), I("s_cbranch_scc1 L_fedge")])
    segs["fullAtt"] = flat(attention(False, hooks_full(), otok))
    p2, yst = phase2(otok)
    for g, t in zip(yst, YT): g.tok = t
    segs["P2"] = flat([Label("L_p2")] + stamp_at(5) + p2)
    segs["P3"] = flat([Label("L_p3")] + phase3() + [Label("L_end"), I("s_endpgm")])
    segs["fullEdge"] = flat([Label("L_fedge")] + attention(True, hooks_full(), otok) + [I("s_branch L_p2")])
    lnl = ln_finish()
    ydummy = []
    segs["lightP1"] = flat([Label("L_light")] + lnl + stamp_at(3) + p1L + stamp_at(4) + att_setup(kdmL) + [I(f"s_cmp_lt_u32 {s(sRB)}, 2"), I("s_cbranch_scc1 L_ledge")])
    segs["lightAtt"] = flat(attention(False, {}, otok))
    l2 = light2(otok)
    fake = [VM(f"buffer_load_dword {v(T + 15)}, {v(vFL)}, {srd(sB)}, 0 offen", tok=t) for t in YT]
    segs["light2"] = flat([Label("L_l2")] + stamp_at(5) + fake + l2 + stamp_at(7) + [I("s_branch L_p3")])
    segs["lightEdge"] = flat([Label("L_ledge")] + attention(True, {}, otok) + [I("s_branch L_l2")])
    paths = [["front", "fullP1", "fullAtt", "P2", "P3"], ["front", "fullP1", "fullEdge", "P2", "P3"],
             ["front", "lightP1", "lightAtt", "light2", "P3"], ["front", "lightP1", "lightEdge", "light2", "P3"]]
    finalize([flat([segs[n] for n in p]) for p in paths] + [flat(slow)])
    order = ["front", "fullP1", "fullAtt", "P2", "P3", "fullEdge", "lightP1", "lightAtt", "light2", "lightEdge"]
    body = "\n".join(render(segs[n]) for n in order) + "\n" + render(flat(slow))
    hdr = open(__file__.rsplit("/", 1)[0] + "/../cdna_kernels/parallel_sum__sliding_block__mixer_gmlp__prompt.s.ref").read().split("; Override launch")[0]
    out = hdr + "; @launch grid=(256,1,1) block=(256,1,1) lds=163840\n" + f'''.amdgcn_target "amdgcn-amd-amdhsa--gfx950"
.text
.globl {KNAME}
.p2align 8
.type {KNAME},@function
{KNAME}:
{body}
.section .rodata,"a"
.p2align 6
.amdhsa_kernel {KNAME}
  .amdhsa_next_free_vgpr 512
  .amdhsa_next_free_sgpr 102
  .amdhsa_accum_offset 256
  .amdhsa_group_segment_fixed_size 0
  .amdhsa_kernarg_size 88
  .amdhsa_user_sgpr_count 2
  .amdhsa_user_sgpr_kernarg_segment_ptr 1
  .amdhsa_system_sgpr_workgroup_id_x 1
  .amdhsa_float_denorm_mode_32 3
.end_amdhsa_kernel
'''
    open(sys.argv[1], "w").write(out)
    n = {k: len(x) for k, x in segs.items()}
    pads = {k: sum(i.pad for i in x) for k, x in segs.items()}
    print("instr counts", n, "pads", pads, file=sys.stderr)

build()
```

```python
import sys, math, struct
sys.path.insert(0, __file__.rsplit("/", 1)[0])
from asmlib import *

KNAME = "parallel_sum__sliding_block__mixer_gmlp__prompt_kernel"
OPT = dict(stamps=0, spin=20000, nt_x=0, nt_w=0, nt_sp=0, nt_o=0, nt_t=1, rot=1, sp0=2, sp1=10, touch=1, touch_o=1, pl0=200, pl1=226, yla=10, g1=200, gz=216, zf=5, zp=3, nosp=0)
for arg in sys.argv[2:]:
    k, val = arg.split("="); OPT[k] = int(val)

def fbits(x): return struct.unpack("<I", struct.pack("<f", x))[0]
def hx(x): return hex(x & 0xffffffff)

WS_EPOCH = 0
WS_FLAGS = 0x1000
WS_STATS = 0x100000
WS_KV = 0x200000
WS_Z = 0x600000
WS_PART = 0xA00000
WS_O = 0x1200000
WS_Y = 0x1400000
WS_DBG = 0x1800000
F_KV, F_Z, F_PART, F_O, F_Y = range(5)
L_STG = 48 * 1024; L_RING = 96 * 1024; L_RED = 48 * 1024
sX, sWq, sWi, sWsp, sWo, sWout, sB, sOut, sWs = 4, 8, 12, 16, 20, 24, 28, 32, 36
sRB, sCG, sP, sW, sNonce, sHP, sTB, sT0 = 40, 41, 42, 43, 44, 45, 46, 47
sOI, sOQ, sOO = 48, 52, 56
sMyFlag = 48
sJmin = 52
sN0 = 56
sSpA, sSpB, sRingW, sStg, sZoff, sRingR = 61, 62, 63, 64, 65, 66
sTok3 = 67
sKH = 68
sC10, sC01, sOnes = 70, 71, 72
sKVo, sKVs, sZo = 60, 69, 73
sMask = 74; sSpin = 76; sT1, sT2, sT3 = 77, 78, 79
sRotI, sRotQ = 80, 84
sR4, sR4o, sR3, sR3y = 80, 81, 82, 83
sStamp = 88
sC = 3; sSpBase = 0; sSpRot = 1; sVm = 70; sZbase = 60; sZrot = 69
vL16, vTR, vWd, vSpA, vSpB, vSpR, vFL, vR, vGA, vGB, vD, vSum, vSq = 0, 1, 2, 3, 4, 5, 9, 10, 11, 12, 13, 14, 15
T = 16
accA, accB, accD, X = 48, 80, 112, 128
vStD, vStA, vStB, vStC = 43, 45, 46, 47
AF = 224

slow = []
_lab = [0]
def newlab(n):
    _lab[0] += 1; return f"L_{n}_{_lab[0]}"

_st = [0]
def stamp():
    if not OPT["stamps"]: return []
    i = _st[0]; _st[0] += 1
    assert sStamp + 2 * i + 1 <= 101
    return [I(f"s_memtime {s(sStamp + 2 * i, 2)}")]
PROFS = {1: ["start", "center", "P1", "att", "P2", "yflag", "end"],
         2: ["start", "b0", "b4", "b8", "b10", "b12", "P1"],
         4: ["start", "b12", "kchk", "P1", "attbar", "sld", "schk"],
         6: ["start", "b3", "b4", "b5", "b6", "b7", "b8"],
         10: ["start", "b8", "b9", "b10", "b11", "b12", "b13"],
         3: ["start", "att", "q0", "q4", "q8", "q12", "P2"],
         5: ["start", "dma0", "x0", "x3", "xbar", "stats", "lnpre"],
         7: ["start", "P2", "ep", "opart", "yflag", "y28", "end"],
         8: ["start", "attbar", "mid0", "a0p2", "mid1", "zchk", "att"],
         9: ["start", "rt:start", "P1", "rt:P1", "P2", "end", "rt:end"]}
OLD = ["start", "x0", "stats", "center", "P1", "att", "attbar", "P2", "opart", "yflag", "end"]
def stamp_n(name):
    if not OPT["stamps"]: return []
    L = PROFS[OPT["stamps"]]
    if name not in L: return []
    o = [I(f"s_memtime {s(sStamp + 2 * L.index(name), 2)}")]
    if "rt:" + name in L: o.append(I(f"s_memrealtime {s(sStamp + 2 * L.index('rt:' + name), 2)}"))
    return o
def stamp_at(i): return stamp_n(OLD[i])

def srd(r): return s(r, 4)
def dma(vaddr, r, soff, imm, sc1=False, tok=None):
    o = f" offset:{imm}" if imm else ""
    nt = {sX: OPT["nt_x"], sWq: OPT["nt_w"], sWi: OPT["nt_w"], sWsp: OPT["nt_sp"], sWo: OPT["nt_o"], sWout: OPT["nt_o"]}.get(r, 0)
    return VM(f"buffer_load_dwordx4 {v(vaddr)}, {srd(r)}, {soff} offen{o}{' sc1' if sc1 else ''}{' nt' if nt else ''} lds", tok=tok)
def gload(dst, vaddr, r, soff, imm=0, sc1=False, tok=None, op="dwordx4"):
    o = f" offset:{imm}" if imm else ""
    return VM(f"buffer_load_{op} {dst}, {v(vaddr)}, {srd(r)}, {soff} offen{o}{' sc1' if sc1 else ''}", tok=tok)
def gstore(src, vaddr, r, soff, imm=0, sc1=True, op="dwordx4", tok=None):
    o = f" offset:{imm}" if imm else ""
    return VM(f"buffer_store_{op} {src}, {v(vaddr)}, {srd(r)}, {soff} offen{o}{' sc1' if sc1 else ''}", tok=tok)
def dsr(dst, vaddr, imm=0, op="ds_read_b128"):
    o = f" offset:{imm}" if imm else ""
    return DS(f"{op} {dst}, {v(vaddr)}{o}")
def dstr(dst, vaddr, imm=0): return dsr(dst, vaddr, imm, "ds_read_b64_tr_b16")
def dsw(vaddr, src, imm=0, op="ds_write_b128"):
    o = f" offset:{imm}" if imm else ""
    return DS(f"{op} {v(vaddr)}, {src}{o}")
def mfma(d, A, B, C):
    return I(f"v_mfma_f32_32x32x16_bf16 {v(d, 16)}, {A}, {B}, {C}")
def toks(items): return [x.tok for x in flat(items) if x.tok is not None]
def vmtoks(items): return [x.tok for x in flat(items) if x.tok is not None and x.kind == "vmem"]
def lgtoks(items): return [x.tok for x in flat(items) if x.tok is not None and x.kind == "ds"]
BAR = lambda: I("s_barrier")

def rne_bf16(dst, src):
    return [I(f"v_cvt_pk_bf16_f32 {v(dst)}, {v(src)}, {v(src)}"), I(f"v_and_b32 {v(dst)}, 0xffff0000, {v(dst)}")]
def cross_half(op, r, tmp):
    return [I(f"v_mov_b32 {v(tmp)}, {v(r)}"), I(f"v_permlane32_swap_b32 {v(r)}, {v(tmp)}"), I(f"{op} {v(r)}, {v(r)}, {v(tmp)}")]

def flag_store(ftype, vtmp):
    return [I(f"s_add_u32 {s(sT1)}, {s(sMyFlag)}, {ftype * 65536}"), I(f"v_mov_b32 {v(vtmp)}, {s(sNonce)}"),
            gstore(v(vtmp), vFL, sWs, s(sT1), op="dword")]
def poll_issue(vdst, vaddr):
    return gload(v(vdst), vaddr, sWs, "0", sc1=True, op="dword")
def poll_check(ld, vdst, vaddr, sleep=1):
    ls, lb, ll = newlab("slow"), newlab("back"), newlab("loop")
    slow.extend([Label(ls), I(f"s_mov_b32 {s(sSpin)}, {OPT['spin']}"), Label(ll)] + ([I(f"s_sleep {sleep}")] if sleep else []) + [
        gload(v(vdst), vaddr, sWs, "0", sc1=True, op="dword"), I("s_waitcnt vmcnt(0)"),
        I(f"v_cmp_ne_u32 {s(sMask, 2)}, {s(sNonce)}, {v(vdst)}"), I("s_nop 1"), I(f"s_cmp_eq_u64 {s(sMask, 2)}, 0"), I(f"s_cbranch_scc1 {lb}"),
        I(f"s_sub_u32 {s(sSpin)}, {s(sSpin)}, 1"), I(f"s_cmp_lg_u32 {s(sSpin)}, 0"), I(f"s_cbranch_scc1 {ll}"), I(f"s_branch {lb}")])
    return [Wait(ld.tok), I(f"v_cmp_ne_u32 {s(sMask, 2)}, {s(sNonce)}, {v(vdst)}"), I(f"s_cmp_lg_u64 {s(sMask, 2)}, 0"),
            I(f"s_cbranch_scc1 {ls}"), Label(lb)]

def prologue():
    c = []
    c += [I("s_cmp_ge_u32 s2, 256"), I("s_cbranch_scc1 L_end")]
    c += stamp_at(0)
    for r, off in ((sX, 0), (sWq, 8), (sWs, 80), (sWi, 32), (sWsp, 40), (sWo, 16), (sB, 48), (sWout, 56), (sOut, 64)):
        c.append(I(f"s_load_dwordx2 {s(r, 2)}, s[0:1], {off}"))
    c += [I(f"v_lshrrev_b32 {v(16)}, 6, v0"), I(f"v_and_b32 {v(17)}, 63, v0"), I(f"v_readfirstlane_b32 {s(sW)}, {v(16)}"),
          I("v_cmp_ne_u32 vcc, 0, v0"), I(f"v_bfrev_b32 {v(18)}, 1"), I(f"v_lshlrev_b32 {v(vL16)}, 4, {v(17)}"),
          I(f"v_cndmask_b32 {v(vFL)}, 0, {v(18)}, vcc")]
    for r, n in ((sX, 2097152), (sWq, 1572864), (sWi, 1835008), (sWsp, 8388608), (sWo, 524288), (sWout, 917504), (sB, 4096), (sOut, 2097152), (sWs, 0x10000000)):
        c += [I(f"s_mov_b32 {s(r + 2)}, {n}"), I(f"s_mov_b32 {s(r + 3)}, 0x20000")]
    c += [I(f"s_and_b32 {s(sP)}, s2, 1"), I(f"s_bfe_u32 {s(sRB)}, s2, {1 | (2 << 16)}"), I(f"s_lshl_b32 {s(sRB)}, {s(sRB)}, 2"),
          I(f"s_bfe_u32 {s(sT0)}, s2, {3 | (2 << 16)}"), I(f"s_add_u32 {s(sRB)}, {s(sRB)}, {s(sT0)}"),
          I(f"s_lshr_b32 {s(sC)}, s2, 5"), I(f"s_add_u32 {s(sC)}, {s(sC)}, 7"), I(f"s_and_b32 {s(sC)}, {s(sC)}, 7"), I(f"s_lshl_b32 {s(sCG)}, {s(sC)}, 1"), I(f"s_or_b32 {s(sCG)}, {s(sCG)}, {s(sP)}"),
          I(f"s_lshl_b32 {s(sHP)}, {s(sP)}, 3"), I(f"s_add_u32 {s(sHP)}, {s(sHP)}, {s(sC)}"),
          I(f"s_lshl_b32 {s(sTB)}, {s(sRB)}, 2"), I(f"s_add_u32 {s(sTB)}, {s(sTB)}, {s(sW)}")]
    l = 17
    c += [I(f"v_lshrrev_b32 {v(18)}, 4, {v(l)}"), I(f"v_and_b32 {v(19)}, 15, {v(l)}")]
    for i in range(4):
        c += [I(f"v_or_b32 {v(20 + i)}, {4 * i}, {v(18)}"), I(f"v_xor_b32 {v(20 + i)}, {v(20 + i)}, {v(19)}"),
              I(f"v_lshlrev_b32 {v(20 + i)}, 4, {v(20 + i)}"), I(f"v_lshl_add_u32 {v(20 + i)}, {v(18)}, 10, {v(20 + i)}")]
        if i: c.append(I(f"v_add_u32 {v(20 + i)}, {3072 * i}, {v(20 + i)}"))
    if OPT["rot"]:
        c += [I(f"s_add_u32 {s(sT0)}, {s(sT0)}, {s(sC)}"), I(f"s_and_b32 {s(sT0)}, {s(sT0)}, 3"), I(f"s_lshr_b32 {s(sT1)}, {s(sC)}, 2")]
    else:
        c += [I(f"s_mov_b32 {s(sT0)}, 0"), I(f"s_mov_b32 {s(sT1)}, 0")]
    c += [I(f"s_lshl_b32 {s(sXg)}, {s(sTB)}, 1"), I(f"s_add_u32 {s(sXg)}, {s(sXg)}, {s(sT1)}"), I(f"s_lshl_b32 {s(sXg)}, {s(sXg)}, 14"),
          I(f"s_lshl_b32 {s(sXl)}, {s(sW)}, 3"), I(f"s_add_u32 {s(sXl)}, {s(sXl)}, {s(sT1)}"), I(f"s_lshl_b32 {s(sXl)}, {s(sXl)}, 12")]
    for g in range(4):
        c += [I(f"s_add_u32 {s(sT1)}, {s(sT0)}, {g}"), I(f"s_and_b32 {s(sRotQ + g)}, {s(sT1)}, 3")]
    c += [I("s_waitcnt lgkmcnt(0)"), I(f"s_load_dword {s(sNonce)}, {s(sWs, 2)}, {WS_EPOCH}")]
    if OPT["touch"]:
        nt = " nt" if OPT["nt_t"] else ""
        c += [I(f"s_cmp_lt_u32 {s(sC)}, 7"), I("s_cbranch_scc1 L_notouch"),
              I(f"v_lshlrev_b32 {v(24)}, 12, {v(l)}"), I(f"s_lshl_b32 {s(sT1)}, {s(sRB)}, 1"), I(f"s_and_b32 {s(sT2)}, {s(sW)}, 1"), I(f"s_add_u32 {s(sT1)}, {s(sT1)}, {s(sT2)}"),
              I(f"s_lshl_b32 {s(sT1)}, {s(sT1)}, 18"), I(f"s_lshl_b32 {s(sT2)}, {s(sP)}, 11"), I(f"s_add_u32 {s(sT1)}, {s(sT1)}, {s(sT2)}"),
              I(f"v_add_u32 {v(24)}, {s(sT1)}, {v(24)}"),
              I(f"s_and_b32 {s(sT1)}, {s(sRB)}, 3"), I(f"s_lshl_b32 {s(sT1)}, {s(sT1)}, 9"), I(f"s_lshr_b32 {s(sT2)}, {s(sW)}, 1"), I(f"s_lshl_b32 {s(sT2)}, {s(sT2)}, 7"),
              I(f"s_add_u32 {s(sT1)}, {s(sT1)}, {s(sT2)}")]
        for j in range(8):
            c += [VM(f"buffer_load_dword {v(42)}, {v(24)}, {srd(sWsp)}, {s(sT1)} offen{nt}"),
                  I(f"s_add_u32 {s(sT1)}, {s(sT1)}, 256"), I(f"s_and_b32 {s(sT1)}, {s(sT1)}, 2047")]
        if OPT["touch_o"]:
            c += [I(f"s_lshl_b32 {s(sT1)}, {s(sRB)}, 1"), I(f"s_add_u32 {s(sT1)}, {s(sT1)}, {s(sP)}"), I(f"s_lshl_b32 {s(sT1)}, {s(sT1)}, 2"),
                  I(f"s_add_u32 {s(sT1)}, {s(sT1)}, {s(sW)}"), I(f"v_lshlrev_b32 {v(24)}, 7, {v(l)}"),
                  I(f"s_mul_i32 {s(sT2)}, {s(sT1)}, 7168"), I(f"s_lshl_b32 {s(sT1)}, {s(sT1)}, 12"),
                  VM(f"buffer_load_dword {v(42)}, {v(24)}, {srd(sWout)}, {s(sT2)} offen"), I(f"v_and_b32 {v(24)}, 0xfff, {v(24)}"),
                  VM(f"buffer_load_dword {v(42)}, {v(24)}, {srd(sWo)}, {s(sT1)} offen")]
        c += [Label("L_notouch")]
    return c, l

sXg, sXl, sXo = 61, 62, 65
def x_dma(g):
    it = []
    for hh in range(2):
        if hh == 0:
            it.append([I(f"s_lshl_b32 {s(sT1)}, {s(sRotQ + g)}, 8"), I(f"s_add_u32 {s(sXo)}, {s(sXg)}, {s(sT1)}"), I(f"s_add_u32 m0, {s(sXl)}, {g * 8192}")])
        else:
            it.append([I(f"s_xor_b32 {s(sXo)}, {s(sXo)}, 16384"), I(f"s_xor_b32 m0, m0, 4096")])
        it += [dma(20 + i, sX, s(sXo), 1024 * i) for i in range(4)]
    return it

def w_addr(l):
    c = []
    for base, rs in ((sOI, 3584), (sOQ, 3072), (sOO, 1024)):
        for i in range(1, 4): c.append(I(f"s_mov_b32 {s(base + i)}, {i * (8 * rs - 1024)}"))
    c += [I(f"s_lshl_b32 {s(sRingW)}, {s(sW)}, 12"), I(f"s_add_u32 {s(sRingW)}, {s(sRingW)}, {L_RING}")]
    kr, u, cc = 32, 33, 34
    c += [I(f"v_bfe_u32 {v(kr)}, {v(l)}, 2, 3"), I(f"s_lshl_b32 {s(sT1)}, {s(sW)}, 5"), I(f"v_add_u32 {v(kr)}, {s(sT1)}, {v(kr)}"),
          I(f"v_lshrrev_b32 {v(u)}, 5, {v(l)}"), I(f"v_and_b32 {v(cc)}, 3, {v(l)}"), I(f"v_lshlrev_b32 {v(cc)}, 4, {v(cc)}"),
          I(f"v_mul_u32_u24 {v(35)}, 3072, {v(kr)}"), I(f"v_add_u32 {v(35)}, {v(35)}, {v(cc)}"),
          I(f"s_lshl_b32 {s(sT1)}, {s(sHP)}, 6"), I(f"v_add_u32 {v(vStD)}, {s(sT1)}, {v(35)}"),
          I(f"v_lshl_add_u32 {v(vStB)}, {v(u)}, 10, {v(vStD)}"), I(f"v_add_u32 {v(vStB)}, 1024, {v(vStB)}"),
          I(f"v_mul_u32_u24 {v(35)}, 3584, {v(kr)}"), I(f"v_add_u32 {v(35)}, {v(35)}, {v(cc)}"),
          I(f"v_lshl_add_u32 {v(35)}, {v(u)}, 6, {v(35)}"), I(f"s_lshl_b32 {s(sT1)}, {s(sCG)}, 7"),
          I(f"v_add_u32 {v(vStC)}, {s(sT1)}, {v(35)}"), I(f"v_add_u32 {v(vStA)}, 1792, {v(vStC)}")]
    return c
def w_addr2():
    c = []
    for g in range(4):
        c += [I(f"s_mul_i32 {s(sRotI + g)}, {s(sRotQ + g)}, {128 * 3584}"), I(f"s_mul_i32 {s(sRotQ + g)}, {s(sRotQ + g)}, {128 * 3072}")]
    c += [I(f"v_cmp_lt_u32 vcc, 511, {v(vL16)}"), I(f"v_mov_b32 {v(32)}, {s(sRotQ + 1)}"), I(f"v_mov_b32 {v(33)}, {s(sRotQ + 3)}"),
          I(f"v_cndmask_b32 {v(32)}, {v(32)}, {v(33)}, vcc"), I(f"v_add_u32 {v(vStD + 1)}, {v(32)}, {v(vStD)}"),
          I(f"v_mov_b32 {v(32)}, {s(sRotQ)}"), I(f"v_mov_b32 {v(33)}, {s(sRotQ + 2)}"),
          I(f"v_cndmask_b32 {v(32)}, {v(32)}, {v(33)}, vcc"), I(f"v_add_u32 {v(vStD)}, {v(32)}, {v(vStD)}")]
    return c

def w_dma(kinds, st):
    k = kinds[st]; sg = st - kinds.index(k)
    r, so = (sWi, sOI) if k in "AC" else (sWq, sOQ)
    it = [I(f"s_add_u32 m0, {s(sRingW)}, {((st + 2) % 4) * 16384}")]
    if k == "D": va = vStD + sg
    else:
        va = vWd
        it.append(I(f"v_add_u32 {v(vWd)}, {s((sRotQ if k == 'B' else sRotI) + sg)}, {v(dict(A=vStA, B=vStB, C=vStC)[k])}"))
    for i in range(4): it.append(dma(va, r, s(so + i) if i else "0", 1024 * i))
    return it

def sp_dma(w):
    if OPT["nosp"]: return []
    it = [[I(f"s_add_u32 {s(sSpA)}, {s(sSpBase)}, {s(sSpRot)}"), I(f"s_add_u32 {s(sSpB)}, {s(sSpA)}, 63488"),
           I(f"s_add_u32 m0, {s(sStg)}, {(w % 3) * 4096}"), I(f"s_add_u32 {s(sSpRot)}, {s(sSpRot)}, 128"), I(f"s_and_b32 {s(sSpRot)}, {s(sSpRot)}, 2047")]]
    it += [dma(vSpA, sWsp, s(sSpA), 0), dma(vSpB, sWsp, s(sSpA), 1024), dma(vSpA, sWsp, s(sSpB), 2048), dma(vSpB, sWsp, s(sSpB), 3072)]
    return it
def sp_read(w):
    if OPT["nosp"]: return []
    return [dsr(a(16 * w + 4 * j, 4), vSpR + j, (w % 3) * 4096) for j in range(4)]

KFULL = list("BBBBAAAADDCCCC"); KLIGHT = list("BBBBDD")

def spread(main, filler):
    out = []; n = len(main); k = 0
    for i, e in enumerate(main):
        while k < len(filler) and k * n <= i * len(filler): out.append(filler[k]); k += 1
        out.append(e)
    return out + filler[k:]

def front():
    c, l = prologue()
    c += stamp_n("dma0")
    xg = [x_dma(g) for g in range(4)]
    c += xg[0]
    c += w_addr(l)
    t, h = 18, 19
    XR = 24
    c += [I(f"v_and_b32 {v(t)}, 31, {v(l)}"), I(f"v_lshrrev_b32 {v(h)}, 5, {v(l)}"), I(f"s_lshl_b32 {s(sT3)}, {s(sW)}, 15")]
    c += [I(f"v_and_b32 {v(36)}, 15, {v(l)}"), I(f"v_xor_b32 {v(36)}, {v(36)}, {v(h)}"), I(f"v_lshlrev_b32 {v(36)}, 4, {v(36)}"),
          I(f"v_lshl_add_u32 {v(36)}, {v(t)}, 8, {v(36)}"), I(f"v_add_u32 {v(XR)}, {s(sT3)}, {v(36)}")]
    for j in range(1, 8): c.append(I(f"v_xor_b32 {v(XR + j)}, {32 * j}, {v(XR)}"))
    c += [I(f"v_bfe_u32 {v(36)}, {v(l)}, 2, 2"), I(f"v_lshlrev_b32 {v(36)}, 6, {v(36)}"), I(f"v_lshl_add_u32 {v(36)}, {v(h)}, 10, {v(36)}"),
          I(f"v_bfe_u32 {v(37)}, {v(l)}, 4, 1"), I(f"v_lshl_add_u32 {v(36)}, {v(37)}, 5, {v(36)}"),
          I(f"v_and_b32 {v(37)}, 3, {v(l)}"), I(f"v_lshl_add_u32 {v(36)}, {v(37)}, 3, {v(36)}"), I(f"v_add_u32 {v(vTR)}, {L_RING}, {v(36)}")]
    c += [I(f"s_mul_i32 {s(sStg)}, {s(sW)}, 12288"), I(f"s_add_u32 {s(sStg)}, {s(sStg)}, {L_STG}"),
          I(f"s_lshl_b32 {s(sSpBase)}, {s(sTB)}, 17"), I(f"s_lshl_b32 {s(sT1)}, {s(sP)}, 11"), I(f"s_add_u32 {s(sSpBase)}, {s(sSpBase)}, {s(sT1)}")]
    if OPT["rot"]:
        c += [I(f"s_and_b32 {s(sT1)}, {s(sRB)}, 3"), I(f"s_lshl_b32 {s(sSpRot)}, {s(sT1)}, 9")]
    else: c += [I(f"s_mov_b32 {s(sSpRot)}, 0")]
    c += [I(f"v_lshrrev_b32 {v(36)}, 4, {v(l)}"), I(f"v_and_b32 {v(37)}, 7, {v(l)}"), I(f"v_lshrrev_b32 {v(38)}, 3, {v(l)}"),
          I(f"v_xor_b32 {v(36)}, {v(36)}, {v(37)}"), I(f"v_lshlrev_b32 {v(36)}, 4, {v(36)}"), I(f"v_lshl_add_u32 {v(vSpA)}, {v(38)}, 12, {v(36)}"),
          I(f"v_xor_b32 {v(vSpB)}, 64, {v(vSpA)}"), I(f"v_add_u32 {v(vSpB)}, 31744, {v(vSpB)}"),
          I(f"v_bfe_u32 {v(36)}, {v(l)}, 1, 3"), I(f"v_xor_b32 {v(36)}, {v(36)}, {v(h)}"), I(f"v_lshlrev_b32 {v(36)}, 4, {v(36)}"),
          I(f"v_lshl_add_u32 {v(36)}, {v(t)}, 7, {v(36)}"), I(f"v_add_u32 {v(vSpR)}, {s(sStg)}, {v(36)}")]
    for j in range(1, 4): c.append(I(f"v_xor_b32 {v(vSpR + j)}, {32 * j}, {v(vSpR)}"))
    c += [I(f"s_mov_b32 {s(sC10)}, 0x3f80"), I(f"s_mov_b32 {s(sC01)}, 0x3f800000"), I(f"s_mov_b32 {s(sOnes)}, 0x3f803f80"),
          I(f"s_lshl_b32 {s(sT1)}, {s(sRB)}, 4"), I(f"s_add_u32 {s(sT1)}, {s(sT1)}, {s(sCG)}"), I(f"s_lshl_b32 {s(sT1)}, {s(sT1)}, 8"),
          I(f"s_add_u32 {s(sMyFlag)}, {s(sT1)}, {WS_FLAGS}"),
          I("s_waitcnt lgkmcnt(0)"), I(f"s_add_u32 {s(sNonce)}, {s(sNonce)}, 1")]
    for i in range(4): c.append(I(f"v_mov_b32 {v(DA + i)}, 0"))
    c += xg[1]
    rd = [[dsr(v(X + 32 * g + 4 * j, 4), XR + j, g * 8192) for j in range(8)] for g in range(4)]
    def dots(g):
        o = []
        for j in range(8):
            o.append(Wait(rd[g][j].tok))
            for q in range(4):
                reg = X + 32 * g + 4 * j + q
                o += [I(f"v_dot2_f32_bf16 {v(DA + (q & 1))}, {v(reg)}, {s(sOnes)}, {v(DA + (q & 1))}"),
                      I(f"v_dot2_f32_bf16 {v(DA + 2 + (q & 1))}, {v(reg)}, {v(reg)}, {v(DA + 2 + (q & 1))}")]
        return o
    wd = {st: w_dma(KFULL, st) for st in range(4)}
    nxt = [xg[2], xg[3], w_addr2() + wd[0], wd[1]]
    for g in range(4):
        c += [Wait(*toks(xg[g]))] + rd[g] + stamp_n(f"x{g}")
        c += spread(dots(g), nxt[g])
    c += [BAR()] + stamp_n("xbar")
    c += stamp_at(2)
    return c, wd
DA = 36

def ln_finish(extra):
    c = []
    c += [I(f"v_add_f32 {v(DA + 0)}, {v(DA + 0)}, {v(DA + 1)}"), I(f"v_add_f32 {v(DA + 2)}, {v(DA + 2)}, {v(DA + 3)}")]
    c += cross_half("v_add_f32", DA, DA + 1) + cross_half("v_add_f32", DA + 2, DA + 3)
    c += [I(f"v_mul_f32 {v(DA + 0)}, {hx(fbits(1 / 512))}, {v(DA + 0)}"), I(f"v_mul_f32 {v(DA + 2)}, {hx(fbits(1 / 512))}, {v(DA + 2)}"),
          I(f"v_fma_f32 {v(DA + 2)}, -{v(DA + 0)}, {v(DA + 0)}, {v(DA + 2)}"), I(f"v_max_f32 {v(DA + 2)}, 0, {v(DA + 2)}")]
    c += rne_bf16(DA, DA) + rne_bf16(DA + 2, DA + 2)
    c += [I(f"v_add_f32 {v(DA + 2)}, {hx(fbits(1e-5))}, {v(DA + 2)}")] + rne_bf16(DA + 2, DA + 2)
    c += [I(f"v_sqrt_f32 {v(DA + 2)}, {v(DA + 2)}"), I(f"v_xor_b32 {v(DA + 0)}, 0x80000000, {v(DA + 0)}")] + rne_bf16(vD, DA + 2)
    c += [I(f"v_rcp_f32 {v(vR)}, {v(vD)}")]
    k0 = -2.0 * math.log2(math.e) * math.sqrt(2.0 / math.pi)
    c += [I(f"v_mul_f32 {v(vGB)}, {hx(fbits(k0))}, {v(vR)}"), I(f"v_mul_f32 {v(DA + 1)}, {v(vR)}, {v(vR)}"),
          I(f"v_mul_f32 {v(DA + 1)}, {hx(fbits(0.044715))}, {v(DA + 1)}"), I(f"v_mul_f32 {v(vGA)}, {v(DA + 1)}, {v(vGB)}")]
    c += stamp_n("lnpre")
    pre = c; c = []
    for b in range(0, 128, 4):
        for q in range(4):
            c += [I(f"v_dot2_f32_bf16 {v(16 + 2 * q)}, {v(X + b + q)}, {s(sC10)}, {v(DA + 0)}"),
                  I(f"v_dot2_f32_bf16 {v(17 + 2 * q)}, {v(X + b + q)}, {s(sC01)}, {v(DA + 0)}")]
        for q in range(4):
            c.append(I(f"v_cvt_pk_bf16_f32 {v(X + b + q)}, {v(16 + 2 * q)}, {v(17 + 2 * q)}"))
    return pre + spread(c, extra)

def gelu(base, n, stats):
    it = []
    for g in range(0, n, 4):
        R = [base + g + q for q in range(4)]; t = [T + q for q in range(4)]
        it += [I(f"v_mul_f32 {v(t[q])}, {v(R[q])}, {v(R[q])}") for q in range(4)]
        it += [I(f"v_fma_f32 {v(t[q])}, {v(t[q])}, {v(vGA)}, {v(vGB)}") for q in range(4)]
        it += [I(f"v_mul_f32 {v(t[q])}, {v(t[q])}, {v(R[q])}") for q in range(4)]
        it += [I(f"v_exp_f32 {v(t[q])}, {v(t[q])}") for q in range(4)]
        it += [I(f"v_fma_f32 {v(t[q])}, {v(t[q])}, {v(vD)}, {v(vD)}") for q in range(4)]
        it += [I(f"v_rcp_f32 {v(t[q])}, {v(t[q])}") for q in range(4)]
        it += [I(f"v_mul_f32 {v(R[q])}, {v(R[q])}, {v(t[q])}") for q in range(4)]
        if stats:
            for q in range(4):
                if g == 0 and q == 0:
                    it += [I(f"v_mov_b32 {v(vSum)}, {v(R[q])}"), I(f"v_mul_f32 {v(vSq)}, {v(R[q])}, {v(R[q])}")]
                else:
                    it += [I(f"v_add_f32 {v(vSum)}, {v(vSum)}, {v(R[q])}"), I(f"v_fma_f32 {v(vSq)}, {v(R[q])}, {v(R[q])}, {v(vSq)}")]
    return it

def stats_publish(zero=False):
    g = T + 4
    it = []
    if not zero:
        it += cross_half("v_add_f32", vSum, T) + cross_half("v_add_f32", vSq, T + 1)
        it += [I(f"v_mov_b32 {v(g)}, {v(vSum)}"), I(f"v_mov_b32 {v(g + 2)}, {v(vSq)}")]
    else:
        it += [I(f"v_mov_b32 {v(g)}, 0"), I(f"v_mov_b32 {v(g + 2)}, 0")]
    it += [I(f"v_mov_b32 {v(g + 1)}, {s(sNonce)}"), I(f"v_mov_b32 {v(g + 3)}, {s(sNonce)}"),
           I(f"v_lshlrev_b32 {v(g + 4)}, 22, {v(vL16)}"), I(f"v_and_b32 {v(g + 4)}, 0x80000000, {v(g + 4)}"), I(f"v_or_b32 {v(g + 4)}, {v(g + 4)}, {v(vL16)}"),
           [I(f"s_lshl_b32 {s(sT1)}, {s(sTB)}, 4"), I(f"s_add_u32 {s(sT1)}, {s(sT1)}, {s(sCG)}"), I(f"s_lshl_b32 {s(sT1)}, {s(sT1)}, 9"),
            I(f"s_add_u32 {s(sT1)}, {s(sT1)}, {WS_STATS}"), gstore(v(g, 4), g + 4, sWs, s(sT1))]]
    return it

def rarr_write():
    return [I(f"v_and_b32 {v(T)}, 0x1f0, {v(vL16)}"), I(f"v_lshrrev_b32 {v(T)}, 2, {v(T)}"),
            [I(f"s_lshl_b32 {s(sT1)}, {s(sW)}, 7"), I(f"v_add_u32 {v(T)}, {s(sT1)}, {v(T)}")], dsw(T, v(vR), op="ds_write_b32")]

def kv_epilogue():
    it = []; st = []
    RA = 24; va = 20; vg = 21
    it += [I(f"v_lshrrev_b32 {v(va)}, 9, {v(vL16)}"), I(f"v_lshlrev_b32 {v(va)}, 4, {v(va)}"),
           [I(f"s_lshl_b32 {s(sT1)}, {s(sW)}, 7"), I(f"v_add_u32 {v(va)}, {s(sT1)}, {v(va)}")]]
    rr = [dsr(v(RA + 4 * q, 4), va, 32 * q) for q in range(4)]
    it += rr
    it += [[I(f"s_lshl_b32 {s(sT1)}, {s(sW)}, 12"), I(f"s_add_u32 {s(sT1)}, {s(sT1)}, 32768"), I(f"v_add_u32 {v(vg)}, {s(sT1)}, {v(vL16)}")]]
    it += [I(f"v_mul_f32 {v(accB + e)}, {v(accB + e)}, {v(vR)}") for e in range(16)]
    it += [I(f"v_cvt_pk_bf16_f32 {v(accB + j)}, {v(accB + 2 * j)}, {v(accB + 2 * j + 1)}") for j in range(8)]
    it += [[I(f"s_lshl_b32 {s(sT2)}, {s(sCG)}, 6"), I(f"s_add_u32 {s(sT2)}, {s(sT2)}, {s(sTB)}"), I(f"s_lshl_b32 {s(sT2)}, {s(sT2)}, 12"),
            I(f"s_add_u32 {s(sKVo)}, {s(sT2)}, {WS_KV}")]]
    for i in range(2):
        g = gstore(v(accB + 4 * i, 4), vL16, sWs, s(sKVo), 1024 * i); st.append(g)
        it += [dsw(vg, v(accB + 4 * i, 4), 1024 * i)]
    it += [Wait(rr[3].tok)]
    V = accB + 16
    it += [I(f"v_mul_f32 {v(V + e)}, {v(V + e)}, {v(RA + e)}") for e in range(16)]
    it += [I(f"v_cvt_pk_bf16_f32 {v(V + j)}, {v(V + 2 * j)}, {v(V + 2 * j + 1)}") for j in range(8)]
    for i in range(2):
        g = gstore(v(V + 4 * i, 4), vL16, sWs, s(sKVo), 2048 + 1024 * i); st.append(g)
        it += [dsw(vg, v(V + 4 * i, 4), 2048 + 1024 * i)]
    return it, st

def q_epilogue(_):
    t = 40
    it = [I(f"v_mul_f32 {v(t)}, {hx(fbits(0.25 * math.log2(math.e)))}, {v(vR)}")]
    it += [I(f"v_mul_f32 {v(accD + e)}, {v(accD + e)}, {v(t)}") for e in range(16)]
    it += [I(f"v_cvt_pk_bf16_f32 {v(accD + j)}, {v(accD + 2 * j)}, {v(accD + 2 * j + 1)}") for j in range(8)]
    return it

def kv_fetch():
    va, vf = vWd, vR
    pre = [[I(f"s_max_u32 {s(sT1)}, {s(sRB)}, 1"), I(f"s_sub_u32 {s(sT1)}, {s(sT1)}, 1"), I(f"s_max_u32 {s(sT2)}, {s(sRB)}, 2"), I(f"s_sub_u32 {s(sT2)}, {s(sT2)}, 2"),
            I(f"s_sub_u32 {s(sT1)}, {s(sT1)}, {s(sT2)}"), I(f"s_lshl_b32 {s(sT1)}, {s(sT1)}, 8"),
            I(f"s_lshl_b32 {s(sT2)}, {s(sT2)}, 4"), I(f"s_add_u32 {s(sT2)}, {s(sT2)}, {s(sCG)}"), I(f"s_lshl_b32 {s(sT2)}, {s(sT2)}, 8"),
            I(f"s_add_u32 {s(sT2)}, {s(sT2)}, {WS_FLAGS + F_KV * 65536}"),
            I(f"v_and_b32 {v(va)}, 16, {v(vL16)}"), I(f"v_mul_u32_u24 {v(va)}, {s(sT1)}, {v(va)}"), I(f"v_add_u32 {v(va)}, {s(sT2)}, {v(va)}")]]
    ld = poll_issue(vf, va)
    chk = poll_check(ld, vf, va)
    dm = []
    for b in range(2):
        grp = [[I(f"s_lshl_b32 {s(sT1)}, {s(sW)}, 1"), I(f"s_add_u32 {s(sT1)}, {s(sT1)}, {b}"), I(f"s_lshl_b32 m0, {s(sT1)}, 12"),
                I(f"s_lshl_b32 {s(sT2)}, {s(sRB)}, 2"), I(f"s_add_u32 {s(sT1)}, {s(sT1)}, {s(sT2)}"), I(f"s_max_u32 {s(sT1)}, {s(sT1)}, 8"),
                I(f"s_sub_u32 {s(sT1)}, {s(sT1)}, 8"), I(f"s_lshl_b32 {s(sT2)}, {s(sCG)}, 6"), I(f"s_add_u32 {s(sT1)}, {s(sT1)}, {s(sT2)}"),
                I(f"s_lshl_b32 {s(sT1)}, {s(sT1)}, 12"), I(f"s_add_u32 {s(sKVs)}, {s(sT1)}, {WS_KV}")]]
        grp += [dma(vL16, sWs, s(sKVs), 1024 * i, sc1=True) for i in range(4)]
        dm += grp
    return pre + [ld], chk, dm

def stats_recv():
    va = vSum
    pre = [I(f"v_and_b32 {v(va)}, 0x1f0, {v(vL16)}"), I(f"v_and_b32 {v(vSq)}, 0x200, {v(vL16)}"), I(f"v_lshl_add_u32 {v(va)}, {v(vSq)}, 3, {v(va)}"),
           [I(f"s_lshl_b32 {s(sT1)}, {s(sTB)}, 13"), I(f"s_add_u32 {s(sT1)}, {s(sT1)}, {WS_STATS}"), I(f"v_add_u32 {v(va)}, {s(sT1)}, {v(va)}")]]
    def loads(): return [gload(v(T + 4 * k, 4), va, sWs, "0", 512 * k, sc1=True) for k in range(8)]
    def chain():
        o = [I(f"v_xor_b32 {v(vSq)}, {s(sNonce)}, {v(T + 1)}")]
        for k in range(1, 16): o.append(I(f"v_bitop3_b32 {v(vSq)}, {v(vSq)}, {v(T + 2 * k + 1)}, {s(sNonce)} bitop3:0xf6"))
        return o
    ld = loads()
    ls, lb, ll = newlab("slow"), newlab("back"), newlab("loop")
    slow.extend([Label(ls), I(f"s_mov_b32 {s(sSpin)}, {OPT['spin']}"), Label(ll), I("s_sleep 1")] + loads() + [I("s_waitcnt vmcnt(0)")] + chain() + [
        I(f"v_cmp_ne_u32 {s(sMask, 2)}, 0, {v(vSq)}"), I("s_nop 1"), I(f"s_cmp_eq_u64 {s(sMask, 2)}, 0"), I(f"s_cbranch_scc1 {lb}"),
        I(f"s_sub_u32 {s(sSpin)}, {s(sSpin)}, 1"), I(f"s_cmp_lg_u32 {s(sSpin)}, 0"), I(f"s_cbranch_scc1 {ll}"), I(f"s_branch {lb}")])
    post = [Wait(ld[7].tok)] + stamp_n('sld') + chain() + [[I(f"v_cmp_ne_u32 {s(sMask, 2)}, 0, {v(vSq)}"), I(f"s_cmp_lg_u64 {s(sMask, 2)}, 0"), I(f"s_cbranch_scc1 {ls}"), Label(lb)]]
    post += stamp_n('schk')
    for step in (4, 8, 16):
        for k in range(0, 32, 2 * step):
            post += [I(f"v_add_f32 {v(T + k)}, {v(T + k)}, {v(T + k + step)}"), I(f"v_add_f32 {v(T + k + 2)}, {v(T + k + 2)}, {v(T + k + step + 2)}")]
    S, Q = T, T + 2
    post += cross_half("v_add_f32", S, T + 1) + cross_half("v_add_f32", Q, T + 3)
    post += [I(f"v_mul_f32 {v(S)}, {hx(fbits(1 / 896))}, {v(S)}"), I(f"v_mul_f32 {v(Q)}, {hx(fbits(1 / 896))}, {v(Q)}"),
             I(f"v_fma_f32 {v(Q)}, -{v(S)}, {v(S)}, {v(Q)}"), I(f"v_max_f32 {v(Q)}, 0, {v(Q)}")]
    post += rne_bf16(S, S) + rne_bf16(Q, Q) + [I(f"v_add_f32 {v(Q)}, {hx(fbits(1e-5))}, {v(Q)}")] + rne_bf16(Q, Q)
    post += [I(f"v_sqrt_f32 {v(Q)}, {v(Q)}")] + rne_bf16(Q, Q) + [I(f"v_rcp_f32 {v(vSum)}, {v(Q)}"), I(f"v_mul_f32 {v(vSq)}, {v(S)}, {v(vSum)}"),
                                                                   I(f"v_xor_b32 {v(vSq)}, 0x80000000, {v(vSq)}")]
    return pre + ld, post

def z2_publish():
    it = []; st = []
    va = T + 4
    it += [I(f"v_lshrrev_b32 {v(T)}, 3, {v(vL16)}"), I(f"v_and_b32 {v(T)}, 64, {v(T)}"), I(f"v_add_u32 {v(T)}, {v(T)}, {v(vL16)}"),
           I(f"v_and_b32 {v(T + 1)}, 0x200, {v(vL16)}"),
           I(f"v_and_b32 {v(va)}, 0x1f0, {v(T)}"), I(f"v_or_b32 {v(va)}, {v(va)}, {v(T + 1)}"),
           I(f"v_add_u32 {v(T)}, 128, {v(T)}"), I(f"v_and_b32 {v(va + 1)}, 0x1f0, {v(T)}"), I(f"v_or_b32 {v(va + 1)}, {v(va + 1)}, {v(T + 1)}"),
           [I(f"s_lshl_b32 {s(sT2)}, {s(sCG)}, 6"), I(f"s_add_u32 {s(sT2)}, {s(sT2)}, {s(sTB)}"), I(f"s_lshl_b32 {s(sT2)}, {s(sT2)}, 12"),
            I(f"s_add_u32 {s(sZo)}, {s(sT2)}, {WS_Z}")]]
    for ft in range(2):
        b = accA + 16 * ft
        it += [I(f"v_fma_f32 {v(b + e)}, {v(b + e)}, {v(vSum)}, {v(vSq)}") for e in range(16)]
        it += [I(f"v_cvt_pk_bf16_f32 {v(b + j)}, {v(b + 2 * j)}, {v(b + 2 * j + 1)}") for j in range(8)]
        it += [I(f"v_permlane32_swap_b32 {v(b + x)}, {v(b + x + 2)}") for x in (0, 1, 4, 5)]
        for i in range(2):
            g = gstore(v(b + 4 * i, 4), va + i, sWs, s(sZo), ft * 2048 + i * 1024); st.append(g); it.append(g)
    return it, st

def p1_main(kinds, wd, full):
    nst = len(kinds); nstep = 8 * nst
    rd = {}
    def reads(n):
        st, ks = divmod(n, 8); f = AF + 8 * (n % 4)
        rd[n] = [dstr(a(f + 4 * u + 2 * e, 2), vTR, ((st + 2) % 4) * 16384 + ks * 2048 + u * 512 + e * 256) for u in range(2) for e in range(2)]
        return rd[n]
    pre_bar = {i: [] for i in range(nst + 1)}; post_bar = {i: [] for i in range(nst + 1)}
    def mm(n):
        st, ks = divmod(n, 8); k = kinds[st]; f = AF + 8 * (n % 4)
        st0 = kinds.index(k); ksg = (st - st0) * 8 + ks; first = ksg == 0
        W0, W1 = a(f, 4), a(f + 4, 4); x0 = v(X + 4 * ksg, 4)
        if k == "B": return mfma(accB, W0, x0, "0" if first else v(accB, 16)), mfma(accB + 16, x0, W1, "0" if first else v(accB + 16, 16))
        if k == "D": return mfma(accD, W0, x0, "0" if first else v(accD, 16)), mfma(accD, W1, v(X + 4 * (ksg + 16), 4), v(accD, 16))
        d = accA if k == "A" else accB
        return mfma(d, W0, x0, "0" if first else v(d, 16)), mfma(d + 16, W1, x0, "0" if first else v(d + 16, 16))
    spd = {}; spr = {}
    n1 = OPT["sp1"]
    s0 = OPT["sp0"]
    rd_st = {w: 13 - ((n1 - 1 - w) * (13 - s0 - 2)) // max(n1 - 1, 1) for w in range(n1)}
    head = []
    kvi, kvst = kv_epilogue()
    kpre, kchk, kdm = kv_fetch()
    fill = {i: [] for i in range(nst + 1)}
    for st in range(1, nst):
        if st + 3 < nst:
            wd[st + 3] = w_dma(kinds, st + 3); fill[st] += wd[st + 3]
        if full:
            if st in (s0, s0 + 1):
                for w in ([0, 1] if st == s0 else [2]):
                    spd[w] = sp_dma(w); fill[st] += spd[w]
            for w in [w for w in rd_st if rd_st[w] == st]:
                spr[w] = sp_read(w)
                fill[st] = [Wait(*toks(spd[w]))] + spr[w] + fill[st]
                if w + 3 < 16:
                    spd[w + 3] = sp_dma(w + 3); fill[st] += [Wait(*toks(spr[w]))] + spd[w + 3]
    kvflag_st = 7 if full else None
    if full:
        fill[7] = kvst + fill[7]
        pre_bar[10] += toks(kvst); post_bar[10] += [flag_store(F_KV, 42)]
        fill[12] = fill[12] + kpre
        fill[13] = fill[13] + [kchk] + stamp_n('kchk') + kdm
    main = [Wait(*toks(wd[0])), BAR()] + stamp_n("b0") + reads(0) + reads(1) + reads(2) + reads(3)
    for n in range(nstep):
        m0, m1 = mm(n)
        main += [Wait(*toks(rd[n])), m0]
        nx = n + 4
        if nx < nstep and nx % 8 == 0:
            st = nx // 8
            main += [m1, [Wait(*(toks(rd[n + 3]) + toks(wd[st]) + pre_bar[st])), BAR()] + stamp_n(f"b{st}") + post_bar[st]] + reads(nx)
        elif nx < nstep:
            r = reads(nx); main += r[:2] + [m1] + r[2:]
        else:
            main += [m1]
    for st in range(1, nst):
        lo = 2 * (8 * st - 4) + 2; hi = min(2 * (8 * (st + 1) - 4) + 1, 2 * nstep)
        main = weave(main, fill[st], lo, hi)
    tail = []
    if full:
        main = weave(main, rarr_write(), 4, 12)
        main = weave(main, kvi, 64 + 4, 100)
        main = weave(main, q_epilogue(20), 160 + 4, 160 + 24)
        main = weave(main, gelu(accA, 32, True) + stats_publish(), 128 + 4, OPT["g1"])
        zst = None
    else:
        main = weave(main, rarr_write() + stats_publish(zero=True), 4, 24)
        main = weave(main, kvi + kvst, 64 + 4, 96)
        zst = []
        tail += q_epilogue(20) + [Wait(*toks(kvst)), BAR(), flag_store(F_KV, 42)] + kpre + [kchk] + kdm
    return spd, main + tail, kdm, zst

KF, S0, S1, Mc, Ma, Cm, Cx, P0, P1, Vf, O = 128, 164, 180, 196, 212, 228, 48, 64, 72, 32, 16
vM, vKa, vVa, vVs, vTmp = 244, 246, 247, 248, 245
Q = accD

def att_setup(kdm):
    c = []
    c += [I(f"s_lshl_b32 {s(sT1)}, {s(sW)}, 12"), I(f"v_add_u32 {v(vKa)}, {s(sT1)}, {v(vL16)}"),
          I(f"s_mov_b32 {s(sVm)}, 0xffff"), I(f"s_mov_b32 {s(sVm + 1)}, 0xffff")]
    c += [I(f"v_bfe_u32 {v(249)}, {v(vL16)}, 4, 5"), I(f"v_lshrrev_b32 {v(250)}, 9, {v(vL16)}"), I(f"v_lshlrev_b32 {v(250)}, 2, {v(250)}"),
          I(f"v_sub_u32 {v(249)}, {v(249)}, {v(250)}"), I(f"v_mov_b32 {v(251)}, 0xff800000")]
    for r in range(16):
        key = (r & 3) + 8 * (r >> 2)
        c += [I(f"v_cmp_gt_i32 vcc, {key}, {v(249)}"), I(f"v_cndmask_b32 {v(Mc + r)}, 0, {v(251)}, vcc"),
              I(f"v_xor_b32 {v(Ma + r)}, {v(Mc + r)}, {v(251)}")]
    c += [I(f"s_sub_u32 {s(sJmin)}, 8, {s(sTB)}")]
    c += [Wait(*toks(kdm)), I("s_waitcnt lgkmcnt(0)"), BAR()] + stamp_at(6)
    return c

def k_reads(hd):
    return {j: dsr(v(KF + 4 * j, 4), vKa, j * 4096 + hd * 1024) for j in range(8, -1, -1)}
def maxops(S, first):
    o = []
    if first:
        o.append(I(f"v_max3_f32 {v(vM)}, {v(S)}, {v(S + 1)}, {v(S + 2)}"))
        for e in range(3, 15, 2): o.append(I(f"v_max3_f32 {v(vM)}, {v(vM)}, {v(S + e)}, {v(S + e + 1)}"))
        o.append(I(f"v_max_f32 {v(vM)}, {v(vM)}, {v(S + 15)}"))
    else:
        for e in range(0, 16, 2): o.append(I(f"v_max3_f32 {v(vM)}, {v(vM)}, {v(S + e)}, {v(S + e + 1)}"))
    return o
def c_setup():
    o = cross_half("v_max_f32", vM, vTmp)
    o += [I(f"v_sub_f32 {v(Cx + r)}, {v(Mc + r)}, {v(vM)}") for r in range(16)]
    o += [I(f"v_sub_f32 {v(Cm + r)}, 0, {v(vM)}") for r in range(16)]
    return o
def att_final(hd):
    o = [I(f"v_rcp_f32 {v(vTmp)}, {v(O + 8)}")]
    o += [I(f"v_mul_f32 {v(O + e)}, {v(O + e)}, {v(vTmp)}") for e in range(8)]
    o += [I(f"v_cvt_pk_bf16_f32 {v(O + j)}, {v(O + 2 * j)}, {v(O + 2 * j + 1)}") for j in range(4)]
    g = gstore(v(O, 4), vL16, sWs, s(sT1))
    o += [[I(f"s_lshl_b32 {s(sT1)}, {s(sTB)}, 4"), I(f"s_add_u32 {s(sT1)}, {s(sT1)}, {s(sHP)}"), I(f"s_lshl_b32 {s(sT1)}, {s(sT1)}, 11"),
           I(f"s_add_u32 {s(sT1)}, {s(sT1)}, {WS_O + hd * 1024}"), g]]
    return o, g
def v_reads(j, hd):
    f = Vf + 8 * (j & 1); o = j * 4096 + 2048 + hd * 256
    return [I(f"s_mov_b64 exec, {s(sVm, 2)}"), dsr(v(f, 4), vKa, o), dsr(v(f + 4, 4), vKa, o + 1024), I("s_mov_b64 exec, -1")]

def attention(edge, hooks, otok):
    c = []
    fin_prev = []
    for hd in range(2):
        q = v(Q + 4 * hd, 4)
        kr = k_reads(hd)
        c += list(kr.values()) + hooks.get(f"top{hd}", [])
        SB = [S0, S1, Cm]
        def ms(j, S, C): return mfma(S, v(KF + 4 * j, 4), q, C)
        if not edge:
            js = list(range(8, -1, -1))
            cop = lambda j: v(Mc, 16) if j == 8 else (v(Ma, 16) if j == 0 else "0")
            for k in range(3): c += [Wait(kr[js[k]].tok), ms(js[k], SB[k], cop(js[k]))]
            c += fin_prev
            for k in range(9):
                c += maxops(SB[k % 3], k == 0)
                if k + 3 < 9: c += [Wait(kr[js[k + 3]].tok), ms(js[k + 3], SB[k % 3], cop(js[k + 3]))]
            vr = {8: v_reads(8, hd)}
            c += stamp_n(f"a{hd}p1") + hooks.get(f"pre{hd}", []) + ([I(f"v_mov_b32 {v(Vf + i)}, {s(sOnes)}") for i in range(16)] if hd == 0 else []) + vr[8] + c_setup() + hooks.get(f"mid{hd}", []) + stamp_n(f"mid{hd}")
            SS = [S0, S1]; PP = [P0, P1]
            c2 = lambda j: v(Cx, 16) if j in (8, 0) else v(Cm, 16)
            c += [ms(8, S0, c2(8)), ms(7, S1, c2(7))]
            prev = None
            for k, j in enumerate(js):
                S = SS[k & 1]; P = PP[k & 1]
                ex = [I(f"v_exp_f32 {v(S + e)}, {v(S + e)}") for e in range(16)]
                cv = [I(f"v_cvt_pk_bf16_f32 {v(P + e)}, {v(S + 2 * e)}, {v(S + 2 * e + 1)}") for e in range(8)]
                blk = []
                if prev is None:
                    vr[j - 1] = v_reads(j - 1, hd)
                    blk += vr[j - 1] + [I(f"v_sub_f32 {v(Cx + r)}, {v(Ma + r)}, {v(vM)}") for r in range(16)] + ex
                else:
                    pj, pS, pP = prev
                    f = Vf + 8 * (pj & 1)
                    blk += ex[:2]
                    if pj - 2 >= 0: blk.append(ms(pj - 2, pS, c2(pj - 2)))
                    blk += ex[2:7] + [Wait(vr[pj][2].tok), mfma(O, v(f, 4), v(pP, 4), "0" if pj == 8 else v(O, 16))]
                    blk += ex[7:12] + [mfma(O, v(f + 4, 4), v(pP + 4, 4), v(O, 16))]
                    if j - 1 >= 0:
                        vr[j - 1] = v_reads(j - 1, hd); blk += vr[j - 1]
                    blk += ex[12:]
                blk += cv + hooks.get(f"blk{hd}_{k}", [])
                c += blk
                prev = (j, S, P)
            pj, pS, pP = prev; f = Vf + 8 * (pj & 1)
            c += [Wait(vr[pj][2].tok), mfma(O, v(f, 4), v(pP, 4), v(O, 16)), mfma(O, v(f + 4, 4), v(pP + 4, 4), v(O, 16))]
            c += stamp_n(f"a{hd}p2")
            fin_prev, g = att_final(hd); g.tok = otok[hd]
        else:
            c += fin_prev + [I("s_waitcnt lgkmcnt(0)")]
            l1 = newlab("e1")
            for j in range(8, 0, -1):
                c += [ms(j, S0, v(Mc, 16) if j == 8 else "0")] + maxops(S0, j == 8)
                if j > 1: c += [I(f"s_cmp_eq_u32 {s(sJmin)}, {j}"), I(f"s_cbranch_scc1 {l1}")]
            c += [Label(l1), I("s_nop 7")] + hooks.get(f"pre{hd}", []) + ([I(f"v_mov_b32 {v(Vf + i)}, {s(sOnes)}") for i in range(16)] if hd == 0 else []) + c_setup() + hooks.get(f"mid{hd}", [])
            l2 = newlab("e2")
            for j in range(8, 0, -1):
                vr = v_reads(j, hd); f = Vf + 8 * (j & 1)
                c += vr + [ms(j, S0, v(Cx, 16) if j == 8 else v(Cm, 16))]
                c += [I(f"v_exp_f32 {v(S0 + e)}, {v(S0 + e)}") for e in range(16)]
                c += [I(f"v_cvt_pk_bf16_f32 {v(P0 + e)}, {v(S0 + 2 * e)}, {v(S0 + 2 * e + 1)}") for e in range(8)]
                c += [I("s_waitcnt lgkmcnt(0)"), mfma(O, v(f, 4), v(P0, 4), "0" if j == 8 else v(O, 16)), mfma(O, v(f + 4, 4), v(P0 + 4, 4), v(O, 16))]
                if j > 1: c += [I(f"s_cmp_eq_u32 {s(sJmin)}, {j}"), I(f"s_cbranch_scc1 {l2}")]
            c += [Label(l2), I("s_nop 11")]
            for k in range(9): c += hooks.get(f"blk{hd}_{k}", [])
            fin_prev, g = att_final(hd); g.tok = otok[hd]
    c += fin_prev
    return c

ZF, acc0, acc1, Cb, vZr, vBv = 128, 160, 192, 224, 240, 244
vTRp, vTRy, vWo, vWout, vRingV, vPoll, vPollA = 245, 246, 247, 248, 249, 250, 251
acc3 = 48; RES = 20; vOut = 28

def z_poll_addr(va):
    return [I(f"v_bfe_u32 {v(va)}, {v(vL16)}, 7, 1"), I(f"v_xor_b32 {v(va)}, {s(sCG)}, {v(va)}"), I(f"v_and_b32 {v(va + 1)}, 0x70, {v(vL16)}"),
            I(f"v_add_u32 {v(va)}, {v(va)}, {v(va + 1)}"), I(f"v_lshlrev_b32 {v(va)}, 8, {v(va)}"),
            [I(f"s_lshl_b32 {s(sT1)}, {s(sP)}, 15"), I(f"s_add_u32 {s(sT1)}, {s(sT1)}, {WS_FLAGS + F_Z * 65536}"), I(f"v_add_u32 {v(va)}, {s(sT1)}, {v(va)}")]]
def row_poll_addr(va, ftype, nmax):
    return [I(f"v_bfe_u32 {v(va)}, {v(vL16)}, 4, 4"), I(f"v_min_u32 {v(va)}, {nmax}, {v(va)}"), I(f"v_lshlrev_b32 {v(va)}, 8, {v(va)}"),
            [I(f"s_lshl_b32 {s(sT1)}, {s(sRB)}, 12"), I(f"s_add_u32 {s(sT1)}, {s(sT1)}, {WS_FLAGS + ftype * 65536}"), I(f"v_add_u32 {v(va)}, {s(sT1)}, {v(va)}")]]

def ring_setup_early():
    it = [I(f"s_lshl_b32 {s(sRingR)}, {s(sW)}, 12"), I(f"s_xor_b32 {s(sT1)}, {s(sCG)}, 1"), I(f"s_lshl_b32 {s(sT1)}, {s(sT1)}, 18"),
          I(f"s_lshl_b32 {s(sT2)}, {s(sP)}, 17"), I(f"s_add_u32 {s(sT1)}, {s(sT1)}, {s(sT2)}"), I(f"s_add_u32 {s(sT1)}, {s(sT1)}, {s(sRingR)}"),
          I(f"s_add_u32 {s(sZbase)}, {s(sT1)}, {WS_Z}")]
    if OPT["rot"]:
        it += [I(f"s_and_b32 {s(sT1)}, {s(sRB)}, 3"), I(f"s_lshl_b32 {s(sZrot)}, {s(sT1)}, 15")]
    else: it += [I(f"s_mov_b32 {s(sZrot)}, 0")]
    return [it]

NQ = 27
def slot(q): return ((q + 6) % 10) * 16384
RT = {q: [Tok("vm", f"ring{q}_{i}") for i in range(4)] for q in range(NQ)}
def ring_dma(q):
    it = [I(f"s_add_u32 m0, {s(sRingR)}, {slot(q)}")]
    if q < 16:
        pre = []
        if q == 8:
            pre = [I(f"s_lshl_b32 {s(sT1)}, {s(sP)}, 19"), I(f"s_add_u32 {s(sZbase)}, {s(sZbase)}, {s(sT1)}"), I(f"s_sub_u32 {s(sZbase)}, {s(sZbase)}, 262144")]
        it.append(pre + [I(f"s_add_u32 {s(sZoff)}, {s(sZbase)}, {s(sZrot)}"), I(f"s_add_u32 {s(sZrot)}, {s(sZrot)}, 16384"), I(f"s_and_b32 {s(sZrot)}, {s(sZrot)}, 0x1ffff")])
        it += [dma(vL16, sWs, s(sZoff), 1024 * i, sc1=True, tok=RT[q][i]) for i in range(4)]
    else:
        va, r = (vWo, sWo) if q < 20 else (vWout, sWout)
        if q < 20:
            it.append([I(f"v_add_u32 {v(vTRy)}, {s(sR4)}, {v(va)}"), I(f"s_add_u32 {s(sR4)}, {s(sR4)}, 65536"), I(f"s_and_b32 {s(sR4)}, {s(sR4)}, 0x3ffff")])
        else:
            it.append([I(f"v_add_u32 {v(vTRy)}, {s(sR3)}, {v(va)}"), I(f"s_add_u32 {s(sR3)}, {s(sR3)}, 65536"), I(f"s_cmp_eq_u32 {s(sR3)}, {7 * 65536}"),
                       I(f"s_cselect_b32 {s(sR3)}, 0, {s(sR3)}")])
        it += [dma(vTRy, r, s(sOO + i) if i else "0", 1024 * i, tok=RT[q][i]) for i in range(4)]
    return it

def p3_setup():
    t0, t1, t2 = T, T + 1, T + 2
    it = [[I(f"s_lshl_b32 {s(sN0)}, {s(sC)}, 7"), I(f"s_lshr_b32 {s(sKH)}, {s(sW)}, 1"),
           I(f"s_and_b32 {s(sT1)}, {s(sW)}, 1"), I(f"s_lshl_b32 {s(sT2)}, {s(sP)}, 1"), I(f"s_add_u32 {s(sT1)}, {s(sT1)}, {s(sT2)}"),
           I(f"s_lshl_b32 {s(sT2)}, {s(sRB)}, 2"), I(f"s_add_u32 {s(sTok3)}, {s(sT1)}, {s(sT2)}")],
          ([I(f"s_add_u32 {s(sT1)}, {s(sRB)}, {s(sC)}"), I(f"s_and_b32 {s(sT1)}, {s(sT1)}, 3"), I(f"s_lshl_b32 {s(sR4)}, {s(sT1)}, 16"), I(f"s_lshl_b32 {s(sR4o)}, {s(sT1)}, 12"),
            I(f"s_and_b32 {s(sT1)}, {s(sRB)}, 3"), I(f"s_lshl_b32 {s(sT1)}, {s(sT1)}, 1"), I(f"s_add_u32 {s(sT1)}, {s(sT1)}, {s(sC)}"),
            I(f"s_sub_u32 {s(sT2)}, {s(sT1)}, 7"), I(f"s_cmp_ge_u32 {s(sT1)}, 7"), I(f"s_cselect_b32 {s(sT1)}, {s(sT2)}, {s(sT1)}"),
            I(f"s_lshl_b32 {s(sR3)}, {s(sT1)}, 16"), I(f"s_lshl_b32 {s(sR3y)}, {s(sT1)}, 12")] if OPT["rot"] else
           [I(f"s_mov_b32 {s(r)}, 0") for r in (sR4, sR4o, sR3, sR3y)]),
          I(f"v_bfe_u32 {v(t0)}, {v(vL16)}, 6, 3"), I(f"v_lshlrev_b32 {v(t0)}, 10, {v(t0)}"), I(f"v_and_b32 {v(t1)}, 48, {v(vL16)}"),
          I(f"v_or_b32 {v(t0)}, {v(t0)}, {v(t1)}"), I(f"v_lshrrev_b32 {v(t1)}, 9, {v(vL16)}"), I(f"v_lshl_add_u32 {v(t0)}, {v(t1)}, 6, {v(t0)}"),
          [I(f"s_and_b32 {s(sT1)}, {s(sW)}, 1"), I(f"s_lshl_b32 {s(sT1)}, {s(sT1)}, 15"), I(f"s_add_u32 {s(sT1)}, {s(sT1)}, {s(sN0)}"),
           I(f"v_add_u32 {v(t0)}, {s(sT1)}, {v(t0)}")],
          [I(f"s_mul_i32 {s(sT1)}, {s(sKH)}, {448 * 1024}"), I(f"v_add_u32 {v(vWout)}, {s(sT1)}, {v(t0)}")],
          [I(f"s_lshl_b32 {s(sT1)}, {s(sKH)}, 18"), I(f"v_add_u32 {v(vWo)}, {s(sT1)}, {v(t0)}")],
          I(f"v_bfe_u32 {v(t0)}, {v(vL16)}, 6, 2"), I(f"v_lshl_add_u32 {v(t0)}, {v(t1)}, 2, {v(t0)}"), I(f"v_lshlrev_b32 {v(t0)}, 6, {v(t0)}"),
          I(f"v_bfe_u32 {v(t2)}, {v(vL16)}, 8, 1"), I(f"v_lshl_add_u32 {v(t0)}, {v(t2)}, 5, {v(t0)}"),
          I(f"v_bfe_u32 {v(t2)}, {v(vL16)}, 4, 2"), I(f"v_lshl_add_u32 {v(t0)}, {v(t2)}, 3, {v(t0)}"),
          [I(f"s_lshl_b32 {s(sT1)}, {s(sKH)}, 13"), I(f"v_add_u32 {v(vTRp)}, {s(sT1)}, {v(t0)}")]]
    return it

OT = [Tok("vm", f"o{i}") for i in range(16)]
def o_loads():
    it = [[I(f"s_lshl_b32 {s(sT2)}, {s(sTok3)}, 15"), I(f"s_lshl_b32 {s(sT1)}, {s(sKH)}, 14"), I(f"s_add_u32 {s(sT2)}, {s(sT2)}, {s(sT1)}"),
           I(f"s_add_u32 {s(84)}, {s(sT2)}, {WS_O}")]]
    for i in range(16):
        if i % 4 == 0: it.append([I(f"s_add_u32 {s(sT3)}, {s(84)}, {s(sR4o)}"), I(f"s_add_u32 {s(sR4o)}, {s(sR4o)}, 4096"), I(f"s_and_b32 {s(sR4o)}, {s(sR4o)}, 0x3fff")])
        it.append(gload(a(4 * i, 4), vL16, sWs, s(sT3), 1024 * (i % 4), sc1=True, tok=OT[i]))
    return it
RSD = [Tok("vm", "res0"), Tok("vm", "res1")]
def res_loads():
    return [I(f"v_lshrrev_b32 {v(vOut)}, 7, {v(vL16)}"), I(f"v_lshlrev_b32 {v(vOut)}, 10, {v(vOut)}"), I(f"v_and_b32 {v(vOut + 1)}, 0x70, {v(vL16)}"),
            I(f"v_or_b32 {v(vOut)}, {v(vOut)}, {v(vOut + 1)}"),
            [I(f"s_lshl_b32 {s(sT1)}, {s(sRB)}, 17"), I(f"s_lshl_b32 {s(sT2)}, {s(sP)}, 16"), I(f"s_add_u32 {s(sT1)}, {s(sT1)}, {s(sT2)}"),
             I(f"s_lshl_b32 {s(sT2)}, {s(sW)}, 13"), I(f"s_add_u32 {s(sT1)}, {s(sT1)}, {s(sT2)}"), I(f"s_add_u32 {s(sT1)}, {s(sT1)}, {s(sN0)}"),
             I(f"v_add_u32 {v(vOut)}, {s(sT1)}, {v(vOut)}")],
            I(f"v_add_u32 {v(vOut + 1)}, 32768, {v(vOut)}"),
            gload(v(RES, 4), vOut, sX, "0", tok=RSD[0]), gload(v(RES + 4, 4), vOut + 1, sX, "0", tok=RSD[1])]

def p2_setup():
    t0, t1, t2, t3 = T, T + 1, T + 2, T + 3
    it = [I(f"v_bfe_u32 {v(t0)}, {v(vL16)}, 8, 1"), I(f"v_bfe_u32 {v(t1)}, {v(vL16)}, 5, 1"),
          I(f"v_lshlrev_b32 {v(t2)}, 10, {v(t0)}"), I(f"v_lshl_add_u32 {v(t2)}, {v(t1)}, 9, {v(t2)}"),
          I(f"v_bfe_u32 {v(t3)}, {v(vL16)}, 4, 1"), I(f"v_lshl_add_u32 {v(t2)}, {v(t3)}, 3, {v(t2)}"), I(f"v_add_u32 {v(t2)}, {slot(0) & ~0xffff}, {v(t2)}"),
          I(f"v_lshlrev_b32 {v(t0)}, 3, {v(t0)}"), I(f"v_lshl_add_u32 {v(t0)}, {v(t1)}, 2, {v(t0)}"),
          I(f"v_lshrrev_b32 {v(t1)}, 9, {v(vL16)}"), I(f"v_lshl_add_u32 {v(t0)}, {v(t1)}, 3, {v(t0)}"),
          I(f"v_bfe_u32 {v(t1)}, {v(vL16)}, 6, 2"), I(f"v_add_u32 {v(t0)}, {v(t0)}, {v(t1)}")]
    for u in range(2):
        for e in range(2):
            d = vZr + 2 * u + e
            it += [I(f"v_add_u32 {v(d)}, {16 * u + 4 * e}, {v(t0)}"), I(f"v_and_b32 {v(d)}, 31, {v(d)}"), I(f"v_lshl_add_u32 {v(d)}, {v(d)}, 4, {v(t2)}")]
    bl = gload(v(vBv), t0, sB, s(sT1), op="ushort")
    it += [I(f"v_bfe_u32 {v(t0)}, {v(vL16)}, 4, 5"), I(f"v_lshlrev_b32 {v(t0)}, 1, {v(t0)}"), [I(f"s_lshl_b32 {s(sT1)}, {s(sTB)}, 6"), bl]]
    return it, bl

def win(q): return slot(q) & ~0xffff
def rewin(regs_, q):
    d = win(q) - win(q - 1)
    return [I(f"v_add_u32 {v(r)}, {hx(d)}, {v(r)}") for r in regs_] if d else []

def phase2(otok):
    rd = {}
    def reads(n):
        q, r = divmod(n, 8); tbl, u = r >> 1, r & 1; f = ZF + 8 * (n % 4)
        rd[n] = [dstr(v(f + 4 * ft + 2 * e, 2), vZr + 2 * u + e, slot(q) - win(q) + tbl * 4096 + ft * 2048) for ft in range(2) for e in range(2)]
        adj = rewin(range(vZr, vZr + 4), q) if r == 0 and q else []
        return adj + rd[n][:2], rd[n][2:]
    setup, bl = p2_setup()
    pre = {q: [] for q in range(17)}; post = {q: [] for q in range(17)}; fill = {q: [] for q in range(17)}
    sched = {0: (4, 5, 6), 2: (7, 8, 9), 4: (10, 11, 12), 6: (13, 14, 15), 8: (16, 17), 10: (18, 19), 12: (20, 21), 14: (22, 23), 16: (24, 25)}
    pre[4] += otok; post[4] += [flag_store(F_O, 30)]
    pit = []
    for j in range(16):
        pit += [I(f"v_cvt_pk_bf16_f32 {v(acc0 + 2 * j)}, {v(acc0 + 2 * j)}, {v(acc0 + 2 * j + 1)}"), I(f"v_mov_b32 {v(acc0 + 2 * j + 1)}, {s(sNonce)}")]
        if j == 0:
            pit += [[I(f"s_lshl_b32 {s(sT2)}, {s(sRB)}, 4"), I(f"s_add_u32 {s(sT2)}, {s(sT2)}, {s(sCG)}"), I(f"s_lshl_b32 {s(sT2)}, {s(sT2)}, 2"),
                     I(f"s_add_u32 {s(sT2)}, {s(sT2)}, {s(sW)}"), I(f"s_lshl_b32 {s(sT2)}, {s(sT2)}, 13"), I(f"s_add_u32 {s(sPa)}, {s(sT2)}, {WS_PART}"),
                     I(f"s_add_u32 {s(sPb)}, {s(sPa)}, 4096")]]
        if j & 1:
            k = j >> 1
            pit.append(gstore(v(acc0 + 4 * k, 4), vL16, sWs, s(sPa if k < 4 else sPb), 1024 * (k & 3)))
    pit += [I(f"s_xor_b32 {s(sPa)}, {s(sPa)}, 32768"), I(f"s_xor_b32 {s(sPb)}, {s(sPb)}, 32768")]
    def ploads(): return [gload(v(acc0 + 4 * k, 4), vL16, sWs, s(sPa if k < 4 else sPb), 1024 * (k & 3), sc1=True) for k in range(8)]
    def chain():
        o = [I(f"v_xor_b32 {v(vPoll)}, {s(sNonce)}, {v(acc0 + 1)}")]
        for k in range(1, 16): o.append(I(f"v_bitop3_b32 {v(vPoll)}, {v(vPoll)}, {v(acc0 + 2 * k + 1)}, {s(sNonce)} bitop3:0xf6"))
        return o
    pld = ploads()
    ls, lb, ll = newlab("slow"), newlab("back"), newlab("loop")
    slow.extend([Label(ls), I(f"s_mov_b32 {s(sSpin)}, {OPT['spin']}"), Label(ll), I("s_sleep 1")] + ploads() + [I("s_waitcnt vmcnt(0)")] + chain() + [
        I(f"v_cmp_ne_u32 {s(sMask, 2)}, 0, {v(vPoll)}"), I("s_nop 1"), I(f"s_cmp_eq_u64 {s(sMask, 2)}, 0"), I(f"s_cbranch_scc1 {lb}"),
        I(f"s_sub_u32 {s(sSpin)}, {s(sSpin)}, 1"), I(f"s_cmp_lg_u32 {s(sSpin)}, 0"), I(f"s_cbranch_scc1 {ll}"), I(f"s_branch {lb}")])
    pchk = [Wait(pld[7].tok)] + chain() + [[I(f"v_cmp_ne_u32 {s(sMask, 2)}, 0, {v(vPoll)}"), I(f"s_cmp_lg_u64 {s(sMask, 2)}, 0"), I(f"s_cbranch_scc1 {ls}"), Label(lb)]]
    pchk += [[I(f"s_or_b32 {s(sT1)}, {s(sRB)}, {s(sCG)}"), I(f"s_cmp_eq_u32 {s(sT1)}, 0"), I(f"s_cselect_b32 {s(sT1)}, 0, 0x80000000"),
              I(f"v_or_b32 {v(30)}, {s(sT1)}, {v(vFL)}"), I(f"v_mov_b32 {v(31)}, {s(sNonce)}"), gstore(v(31), 30, sWs, "0", WS_EPOCH, op="dword")]]
    for j in range(16):
        g = acc0 + 2 * j
        pchk += [I(f"v_and_b32 {v(g + 1)}, 0xffff0000, {v(g)}"), I(f"v_lshlrev_b32 {v(g)}, 16, {v(g)}"),
                 I(f"v_mul_f32 {v(g + 1)}, {v(g + 1)}, {v(accB + 2 * j + 1)}"), I(f"v_mul_f32 {v(g)}, {v(g)}, {v(accB + 2 * j)}")]
    ol = poll_issue(vPoll, vPollA)
    for q in sched:
        for x in sched[q]: fill[q] += ring_dma(x)
    fill[8] += row_poll_addr(vPollA, F_O, 15) + [ol]
    fill[10] = [poll_check(ol, vPoll, vPollA)] + o_loads() + fill[10]
    fill[12] = res_loads() + fill[12]
    r0, r1, r2, r3 = reads(0), reads(1), reads(2), reads(3)
    main = setup + p3_setup() + [Wait(*(RT[0] + RT[1])), I("s_waitcnt lgkmcnt(0)"), BAR()] + stamp_n("q0") + list(r0 + r1 + r2 + r3)
    for n in range(128):
        ps = n // 64; f = ZF + 8 * (n % 4); d = acc1 if ps else acc0; first = n % 64 == 0
        B = a(4 * (n % 64), 4)
        c0 = ("0" if ps == 0 else v(Cb, 16)) if first else v(d, 16)
        c1 = ("0" if ps == 0 else v(Cb, 16)) if first else v(d + 16, 16)
        m0, m1 = mfma(d, v(f, 4), B, c0), mfma(d + 16, v(f + 4, 4), B, c1)
        main += [Wait(*toks(rd[n])), m0]
        nx = n + 4
        if nx % 16 == 0 and nx <= 128:
            q = nx // 8
            main += [m1, [Wait(*(toks(rd[n + 3]) + RT[q] + RT[q + 1] + pre[q])), BAR()] + stamp_n(f"q{q}") + post[q]]
            if nx < 128:
                ra, rb_ = reads(nx); main += ra + rb_
        elif nx < 128:
            ra, rb_ = reads(nx); main += ra + [m1] + rb_
        else: main += [m1]
    main = flat1(main)
    for q in range(0, 17, 2):
        lo = max(2 * (8 * q - 4) + 2, 0); hi = min(2 * (8 * (q + 2) - 4) + 1, 256)
        main = weave(main, fill[q], lo, hi)
    cb = [Wait(bl.tok), I(f"v_lshlrev_b32 {v(vBv)}, 16, {v(vBv)}")] + [I(f"v_mov_b32 {v(Cb + r)}, {v(vBv)}") for r in range(16)]
    main = weave(main, cb, 60, 120)
    main = weave(main, gelu(accB, 32, False), 2, OPT['gz'])
    main = weave(main, pit, 130, 146)
    main = weave(main, pld, OPT["pl0"], OPT["pl0"] + 8)
    main = weave(main, pchk, OPT["pl1"], 256)
    ep = []
    yst = []
    ep += [[I(f"s_mul_i32 {s(sT2)}, {s(sTB)}, 56"), I(f"s_lshl_b32 {s(sT1)}, {s(sCG)}, 2"), I(f"s_add_u32 {s(sT2)}, {s(sT2)}, {s(sT1)}"),
            I(f"s_lshl_b32 {s(sT2)}, {s(sT2)}, 10"), I(f"s_add_u32 {s(sT2)}, {s(sT2)}, {WS_Y}")]]
    for ft in range(2):
        b = acc1 + 16 * ft
        for i in range(2):
            ep += [I(f"v_fma_f32 {v(b + e)}, {v(b + e)}, {v(accB + 16 * ft + e)}, {v(acc0 + 16 * ft + e)}") for e in range(8 * i, 8 * i + 8)]
            ep += [I(f"v_cvt_pk_bf16_f32 {v(b + 8 * i + j)}, {v(b + 8 * i + 2 * j)}, {v(b + 8 * i + 2 * j + 1)}") for j in range(4)]
            g = gstore(v(b + 8 * i, 4), vL16, sWs, s(sT2), 1024 * (2 * ft + i)); yst.append(g); ep.append(g)
    return main + stamp_at(7) + ep + stamp_n("ep"), yst
sPa, sPb = 61, 62

def flat1(x):
    out = []
    for e in x:
        if isinstance(e, list) and e and all(isinstance(y, Ins) and (y.kind == "ds" or y.op == "v_add_u32") for y in e): out.extend(e)
        else: out.append(e)
    return out

YT = [Tok("vm", f"yst{i}") for i in range(4)]
def light2(otok):
    c = ring_setup_early() + p3_setup() + [Wait(*otok), BAR(), flag_store(F_O, 30)]
    for q in range(16, 26): c += ring_dma(q)
    c += res_loads()
    ol = poll_issue(vPoll, vPollA)
    c += row_poll_addr(vPollA, F_O, 15) + [ol, poll_check(ol, vPoll, vPollA, sleep=8)] + o_loads()
    c += [Wait(*(RT[16] + RT[17])), BAR()]
    return c

def phase3():
    c = []
    rd = {}
    F3 = ZF
    def reads(n):
        q = 16 + n // 4; j = n % 4; f = F3 + 8 * (n % 4)
        rd[n] = [dstr(v(f + 4 * u + 2 * e, 2), vTRp, slot(q) - win(q) + j * 2048 + e * 1024 + u * 512) for u in range(2) for e in range(2)]
        adj = rewin([vTRp], q) if j == 0 and q > 16 else []
        return adj + rd[n]
    assert win(16) == 0
    c += reads(0) + reads(1) + reads(2)
    for n in range(16):
        f = F3 + 8 * (n % 4); B = a(4 * n, 4); nx = n + 3
        c += [Wait(*(toks(rd[n]) + [OT[n]])), mfma(acc3, v(f, 4), B, "0" if n == 0 else v(acc3, 16))]
        if nx == 8: c += [Wait(*(RT[18] + RT[19] + toks(rd[n + 2]))), BAR()]
        c += [mfma(acc3 + 16, v(f + 4, 4), B, "0" if n == 0 else v(acc3 + 16, 16))]
        if nx == 8: c += ring_dma(26)
        if nx < 16: c += reads(nx)
    c += stamp_at(8)
    c += row_poll_addr(vPollA, F_Y, 13)
    c += [I(f"s_mul_i32 {s(sT2)}, {s(sTok3)}, 56"), I(f"s_mul_i32 {s(sT1)}, {s(sKH)}, 28"), I(f"s_add_u32 {s(sT2)}, {s(sT2)}, {s(sT1)}"),
          I(f"s_lshl_b32 {s(sT2)}, {s(sT2)}, 10"), I(f"s_add_u32 {s(sPa)}, {s(sT2)}, {WS_Y}")]
    c += [Wait(*(YT + RT[25])), BAR(), flag_store(F_Y, T + 14)]
    yl = poll_issue(vPoll, vPollA)
    c += [yl] + reads(16) + reads(17) + reads(18)
    wa, ra = 32, 40
    c += [I(f"v_bfe_u32 {v(T)}, {v(vL16)}, 4, 4"), I(f"v_lshrrev_b32 {v(T + 1)}, 9, {v(vL16)}"), I(f"v_xor_b32 {v(T)}, {v(T)}, {v(T + 1)}"),
          I(f"v_lshlrev_b32 {v(T)}, 4, {v(T)}"), I(f"v_and_b32 {v(T + 1)}, 0x1f0, {v(vL16)}"), I(f"v_lshl_add_u32 {v(T)}, {v(T + 1)}, 4, {v(T)}"),
          I(f"s_and_b32 {s(sT1)}, {s(sW)}, 1"), I(f"s_lshl_b32 {s(sT1)}, {s(sT1)}, 13"), I(f"s_lshl_b32 {s(sT3)}, {s(sKH)}, 14"),
          I(f"s_add_u32 {s(sT1)}, {s(sT1)}, {s(sT3)}"), I(f"s_add_u32 {s(sT1)}, {s(sT1)}, {L_RED}"), I(f"v_add_u32 {v(wa)}, {s(sT1)}, {v(T)}")]
    for i in range(1, 8): c.append(I(f"v_xor_b32 {v(wa + i)}, {32 * i}, {v(wa)}"))
    c += [I(f"v_lshrrev_b32 {v(T)}, 7, {v(vL16)}"), I(f"s_lshl_b32 {s(sT1)}, {s(sW)}, 3"), I(f"v_add_u32 {v(T)}, {s(sT1)}, {v(T)}"),
          I(f"v_and_b32 {v(T + 1)}, 15, {v(T)}"), I(f"v_bfe_u32 {v(T + 2)}, {v(vL16)}, 4, 3"), I(f"v_lshlrev_b32 {v(T + 2)}, 1, {v(T + 2)}"),
          I(f"v_xor_b32 {v(T + 1)}, {v(T + 1)}, {v(T + 2)}"), I(f"v_lshlrev_b32 {v(T + 1)}, 4, {v(T + 1)}"), I(f"v_lshl_add_u32 {v(T)}, {v(T)}, 8, {v(T + 1)}"),
          I(f"v_add_u32 {v(ra)}, {L_RED}, {v(T)}"), I(f"v_xor_b32 {v(ra + 1)}, 16, {v(ra)}")]
    c += poll_check(yl, vPoll, vPollA, sleep=0)
    c += stamp_at(9)
    yld = {}
    def yload(k):
        o = [I(f"s_add_u32 {s(sPb)}, {s(sPa)}, {s(sR3y)}"), I(f"s_add_u32 {s(sR3y)}, {s(sR3y)}, 4096"), I(f"s_cmp_eq_u32 {s(sR3y)}, {7 * 4096}"),
             I(f"s_cselect_b32 {s(sR3y)}, 0, {s(sR3y)}")] if k % 4 == 0 else []
        yld[k] = gload(a(64 + 4 * k, 4), vL16, sWs, s(sPb), 1024 * (k % 4), sc1=True)
        return o + [yld[k]]
    LA = OPT["yla"]
    for k in range(LA): c += yload(k)
    for k in range(28):
        n = 16 + k; f = F3 + 8 * (n % 4); B = a(64 + 4 * k, 4)
        c += [Wait(*(toks(rd[n]) + [yld[k].tok])), mfma(acc3, v(f, 4), B, v(acc3, 16))]
        if k == 8: c += [Wait(*RT[26]), BAR()]
        r = reads(n + 3) if k + 3 < 28 else []
        c += r[:-2] + [mfma(acc3 + 16, v(f + 4, 4), B, v(acc3 + 16, 16))] + r[-2:]
        if k + LA < 28: c += yload(k + LA)
    ws = [dsw(wa + 4 * u + q, v(acc3 + 16 * u + 4 * q, 4)) for u in range(2) for q in range(4)]
    c += stamp_n("y28") + ws + [Wait(*toks(ws)), BAR()] + stamp_n("red")
    D = 128
    rr = [[dsr(v(D + 16 * k + 8 * hf + 4 * j, 4), ra + j, k * 8192 + hf * 16384) for hf in range(2) for j in range(2)] for k in range(2)]
    c += rr[0] + rr[1]
    for k in range(2):
        b = D + 16 * k; x = RES + 4 * k
        c += [Wait(*(toks(rr[k]) + [RSD[k]]))]
        c += [I(f"v_add_f32 {v(b + e)}, {v(b + e)}, {v(b + 8 + e)}") for e in range(8)]
        for j in range(4):
            c += [I(f"v_lshlrev_b32 {v(b + 8 + 2 * j)}, 16, {v(x + j)}"), I(f"v_and_b32 {v(b + 9 + 2 * j)}, 0xffff0000, {v(x + j)}")]
        c += [I(f"v_add_f32 {v(b + e)}, {v(b + e)}, {v(b + 8 + e)}") for e in range(8)]
        c += [I(f"v_cvt_pk_bf16_f32 {v(b + j)}, {v(b + 2 * j)}, {v(b + 2 * j + 1)}") for j in range(4)]
        c += [gstore(v(b, 4), vOut + k, sOut, "0", sc1=False)]
    c += stamp_at(10)
    if OPT["stamps"]:
        c += [I("s_waitcnt lgkmcnt(0)")]
        for i in range(7): c.append(I(f"v_mov_b32 {v(128 + i)}, {s(sStamp + 2 * i)}"))
        c += [I(f"s_lshl_b32 {s(sT1)}, s2, 8"), I(f"s_lshl_b32 {s(sT2)}, {s(sW)}, 6"), I(f"s_add_u32 {s(sT1)}, {s(sT1)}, {s(sT2)}"),
              I(f"s_add_u32 {s(sT1)}, {s(sT1)}, {WS_DBG}"), I(f"v_mov_b32 {v(140)}, 0")]
        for i in range(2): c.append(gstore(v(128 + 4 * i, 4), 140, sWs, s(sT1), 16 * i, sc1=False))
    return c

def build():
    fr, wd = front()
    wdF = dict(wd); wdL = dict(wd)
    for d in (wdF, wdL):
        d[2] = w_dma(KFULL, 2); d[3] = w_dma(KFULL, 3)
    lnf = ln_finish(wdF[2] + wdF[3]); lnl = ln_finish(wdL[2] + wdL[3])
    spd, p1F, kdmF, zst = p1_main(KFULL, wdF, True)
    _, p1L, kdmL, _ = p1_main(KLIGHT, wdL, False)
    otok = [Tok("vm", "ost0"), Tok("vm", "ost1")]
    def hooks_full():
        zl = poll_issue(254, 252)
        h = {f"blk{hd}_{k}": [] for hd in range(2) for k in range(9)}
        spre, spost = stats_recv()
        zi, zst = z2_publish()
        h["top0"] = spre
        h["pre0"] = spost + zi
        h[f"blk0_{OPT['zf']}"] = [Wait(*toks(zst)), BAR(), flag_store(F_Z, 253)]
        places = [f"blk0_{k}" for k in range(0, 9)] + ["blk1_0", "blk1_1", "blk1_2"]
        left = list(range(OPT["sp1"], 16)); d = dict(spd)
        for i, w in enumerate(left):
            pl = places[(i * len(places)) // len(left)]
            r = sp_read(w)
            h[pl] += [Wait(*toks(d[w]))] + r
            if w + 3 < 16:
                d[w + 3] = sp_dma(w + 3)
                nxt = places[min((i * len(places)) // len(left) + 1, len(places) - 1)]
                h[nxt] = [Wait(*toks(r))] + d[w + 3] + h[nxt]
        zp = OPT["zp"]
        h[f"blk1_{zp}"] += ring_setup_early() + z_poll_addr(252) + [zl]
        h[f"blk1_{min(zp + 3, 8)}"] += [poll_check(zl, 254, 252)] + stamp_n("zchk") + ring_dma(0)
        h[f"blk1_{min(zp + 4, 8)}"] += ring_dma(1); h[f"blk1_{min(zp + 5, 8)}"] += ring_dma(2); h["blk1_8"] += ring_dma(3)
        return h
    segs = {}
    segs["front"] = flat(fr + [I(f"s_cmp_ge_u32 {s(sCG)}, 14"), I("s_cbranch_scc1 L_light")])
    segs["fullP1"] = flat(lnf + stamp_at(3) + p1F + stamp_at(4) + att_setup(kdmF) + [I(f"s_cmp_lt_u32 {s(sRB)}, 2"), I("s_cbranch_scc1 L_fedge")])
    segs["fullAtt"] = flat(attention(False, hooks_full(), otok))
    p2, yst = phase2(otok)
    for g, t in zip(yst, YT): g.tok = t
    segs["P2"] = flat([Label("L_p2")] + stamp_at(5) + p2)
    segs["P3"] = flat([Label("L_p3")] + phase3() + [Label("L_end"), I("s_endpgm")])
    segs["fullEdge"] = flat([Label("L_fedge")] + attention(True, hooks_full(), otok) + [I("s_branch L_p2")])
    segs["lightP1"] = flat([Label("L_light")] + lnl + stamp_at(3) + p1L + stamp_at(4) + att_setup(kdmL) + [I(f"s_cmp_lt_u32 {s(sRB)}, 2"), I("s_cbranch_scc1 L_ledge")])
    segs["lightAtt"] = flat(attention(False, {}, otok))
    l2 = light2(otok)
    fake = [VM(f"buffer_load_dword {v(T + 15)}, {v(vFL)}, {srd(sB)}, 0 offen", tok=t) for t in YT]
    segs["light2"] = flat([Label("L_l2")] + stamp_at(5) + fake + l2 + stamp_at(7) + [I("s_branch L_p3")])
    segs["lightEdge"] = flat([Label("L_ledge")] + attention(True, {}, otok) + [I("s_branch L_l2")])
    paths = [["front", "fullP1", "fullAtt", "P2", "P3"], ["front", "fullP1", "fullEdge", "P2", "P3"],
             ["front", "lightP1", "lightAtt", "light2", "P3"], ["front", "lightP1", "lightEdge", "light2", "P3"]]
    finalize([flat([segs[n] for n in p]) for p in paths] + [flat(slow)])
    order = ["front", "fullP1", "fullAtt", "P2", "P3", "fullEdge", "lightP1", "lightAtt", "light2", "lightEdge"]
    body = "\n".join(render(segs[n]) for n in order) + "\n" + render(flat(slow))
    hdr = open(__file__.rsplit("/", 1)[0] + "/../cdna_kernels/parallel_sum__sliding_block__mixer_gmlp__prompt.s.ref").read().split("; Override launch")[0]
    out = hdr + "; @launch grid=(256,1,1) block=(256,1,1) lds=163840\n" + f'''.amdgcn_target "amdgcn-amd-amdhsa--gfx950"
.text
.globl {KNAME}
.p2align 8
.type {KNAME},@function
{KNAME}:
{body}
.section .rodata,"a"
.p2align 6
.amdhsa_kernel {KNAME}
  .amdhsa_next_free_vgpr 512
  .amdhsa_next_free_sgpr 102
  .amdhsa_accum_offset 256
  .amdhsa_group_segment_fixed_size 0
  .amdhsa_kernarg_size 88
  .amdhsa_user_sgpr_count 2
  .amdhsa_user_sgpr_kernarg_segment_ptr 1
  .amdhsa_system_sgpr_workgroup_id_x 1
  .amdhsa_float_denorm_mode_32 3
.end_amdhsa_kernel
'''
    if OPT["stamps"]: out = out.replace("; @launch", "; stamps: " + " ".join(PROFS[OPT["stamps"]]) + "\n; @launch")
    open(sys.argv[1], "w").write(out)
    n = {k: len(x) for k, x in segs.items()}
    pads = {k: sum(i.pad for i in x) for k, x in segs.items()}
    print("instr counts", n, "pads", pads, file=sys.stderr)

build()
```

```python
import sys, math, struct
sys.path.insert(0, __file__.rsplit("/", 1)[0])
from asmlib import *

KNAME = "parallel_sum__sliding_block__mixer_gmlp__prompt_kernel"
OPT = dict(stamps=0, spin=20000, nt_x=0, nt_w=0, probe=None, nt_sp=0, nt_o=0, nt_t=0, rot=1, sp0=2, sp1=10, touch=1, touch_o=1, pl0=200, pl1=226, yla=10, g1=200, gz=216, zf=5, zp=3, nosp=0)
for arg in sys.argv[2:]:
    k, val = arg.split("="); OPT[k] = val if k == "probe" else int(val)

def fbits(x): return struct.unpack("<I", struct.pack("<f", x))[0]
def hx(x): return hex(x & 0xffffffff)

WS_EPOCH = 0
WS_FLAGS = 0x1000
WS_STATS = 0x100000
WS_KV = 0x200000
WS_Z = 0x600000
WS_PART = 0xA00000
WS_O = 0x1200000
WS_Y = 0x1400000
WS_DBG = 0x1800000
F_KV, F_Z, F_PART, F_O, F_Y = range(5)
L_STG = 48 * 1024; L_RING = 96 * 1024; L_RED = 48 * 1024
sX, sWq, sWi, sWsp, sWo, sWout, sB, sOut, sWs = 4, 8, 12, 16, 20, 24, 28, 32, 36
sRB, sCG, sP, sW, sNonce, sHP, sTB, sT0 = 40, 41, 42, 43, 44, 45, 46, 47
sOI, sOQ, sOO = 48, 52, 56
sMyFlag = 48
sJmin = 52
sN0 = 56
sSpA, sSpB, sRingW, sStg, sZoff, sRingR = 61, 62, 63, 64, 65, 66
sTok3 = 67
sKH = 68
sC10, sC01, sOnes = 70, 71, 72
sKVo, sKVs, sZo = 60, 69, 73
sMask = 74; sSpin = 76; sT1, sT2, sT3 = 77, 78, 79
sRotI, sRotQ = 80, 84
sR4, sR4o, sR3, sR3y = 80, 81, 82, 83
sStamp = 88
sC = 3; sSpBase = 0; sSpRot = 1; sVm = 70; sZbase = 60; sZrot = 69
vL16, vTR, vWd, vSpA, vSpB, vSpR, vFL, vR, vGA, vGB, vD, vSum, vSq = 0, 1, 2, 3, 4, 5, 9, 10, 11, 12, 13, 14, 15
T = 16
accA, accB, accD, X = 48, 80, 112, 128
vStD, vStA, vStB, vStC = 43, 45, 46, 47
AF = 224

slow = []
_lab = [0]
def newlab(n):
    _lab[0] += 1; return f"L_{n}_{_lab[0]}"

_st = [0]
def stamp():
    if not OPT["stamps"]: return []
    i = _st[0]; _st[0] += 1
    assert sStamp + 2 * i + 1 <= 101
    return [I(f"s_memtime {s(sStamp + 2 * i, 2)}")]
PROFS = {1: ["start", "center", "P1", "att", "P2", "yflag", "end"],
         2: ["start", "b0", "b4", "b8", "b10", "b12", "P1"],
         4: ["start", "b12", "kchk", "P1", "attbar", "sld", "schk"],
         6: ["start", "b3", "b4", "b5", "b6", "b7", "b8"],
         10: ["start", "b8", "b9", "b10", "b11", "b12", "b13"],
         3: ["start", "att", "q0", "q4", "q8", "q12", "P2"],
         5: ["start", "dma0", "x0", "x3", "xbar", "stats", "lnpre"],
         7: ["start", "P2", "ep", "opart", "yflag", "y28", "end"],
         8: ["start", "attbar", "mid0", "a0p2", "mid1", "zchk", "att"],
         9: ["start", "rt:start", "P1", "rt:P1", "P2", "end", "rt:end"]}
OLD = ["start", "x0", "stats", "center", "P1", "att", "attbar", "P2", "opart", "yflag", "end"]
def stamp_n(name):
    if OPT["probe"]:
        if name == "start": return [I(f"s_memrealtime {s(sStamp, 2)}")]
        if name == OPT["probe"]: return [I(f"s_memrealtime {s(sStamp + 2, 2)}")]
        return []
    if not OPT["stamps"]: return []
    L = PROFS[OPT["stamps"]]
    if name not in L: return []
    o = [I(f"s_memtime {s(sStamp + 2 * L.index(name), 2)}")]
    if "rt:" + name in L: o.append(I(f"s_memrealtime {s(sStamp + 2 * L.index('rt:' + name), 2)}"))
    return o
def stamp_at(i): return stamp_n(OLD[i])

def srd(r): return s(r, 4)
def dma(vaddr, r, soff, imm, sc1=False, tok=None):
    o = f" offset:{imm}" if imm else ""
    nt = {sX: OPT["nt_x"], sWq: OPT["nt_w"], sWi: OPT["nt_w"], sWsp: OPT["nt_sp"], sWo: OPT["nt_o"], sWout: OPT["nt_o"]}.get(r, 0)
    return VM(f"buffer_load_dwordx4 {v(vaddr)}, {srd(r)}, {soff} offen{o}{' sc1' if sc1 else ''}{' nt' if nt else ''} lds", tok=tok)
def gload(dst, vaddr, r, soff, imm=0, sc1=False, tok=None, op="dwordx4"):
    o = f" offset:{imm}" if imm else ""
    return VM(f"buffer_load_{op} {dst}, {v(vaddr)}, {srd(r)}, {soff} offen{o}{' sc1' if sc1 else ''}", tok=tok)
def gstore(src, vaddr, r, soff, imm=0, sc1=True, op="dwordx4", tok=None):
    o = f" offset:{imm}" if imm else ""
    return VM(f"buffer_store_{op} {src}, {v(vaddr)}, {srd(r)}, {soff} offen{o}{' sc1' if sc1 else ''}", tok=tok)
def dsr(dst, vaddr, imm=0, op="ds_read_b128"):
    o = f" offset:{imm}" if imm else ""
    return DS(f"{op} {dst}, {v(vaddr)}{o}")
def dstr(dst, vaddr, imm=0): return dsr(dst, vaddr, imm, "ds_read_b64_tr_b16")
def dsw(vaddr, src, imm=0, op="ds_write_b128"):
    o = f" offset:{imm}" if imm else ""
    return DS(f"{op} {v(vaddr)}, {src}{o}")
def mfma(d, A, B, C):
    return I(f"v_mfma_f32_32x32x16_bf16 {v(d, 16)}, {A}, {B}, {C}")
def toks(items): return [x.tok for x in flat(items) if x.tok is not None]
def vmtoks(items): return [x.tok for x in flat(items) if x.tok is not None and x.kind == "vmem"]
def lgtoks(items): return [x.tok for x in flat(items) if x.tok is not None and x.kind == "ds"]
BAR = lambda: I("s_barrier")

def rne_bf16(dst, src):
    return [I(f"v_cvt_pk_bf16_f32 {v(dst)}, {v(src)}, {v(src)}"), I(f"v_and_b32 {v(dst)}, 0xffff0000, {v(dst)}")]
def cross_half(op, r, tmp):
    return [I(f"v_mov_b32 {v(tmp)}, {v(r)}"), I(f"v_permlane32_swap_b32 {v(r)}, {v(tmp)}"), I(f"{op} {v(r)}, {v(r)}, {v(tmp)}")]

def flag_store(ftype, vtmp):
    return [I(f"s_add_u32 {s(sT1)}, {s(sMyFlag)}, {ftype * 65536}"), I(f"v_mov_b32 {v(vtmp)}, {s(sNonce)}"),
            gstore(v(vtmp), vFL, sWs, s(sT1), op="dword")]
def poll_issue(vdst, vaddr):
    return gload(v(vdst), vaddr, sWs, "0", sc1=True, op="dword")
def poll_check(ld, vdst, vaddr, sleep=1):
    ls, lb, ll = newlab("slow"), newlab("back"), newlab("loop")
    slow.extend([Label(ls), I(f"s_mov_b32 {s(sSpin)}, {OPT['spin']}"), Label(ll)] + ([I(f"s_sleep {sleep}")] if sleep else []) + [
        gload(v(vdst), vaddr, sWs, "0", sc1=True, op="dword"), I("s_waitcnt vmcnt(0)"),
        I(f"v_cmp_ne_u32 {s(sMask, 2)}, {s(sNonce)}, {v(vdst)}"), I("s_nop 1"), I(f"s_cmp_eq_u64 {s(sMask, 2)}, 0"), I(f"s_cbranch_scc1 {lb}"),
        I(f"s_sub_u32 {s(sSpin)}, {s(sSpin)}, 1"), I(f"s_cmp_lg_u32 {s(sSpin)}, 0"), I(f"s_cbranch_scc1 {ll}"), I(f"s_branch {lb}")])
    return [Wait(ld.tok), I(f"v_cmp_ne_u32 {s(sMask, 2)}, {s(sNonce)}, {v(vdst)}"), I(f"s_cmp_lg_u64 {s(sMask, 2)}, 0"),
            I(f"s_cbranch_scc1 {ls}"), Label(lb)]

def prologue():
    c = []
    c += [I("s_cmp_ge_u32 s2, 256"), I("s_cbranch_scc1 L_end")]
    c += stamp_at(0)
    for r, off in ((sX, 0), (sWq, 8), (sWs, 80), (sWi, 32), (sWsp, 40), (sWo, 16), (sB, 48), (sWout, 56), (sOut, 64)):
        c.append(I(f"s_load_dwordx2 {s(r, 2)}, s[0:1], {off}"))
    c += [I(f"v_lshrrev_b32 {v(16)}, 6, v0"), I(f"v_and_b32 {v(17)}, 63, v0"), I(f"v_readfirstlane_b32 {s(sW)}, {v(16)}"),
          I("v_cmp_ne_u32 vcc, 0, v0"), I(f"v_bfrev_b32 {v(18)}, 1"), I(f"v_lshlrev_b32 {v(vL16)}, 4, {v(17)}"),
          I(f"v_cndmask_b32 {v(vFL)}, 0, {v(18)}, vcc")]
    for r, n in ((sX, 2097152), (sWq, 1572864), (sWi, 1835008), (sWsp, 8388608), (sWo, 524288), (sWout, 917504), (sB, 4096), (sOut, 2097152), (sWs, 0x10000000)):
        c += [I(f"s_mov_b32 {s(r + 2)}, {n}"), I(f"s_mov_b32 {s(r + 3)}, 0x20000")]
    c += [I(f"s_and_b32 {s(sP)}, s2, 1"), I(f"s_bfe_u32 {s(sRB)}, s2, {1 | (2 << 16)}"), I(f"s_lshl_b32 {s(sRB)}, {s(sRB)}, 2"),
          I(f"s_bfe_u32 {s(sT0)}, s2, {3 | (2 << 16)}"), I(f"s_add_u32 {s(sRB)}, {s(sRB)}, {s(sT0)}"),
          I(f"s_lshr_b32 {s(sC)}, s2, 5"), I(f"s_add_u32 {s(sC)}, {s(sC)}, 7"), I(f"s_and_b32 {s(sC)}, {s(sC)}, 7"), I(f"s_lshl_b32 {s(sCG)}, {s(sC)}, 1"), I(f"s_or_b32 {s(sCG)}, {s(sCG)}, {s(sP)}"),
          I(f"s_lshl_b32 {s(sHP)}, {s(sP)}, 3"), I(f"s_add_u32 {s(sHP)}, {s(sHP)}, {s(sC)}"),
          I(f"s_lshl_b32 {s(sTB)}, {s(sRB)}, 2"), I(f"s_add_u32 {s(sTB)}, {s(sTB)}, {s(sW)}")]
    l = 17
    c += [I(f"v_lshrrev_b32 {v(18)}, 4, {v(l)}"), I(f"v_and_b32 {v(19)}, 15, {v(l)}")]
    for i in range(4):
        c += [I(f"v_or_b32 {v(20 + i)}, {4 * i}, {v(18)}"), I(f"v_xor_b32 {v(20 + i)}, {v(20 + i)}, {v(19)}"),
              I(f"v_lshlrev_b32 {v(20 + i)}, 4, {v(20 + i)}"), I(f"v_lshl_add_u32 {v(20 + i)}, {v(18)}, 10, {v(20 + i)}")]
        if i: c.append(I(f"v_add_u32 {v(20 + i)}, {3072 * i}, {v(20 + i)}"))
    if OPT["rot"]:
        c += [I(f"s_add_u32 {s(sT0)}, {s(sT0)}, {s(sC)}"), I(f"s_and_b32 {s(sT0)}, {s(sT0)}, 3"), I(f"s_lshr_b32 {s(sT1)}, {s(sC)}, 2")]
    else:
        c += [I(f"s_mov_b32 {s(sT0)}, 0"), I(f"s_mov_b32 {s(sT1)}, 0")]
    c += [I(f"s_lshl_b32 {s(sXg)}, {s(sTB)}, 1"), I(f"s_add_u32 {s(sXg)}, {s(sXg)}, {s(sT1)}"), I(f"s_lshl_b32 {s(sXg)}, {s(sXg)}, 14"),
          I(f"s_lshl_b32 {s(sXl)}, {s(sW)}, 3"), I(f"s_add_u32 {s(sXl)}, {s(sXl)}, {s(sT1)}"), I(f"s_lshl_b32 {s(sXl)}, {s(sXl)}, 12")]
    for g in range(4):
        c += [I(f"s_add_u32 {s(sT1)}, {s(sT0)}, {g}"), I(f"s_and_b32 {s(sRotQ + g)}, {s(sT1)}, 3")]
    c += [I("s_waitcnt lgkmcnt(0)"), I(f"s_load_dword {s(sNonce)}, {s(sWs, 2)}, {WS_EPOCH}")]
    if OPT["touch"]:
        nt = " nt" if OPT["nt_t"] else ""
        c += [I(f"s_cmp_lt_u32 {s(sC)}, 7"), I("s_cbranch_scc1 L_notouch"),
              I(f"v_lshlrev_b32 {v(24)}, 12, {v(l)}"), I(f"s_lshl_b32 {s(sT1)}, {s(sRB)}, 1"), I(f"s_and_b32 {s(sT2)}, {s(sW)}, 1"), I(f"s_add_u32 {s(sT1)}, {s(sT1)}, {s(sT2)}"),
              I(f"s_lshl_b32 {s(sT1)}, {s(sT1)}, 18"), I(f"s_lshl_b32 {s(sT2)}, {s(sP)}, 11"), I(f"s_add_u32 {s(sT1)}, {s(sT1)}, {s(sT2)}"),
              I(f"v_add_u32 {v(24)}, {s(sT1)}, {v(24)}"),
              I(f"s_and_b32 {s(sT1)}, {s(sRB)}, 3"), I(f"s_lshl_b32 {s(sT1)}, {s(sT1)}, 9"), I(f"s_lshr_b32 {s(sT2)}, {s(sW)}, 1"), I(f"s_lshl_b32 {s(sT2)}, {s(sT2)}, 7"),
              I(f"s_add_u32 {s(sT1)}, {s(sT1)}, {s(sT2)}")]
        for j in range(8):
            c += [VM(f"buffer_load_dword {v(42)}, {v(24)}, {srd(sWsp)}, {s(sT1)} offen{nt}"),
                  I(f"s_add_u32 {s(sT1)}, {s(sT1)}, 256"), I(f"s_and_b32 {s(sT1)}, {s(sT1)}, 2047")]
        if OPT["touch_o"]:
            c += [I(f"s_lshl_b32 {s(sT1)}, {s(sRB)}, 1"), I(f"s_add_u32 {s(sT1)}, {s(sT1)}, {s(sP)}"), I(f"s_lshl_b32 {s(sT1)}, {s(sT1)}, 2"),
                  I(f"s_add_u32 {s(sT1)}, {s(sT1)}, {s(sW)}"), I(f"v_lshlrev_b32 {v(24)}, 7, {v(l)}"),
                  I(f"s_mul_i32 {s(sT2)}, {s(sT1)}, 7168"), I(f"s_lshl_b32 {s(sT1)}, {s(sT1)}, 12"),
                  VM(f"buffer_load_dword {v(42)}, {v(24)}, {srd(sWout)}, {s(sT2)} offen"), I(f"v_and_b32 {v(24)}, 0xfff, {v(24)}"),
                  VM(f"buffer_load_dword {v(42)}, {v(24)}, {srd(sWo)}, {s(sT1)} offen")]
        c += [Label("L_notouch")]
    return c, l

sXg, sXl, sXo = 61, 62, 65
def x_dma(g):
    it = []
    for hh in range(2):
        if hh == 0:
            it.append([I(f"s_lshl_b32 {s(sT1)}, {s(sRotQ + g)}, 8"), I(f"s_add_u32 {s(sXo)}, {s(sXg)}, {s(sT1)}"), I(f"s_add_u32 m0, {s(sXl)}, {g * 8192}")])
        else:
            it.append([I(f"s_xor_b32 {s(sXo)}, {s(sXo)}, 16384"), I(f"s_xor_b32 m0, m0, 4096")])
        it += [dma(20 + i, sX, s(sXo), 1024 * i) for i in range(4)]
    return it

def w_addr(l):
    c = []
    for base, rs in ((sOI, 3584), (sOQ, 3072), (sOO, 1024)):
        for i in range(1, 4): c.append(I(f"s_mov_b32 {s(base + i)}, {i * (8 * rs - 1024)}"))
    c += [I(f"s_lshl_b32 {s(sRingW)}, {s(sW)}, 12"), I(f"s_add_u32 {s(sRingW)}, {s(sRingW)}, {L_RING}")]
    kr, u, cc = 32, 33, 34
    c += [I(f"v_bfe_u32 {v(kr)}, {v(l)}, 2, 3"), I(f"s_lshl_b32 {s(sT1)}, {s(sW)}, 5"), I(f"v_add_u32 {v(kr)}, {s(sT1)}, {v(kr)}"),
          I(f"v_lshrrev_b32 {v(u)}, 5, {v(l)}"), I(f"v_and_b32 {v(cc)}, 3, {v(l)}"), I(f"v_lshlrev_b32 {v(cc)}, 4, {v(cc)}"),
          I(f"v_mul_u32_u24 {v(35)}, 3072, {v(kr)}"), I(f"v_add_u32 {v(35)}, {v(35)}, {v(cc)}"),
          I(f"s_lshl_b32 {s(sT1)}, {s(sHP)}, 6"), I(f"v_add_u32 {v(vStD)}, {s(sT1)}, {v(35)}"),
          I(f"v_lshl_add_u32 {v(vStB)}, {v(u)}, 10, {v(vStD)}"), I(f"v_add_u32 {v(vStB)}, 1024, {v(vStB)}"),
          I(f"v_mul_u32_u24 {v(35)}, 3584, {v(kr)}"), I(f"v_add_u32 {v(35)}, {v(35)}, {v(cc)}"),
          I(f"v_lshl_add_u32 {v(35)}, {v(u)}, 6, {v(35)}"), I(f"s_lshl_b32 {s(sT1)}, {s(sCG)}, 7"),
          I(f"v_add_u32 {v(vStC)}, {s(sT1)}, {v(35)}"), I(f"v_add_u32 {v(vStA)}, 1792, {v(vStC)}")]
    return c
def w_addr2():
    c = []
    for g in range(4):
        c += [I(f"s_mul_i32 {s(sRotI + g)}, {s(sRotQ + g)}, {128 * 3584}"), I(f"s_mul_i32 {s(sRotQ + g)}, {s(sRotQ + g)}, {128 * 3072}")]
    c += [I(f"v_cmp_lt_u32 vcc, 511, {v(vL16)}"), I(f"v_mov_b32 {v(32)}, {s(sRotQ + 1)}"), I(f"v_mov_b32 {v(33)}, {s(sRotQ + 3)}"),
          I(f"v_cndmask_b32 {v(32)}, {v(32)}, {v(33)}, vcc"), I(f"v_add_u32 {v(vStD + 1)}, {v(32)}, {v(vStD)}"),
          I(f"v_mov_b32 {v(32)}, {s(sRotQ)}"), I(f"v_mov_b32 {v(33)}, {s(sRotQ + 2)}"),
          I(f"v_cndmask_b32 {v(32)}, {v(32)}, {v(33)}, vcc"), I(f"v_add_u32 {v(vStD)}, {v(32)}, {v(vStD)}")]
    return c

def w_dma(kinds, st):
    k = kinds[st]; sg = st - kinds.index(k)
    r, so = (sWi, sOI) if k in "AC" else (sWq, sOQ)
    it = [I(f"s_add_u32 m0, {s(sRingW)}, {((st + 2) % 4) * 16384}")]
    if k == "D": va = vStD + sg
    else:
        va = vWd
        it.append(I(f"v_add_u32 {v(vWd)}, {s((sRotQ if k == 'B' else sRotI) + sg)}, {v(dict(A=vStA, B=vStB, C=vStC)[k])}"))
    for i in range(4): it.append(dma(va, r, s(so + i) if i else "0", 1024 * i))
    return it

def sp_dma(w):
    if OPT["nosp"]: return []
    it = [[I(f"s_add_u32 {s(sSpA)}, {s(sSpBase)}, {s(sSpRot)}"), I(f"s_add_u32 {s(sSpB)}, {s(sSpA)}, 63488"),
           I(f"s_add_u32 m0, {s(sStg)}, {(w % 3) * 4096}"), I(f"s_add_u32 {s(sSpRot)}, {s(sSpRot)}, 128"), I(f"s_and_b32 {s(sSpRot)}, {s(sSpRot)}, 2047")]]
    it += [dma(vSpA, sWsp, s(sSpA), 0), dma(vSpB, sWsp, s(sSpA), 1024), dma(vSpA, sWsp, s(sSpB), 2048), dma(vSpB, sWsp, s(sSpB), 3072)]
    return it
def sp_read(w):
    if OPT["nosp"]: return []
    return [dsr(a(16 * w + 4 * j, 4), vSpR + j, (w % 3) * 4096) for j in range(4)]

KFULL = list("BBBBAAAADDCCCC"); KLIGHT = list("BBBBDD")

def spread(main, filler):
    out = []; n = len(main); k = 0
    for i, e in enumerate(main):
        while k < len(filler) and k * n <= i * len(filler): out.append(filler[k]); k += 1
        out.append(e)
    return out + filler[k:]

def front():
    c, l = prologue()
    c += stamp_n("dma0")
    xg = [x_dma(g) for g in range(4)]
    c += xg[0]
    c += w_addr(l)
    t, h = 18, 19
    XR = 24
    c += [I(f"v_and_b32 {v(t)}, 31, {v(l)}"), I(f"v_lshrrev_b32 {v(h)}, 5, {v(l)}"), I(f"s_lshl_b32 {s(sT3)}, {s(sW)}, 15")]
    c += [I(f"v_and_b32 {v(36)}, 15, {v(l)}"), I(f"v_xor_b32 {v(36)}, {v(36)}, {v(h)}"), I(f"v_lshlrev_b32 {v(36)}, 4, {v(36)}"),
          I(f"v_lshl_add_u32 {v(36)}, {v(t)}, 8, {v(36)}"), I(f"v_add_u32 {v(XR)}, {s(sT3)}, {v(36)}")]
    for j in range(1, 8): c.append(I(f"v_xor_b32 {v(XR + j)}, {32 * j}, {v(XR)}"))
    c += [I(f"v_bfe_u32 {v(36)}, {v(l)}, 2, 2"), I(f"v_lshlrev_b32 {v(36)}, 6, {v(36)}"), I(f"v_lshl_add_u32 {v(36)}, {v(h)}, 10, {v(36)}"),
          I(f"v_bfe_u32 {v(37)}, {v(l)}, 4, 1"), I(f"v_lshl_add_u32 {v(36)}, {v(37)}, 5, {v(36)}"),
          I(f"v_and_b32 {v(37)}, 3, {v(l)}"), I(f"v_lshl_add_u32 {v(36)}, {v(37)}, 3, {v(36)}"), I(f"v_add_u32 {v(vTR)}, {L_RING}, {v(36)}")]
    c += [I(f"s_mul_i32 {s(sStg)}, {s(sW)}, 12288"), I(f"s_add_u32 {s(sStg)}, {s(sStg)}, {L_STG}"),
          I(f"s_lshl_b32 {s(sSpBase)}, {s(sTB)}, 17"), I(f"s_lshl_b32 {s(sT1)}, {s(sP)}, 11"), I(f"s_add_u32 {s(sSpBase)}, {s(sSpBase)}, {s(sT1)}")]
    if OPT["rot"]:
        c += [I(f"s_and_b32 {s(sT1)}, {s(sRB)}, 3"), I(f"s_lshl_b32 {s(sSpRot)}, {s(sT1)}, 9")]
    else: c += [I(f"s_mov_b32 {s(sSpRot)}, 0")]
    c += [I(f"v_lshrrev_b32 {v(36)}, 4, {v(l)}"), I(f"v_and_b32 {v(37)}, 7, {v(l)}"), I(f"v_lshrrev_b32 {v(38)}, 3, {v(l)}"),
          I(f"v_xor_b32 {v(36)}, {v(36)}, {v(37)}"), I(f"v_lshlrev_b32 {v(36)}, 4, {v(36)}"), I(f"v_lshl_add_u32 {v(vSpA)}, {v(38)}, 12, {v(36)}"),
          I(f"v_xor_b32 {v(vSpB)}, 64, {v(vSpA)}"), I(f"v_add_u32 {v(vSpB)}, 31744, {v(vSpB)}"),
          I(f"v_bfe_u32 {v(36)}, {v(l)}, 1, 3"), I(f"v_xor_b32 {v(36)}, {v(36)}, {v(h)}"), I(f"v_lshlrev_b32 {v(36)}, 4, {v(36)}"),
          I(f"v_lshl_add_u32 {v(36)}, {v(t)}, 7, {v(36)}"), I(f"v_add_u32 {v(vSpR)}, {s(sStg)}, {v(36)}")]
    for j in range(1, 4): c.append(I(f"v_xor_b32 {v(vSpR + j)}, {32 * j}, {v(vSpR)}"))
    c += [I(f"s_mov_b32 {s(sC10)}, 0x3f80"), I(f"s_mov_b32 {s(sC01)}, 0x3f800000"), I(f"s_mov_b32 {s(sOnes)}, 0x3f803f80"),
          I(f"s_lshl_b32 {s(sT1)}, {s(sRB)}, 4"), I(f"s_add_u32 {s(sT1)}, {s(sT1)}, {s(sCG)}"), I(f"s_lshl_b32 {s(sT1)}, {s(sT1)}, 8"),
          I(f"s_add_u32 {s(sMyFlag)}, {s(sT1)}, {WS_FLAGS}"),
          I("s_waitcnt lgkmcnt(0)"), I(f"s_add_u32 {s(sNonce)}, {s(sNonce)}, 1")]
    for i in range(4): c.append(I(f"v_mov_b32 {v(DA + i)}, 0"))
    c += xg[1]
    rd = [[dsr(v(X + 32 * g + 4 * j, 4), XR + j, g * 8192) for j in range(8)] for g in range(4)]
    def dots(g):
        o = []
        for j in range(8):
            o.append(Wait(rd[g][j].tok))
            for q in range(4):
                reg = X + 32 * g + 4 * j + q
                o += [I(f"v_dot2_f32_bf16 {v(DA + (q & 1))}, {v(reg)}, {s(sOnes)}, {v(DA + (q & 1))}"),
                      I(f"v_dot2_f32_bf16 {v(DA + 2 + (q & 1))}, {v(reg)}, {v(reg)}, {v(DA + 2 + (q & 1))}")]
        return o
    wd = {st: w_dma(KFULL, st) for st in range(4)}
    nxt = [xg[2], xg[3], w_addr2() + wd[0], wd[1]]
    for g in range(4):
        c += [Wait(*toks(xg[g]))] + rd[g] + stamp_n(f"x{g}")
        c += spread(dots(g), nxt[g])
    c += [BAR()] + stamp_n("xbar")
    c += stamp_at(2)
    return c, wd
DA = 36

def ln_finish(extra):
    c = []
    c += [I(f"v_add_f32 {v(DA + 0)}, {v(DA + 0)}, {v(DA + 1)}"), I(f"v_add_f32 {v(DA + 2)}, {v(DA + 2)}, {v(DA + 3)}")]
    c += cross_half("v_add_f32", DA, DA + 1) + cross_half("v_add_f32", DA + 2, DA + 3)
    c += [I(f"v_mul_f32 {v(DA + 0)}, {hx(fbits(1 / 512))}, {v(DA + 0)}"), I(f"v_mul_f32 {v(DA + 2)}, {hx(fbits(1 / 512))}, {v(DA + 2)}"),
          I(f"v_fma_f32 {v(DA + 2)}, -{v(DA + 0)}, {v(DA + 0)}, {v(DA + 2)}"), I(f"v_max_f32 {v(DA + 2)}, 0, {v(DA + 2)}")]
    c += rne_bf16(DA, DA) + rne_bf16(DA + 2, DA + 2)
    c += [I(f"v_add_f32 {v(DA + 2)}, {hx(fbits(1e-5))}, {v(DA + 2)}")] + rne_bf16(DA + 2, DA + 2)
    c += [I(f"v_sqrt_f32 {v(DA + 2)}, {v(DA + 2)}"), I(f"v_xor_b32 {v(DA + 0)}, 0x80000000, {v(DA + 0)}")] + rne_bf16(vD, DA + 2)
    c += [I(f"v_rcp_f32 {v(vR)}, {v(vD)}")]
    k0 = -2.0 * math.log2(math.e) * math.sqrt(2.0 / math.pi)
    c += [I(f"v_mul_f32 {v(vGB)}, {hx(fbits(k0))}, {v(vR)}"), I(f"v_mul_f32 {v(DA + 1)}, {v(vR)}, {v(vR)}"),
          I(f"v_mul_f32 {v(DA + 1)}, {hx(fbits(0.044715))}, {v(DA + 1)}"), I(f"v_mul_f32 {v(vGA)}, {v(DA + 1)}, {v(vGB)}")]
    c += stamp_n("lnpre")
    pre = c; c = []
    for b in range(0, 128, 4):
        for q in range(4):
            c += [I(f"v_dot2_f32_bf16 {v(16 + 2 * q)}, {v(X + b + q)}, {s(sC10)}, {v(DA + 0)}"),
                  I(f"v_dot2_f32_bf16 {v(17 + 2 * q)}, {v(X + b + q)}, {s(sC01)}, {v(DA + 0)}")]
        for q in range(4):
            c.append(I(f"v_cvt_pk_bf16_f32 {v(X + b + q)}, {v(16 + 2 * q)}, {v(17 + 2 * q)}"))
    return pre + spread(c, extra)

def gelu(base, n, stats):
    it = []
    for g in range(0, n, 4):
        R = [base + g + q for q in range(4)]; t = [T + q for q in range(4)]
        it += [I(f"v_mul_f32 {v(t[q])}, {v(R[q])}, {v(R[q])}") for q in range(4)]
        it += [I(f"v_fma_f32 {v(t[q])}, {v(t[q])}, {v(vGA)}, {v(vGB)}") for q in range(4)]
        it += [I(f"v_mul_f32 {v(t[q])}, {v(t[q])}, {v(R[q])}") for q in range(4)]
        it += [I(f"v_exp_f32 {v(t[q])}, {v(t[q])}") for q in range(4)]
        it += [I(f"v_fma_f32 {v(t[q])}, {v(t[q])}, {v(vD)}, {v(vD)}") for q in range(4)]
        it += [I(f"v_rcp_f32 {v(t[q])}, {v(t[q])}") for q in range(4)]
        it += [I(f"v_mul_f32 {v(R[q])}, {v(R[q])}, {v(t[q])}") for q in range(4)]
        if stats:
            for q in range(4):
                if g == 0 and q == 0:
                    it += [I(f"v_mov_b32 {v(vSum)}, {v(R[q])}"), I(f"v_mul_f32 {v(vSq)}, {v(R[q])}, {v(R[q])}")]
                else:
                    it += [I(f"v_add_f32 {v(vSum)}, {v(vSum)}, {v(R[q])}"), I(f"v_fma_f32 {v(vSq)}, {v(R[q])}, {v(R[q])}, {v(vSq)}")]
    return it

def stats_publish(zero=False):
    g = T + 4
    it = []
    if not zero:
        it += cross_half("v_add_f32", vSum, T) + cross_half("v_add_f32", vSq, T + 1)
        it += [I(f"v_mov_b32 {v(g)}, {v(vSum)}"), I(f"v_mov_b32 {v(g + 2)}, {v(vSq)}")]
    else:
        it += [I(f"v_mov_b32 {v(g)}, 0"), I(f"v_mov_b32 {v(g + 2)}, 0")]
    it += [I(f"v_mov_b32 {v(g + 1)}, {s(sNonce)}"), I(f"v_mov_b32 {v(g + 3)}, {s(sNonce)}"),
           I(f"v_lshlrev_b32 {v(g + 4)}, 22, {v(vL16)}"), I(f"v_and_b32 {v(g + 4)}, 0x80000000, {v(g + 4)}"), I(f"v_or_b32 {v(g + 4)}, {v(g + 4)}, {v(vL16)}"),
           [I(f"s_lshl_b32 {s(sT1)}, {s(sTB)}, 4"), I(f"s_add_u32 {s(sT1)}, {s(sT1)}, {s(sCG)}"), I(f"s_lshl_b32 {s(sT1)}, {s(sT1)}, 9"),
            I(f"s_add_u32 {s(sT1)}, {s(sT1)}, {WS_STATS}"), gstore(v(g, 4), g + 4, sWs, s(sT1))]]
    return it

def rarr_write():
    return [I(f"v_and_b32 {v(T)}, 0x1f0, {v(vL16)}"), I(f"v_lshrrev_b32 {v(T)}, 2, {v(T)}"),
            [I(f"s_lshl_b32 {s(sT1)}, {s(sW)}, 7"), I(f"v_add_u32 {v(T)}, {s(sT1)}, {v(T)}")], dsw(T, v(vR), op="ds_write_b32")]

def kv_epilogue():
    it = []; st = []
    RA = 24; va = 20; vg = 21
    it += [I(f"v_lshrrev_b32 {v(va)}, 9, {v(vL16)}"), I(f"v_lshlrev_b32 {v(va)}, 4, {v(va)}"),
           [I(f"s_lshl_b32 {s(sT1)}, {s(sW)}, 7"), I(f"v_add_u32 {v(va)}, {s(sT1)}, {v(va)}")]]
    rr = [dsr(v(RA + 4 * q, 4), va, 32 * q) for q in range(4)]
    it += rr
    it += [[I(f"s_lshl_b32 {s(sT1)}, {s(sW)}, 12"), I(f"s_add_u32 {s(sT1)}, {s(sT1)}, 32768"), I(f"v_add_u32 {v(vg)}, {s(sT1)}, {v(vL16)}")]]
    it += [I(f"v_mul_f32 {v(accB + e)}, {v(accB + e)}, {v(vR)}") for e in range(16)]
    it += [I(f"v_cvt_pk_bf16_f32 {v(accB + j)}, {v(accB + 2 * j)}, {v(accB + 2 * j + 1)}") for j in range(8)]
    it += [[I(f"s_lshl_b32 {s(sT2)}, {s(sCG)}, 6"), I(f"s_add_u32 {s(sT2)}, {s(sT2)}, {s(sTB)}"), I(f"s_lshl_b32 {s(sT2)}, {s(sT2)}, 12"),
            I(f"s_add_u32 {s(sKVo)}, {s(sT2)}, {WS_KV}")]]
    for i in range(2):
        g = gstore(v(accB + 4 * i, 4), vL16, sWs, s(sKVo), 1024 * i); st.append(g)
        it += [dsw(vg, v(accB + 4 * i, 4), 1024 * i)]
    it += [Wait(rr[3].tok)]
    V = accB + 16
    it += [I(f"v_mul_f32 {v(V + e)}, {v(V + e)}, {v(RA + e)}") for e in range(16)]
    it += [I(f"v_cvt_pk_bf16_f32 {v(V + j)}, {v(V + 2 * j)}, {v(V + 2 * j + 1)}") for j in range(8)]
    for i in range(2):
        g = gstore(v(V + 4 * i, 4), vL16, sWs, s(sKVo), 2048 + 1024 * i); st.append(g)
        it += [dsw(vg, v(V + 4 * i, 4), 2048 + 1024 * i)]
    return it, st

def q_epilogue(_):
    t = 40
    it = [I(f"v_mul_f32 {v(t)}, {hx(fbits(0.25 * math.log2(math.e)))}, {v(vR)}")]
    it += [I(f"v_mul_f32 {v(accD + e)}, {v(accD + e)}, {v(t)}") for e in range(16)]
    it += [I(f"v_cvt_pk_bf16_f32 {v(accD + j)}, {v(accD + 2 * j)}, {v(accD + 2 * j + 1)}") for j in range(8)]
    return it

def kv_fetch():
    va, vf = vWd, vR
    pre = [[I(f"s_max_u32 {s(sT1)}, {s(sRB)}, 1"), I(f"s_sub_u32 {s(sT1)}, {s(sT1)}, 1"), I(f"s_max_u32 {s(sT2)}, {s(sRB)}, 2"), I(f"s_sub_u32 {s(sT2)}, {s(sT2)}, 2"),
            I(f"s_sub_u32 {s(sT1)}, {s(sT1)}, {s(sT2)}"), I(f"s_lshl_b32 {s(sT1)}, {s(sT1)}, 8"),
            I(f"s_lshl_b32 {s(sT2)}, {s(sT2)}, 4"), I(f"s_add_u32 {s(sT2)}, {s(sT2)}, {s(sCG)}"), I(f"s_lshl_b32 {s(sT2)}, {s(sT2)}, 8"),
            I(f"s_add_u32 {s(sT2)}, {s(sT2)}, {WS_FLAGS + F_KV * 65536}"),
            I(f"v_and_b32 {v(va)}, 16, {v(vL16)}"), I(f"v_mul_u32_u24 {v(va)}, {s(sT1)}, {v(va)}"), I(f"v_add_u32 {v(va)}, {s(sT2)}, {v(va)}")]]
    ld = poll_issue(vf, va)
    chk = poll_check(ld, vf, va)
    dm = []
    for b in range(2):
        grp = [[I(f"s_lshl_b32 {s(sT1)}, {s(sW)}, 1"), I(f"s_add_u32 {s(sT1)}, {s(sT1)}, {b}"), I(f"s_lshl_b32 m0, {s(sT1)}, 12"),
                I(f"s_lshl_b32 {s(sT2)}, {s(sRB)}, 2"), I(f"s_add_u32 {s(sT1)}, {s(sT1)}, {s(sT2)}"), I(f"s_max_u32 {s(sT1)}, {s(sT1)}, 8"),
                I(f"s_sub_u32 {s(sT1)}, {s(sT1)}, 8"), I(f"s_lshl_b32 {s(sT2)}, {s(sCG)}, 6"), I(f"s_add_u32 {s(sT1)}, {s(sT1)}, {s(sT2)}"),
                I(f"s_lshl_b32 {s(sT1)}, {s(sT1)}, 12"), I(f"s_add_u32 {s(sKVs)}, {s(sT1)}, {WS_KV}")]]
        grp += [dma(vL16, sWs, s(sKVs), 1024 * i, sc1=True) for i in range(4)]
        dm += grp
    return pre + [ld], chk, dm

def stats_recv():
    va = vSum
    pre = [I(f"v_and_b32 {v(va)}, 0x1f0, {v(vL16)}"), I(f"v_and_b32 {v(vSq)}, 0x200, {v(vL16)}"), I(f"v_lshl_add_u32 {v(va)}, {v(vSq)}, 3, {v(va)}"),
           [I(f"s_lshl_b32 {s(sT1)}, {s(sTB)}, 13"), I(f"s_add_u32 {s(sT1)}, {s(sT1)}, {WS_STATS}"), I(f"v_add_u32 {v(va)}, {s(sT1)}, {v(va)}")]]
    def loads(): return [gload(v(T + 4 * k, 4), va, sWs, "0", 512 * k, sc1=True) for k in range(8)]
    def chain():
        o = [I(f"v_xor_b32 {v(vSq)}, {s(sNonce)}, {v(T + 1)}")]
        for k in range(1, 16): o.append(I(f"v_bitop3_b32 {v(vSq)}, {v(vSq)}, {v(T + 2 * k + 1)}, {s(sNonce)} bitop3:0xf6"))
        return o
    ld = loads()
    ls, lb, ll = newlab("slow"), newlab("back"), newlab("loop")
    slow.extend([Label(ls), I(f"s_mov_b32 {s(sSpin)}, {OPT['spin']}"), Label(ll), I("s_sleep 1")] + loads() + [I("s_waitcnt vmcnt(0)")] + chain() + [
        I(f"v_cmp_ne_u32 {s(sMask, 2)}, 0, {v(vSq)}"), I("s_nop 1"), I(f"s_cmp_eq_u64 {s(sMask, 2)}, 0"), I(f"s_cbranch_scc1 {lb}"),
        I(f"s_sub_u32 {s(sSpin)}, {s(sSpin)}, 1"), I(f"s_cmp_lg_u32 {s(sSpin)}, 0"), I(f"s_cbranch_scc1 {ll}"), I(f"s_branch {lb}")])
    post = [Wait(ld[7].tok)] + stamp_n('sld') + chain() + [[I(f"v_cmp_ne_u32 {s(sMask, 2)}, 0, {v(vSq)}"), I(f"s_cmp_lg_u64 {s(sMask, 2)}, 0"), I(f"s_cbranch_scc1 {ls}"), Label(lb)]]
    post += stamp_n('schk')
    for step in (4, 8, 16):
        for k in range(0, 32, 2 * step):
            post += [I(f"v_add_f32 {v(T + k)}, {v(T + k)}, {v(T + k + step)}"), I(f"v_add_f32 {v(T + k + 2)}, {v(T + k + 2)}, {v(T + k + step + 2)}")]
    S, Q = T, T + 2
    post += cross_half("v_add_f32", S, T + 1) + cross_half("v_add_f32", Q, T + 3)
    post += [I(f"v_mul_f32 {v(S)}, {hx(fbits(1 / 896))}, {v(S)}"), I(f"v_mul_f32 {v(Q)}, {hx(fbits(1 / 896))}, {v(Q)}"),
             I(f"v_fma_f32 {v(Q)}, -{v(S)}, {v(S)}, {v(Q)}"), I(f"v_max_f32 {v(Q)}, 0, {v(Q)}")]
    post += rne_bf16(S, S) + rne_bf16(Q, Q) + [I(f"v_add_f32 {v(Q)}, {hx(fbits(1e-5))}, {v(Q)}")] + rne_bf16(Q, Q)
    post += [I(f"v_sqrt_f32 {v(Q)}, {v(Q)}")] + rne_bf16(Q, Q) + [I(f"v_rcp_f32 {v(vSum)}, {v(Q)}"), I(f"v_mul_f32 {v(vSq)}, {v(S)}, {v(vSum)}"),
                                                                   I(f"v_xor_b32 {v(vSq)}, 0x80000000, {v(vSq)}")]
    return pre + ld, post

def z2_publish():
    it = []; st = []
    va = T + 4
    it += [I(f"v_lshrrev_b32 {v(T)}, 3, {v(vL16)}"), I(f"v_and_b32 {v(T)}, 64, {v(T)}"), I(f"v_add_u32 {v(T)}, {v(T)}, {v(vL16)}"),
           I(f"v_and_b32 {v(T + 1)}, 0x200, {v(vL16)}"),
           I(f"v_and_b32 {v(va)}, 0x1f0, {v(T)}"), I(f"v_or_b32 {v(va)}, {v(va)}, {v(T + 1)}"),
           I(f"v_add_u32 {v(T)}, 128, {v(T)}"), I(f"v_and_b32 {v(va + 1)}, 0x1f0, {v(T)}"), I(f"v_or_b32 {v(va + 1)}, {v(va + 1)}, {v(T + 1)}"),
           [I(f"s_lshl_b32 {s(sT2)}, {s(sCG)}, 6"), I(f"s_add_u32 {s(sT2)}, {s(sT2)}, {s(sTB)}"), I(f"s_lshl_b32 {s(sT2)}, {s(sT2)}, 12"),
            I(f"s_add_u32 {s(sZo)}, {s(sT2)}, {WS_Z}")]]
    for ft in range(2):
        b = accA + 16 * ft
        it += [I(f"v_fma_f32 {v(b + e)}, {v(b + e)}, {v(vSum)}, {v(vSq)}") for e in range(16)]
        it += [I(f"v_cvt_pk_bf16_f32 {v(b + j)}, {v(b + 2 * j)}, {v(b + 2 * j + 1)}") for j in range(8)]
        it += [I(f"v_permlane32_swap_b32 {v(b + x)}, {v(b + x + 2)}") for x in (0, 1, 4, 5)]
        for i in range(2):
            g = gstore(v(b + 4 * i, 4), va + i, sWs, s(sZo), ft * 2048 + i * 1024); st.append(g); it.append(g)
    return it, st

def p1_main(kinds, wd, full):
    nst = len(kinds); nstep = 8 * nst
    rd = {}
    def reads(n):
        st, ks = divmod(n, 8); f = AF + 8 * (n % 4)
        rd[n] = [dstr(a(f + 4 * u + 2 * e, 2), vTR, ((st + 2) % 4) * 16384 + ks * 2048 + u * 512 + e * 256) for u in range(2) for e in range(2)]
        return rd[n]
    pre_bar = {i: [] for i in range(nst + 1)}; post_bar = {i: [] for i in range(nst + 1)}
    def mm(n):
        st, ks = divmod(n, 8); k = kinds[st]; f = AF + 8 * (n % 4)
        st0 = kinds.index(k); ksg = (st - st0) * 8 + ks; first = ksg == 0
        W0, W1 = a(f, 4), a(f + 4, 4); x0 = v(X + 4 * ksg, 4)
        if k == "B": return mfma(accB, W0, x0, "0" if first else v(accB, 16)), mfma(accB + 16, x0, W1, "0" if first else v(accB + 16, 16))
        if k == "D": return mfma(accD, W0, x0, "0" if first else v(accD, 16)), mfma(accD, W1, v(X + 4 * (ksg + 16), 4), v(accD, 16))
        d = accA if k == "A" else accB
        return mfma(d, W0, x0, "0" if first else v(d, 16)), mfma(d + 16, W1, x0, "0" if first else v(d + 16, 16))
    spd = {}; spr = {}
    n1 = OPT["sp1"]
    s0 = OPT["sp0"]
    rd_st = {w: 13 - ((n1 - 1 - w) * (13 - s0 - 2)) // max(n1 - 1, 1) for w in range(n1)}
    head = []
    kvi, kvst = kv_epilogue()
    kpre, kchk, kdm = kv_fetch()
    fill = {i: [] for i in range(nst + 1)}
    for st in range(1, nst):
        if st + 3 < nst:
            wd[st + 3] = w_dma(kinds, st + 3); fill[st] += wd[st + 3]
        if full:
            if st in (s0, s0 + 1):
                for w in ([0, 1] if st == s0 else [2]):
                    spd[w] = sp_dma(w); fill[st] += spd[w]
            for w in [w for w in rd_st if rd_st[w] == st]:
                spr[w] = sp_read(w)
                fill[st] = [Wait(*toks(spd[w]))] + spr[w] + fill[st]
                if w + 3 < 16:
                    spd[w + 3] = sp_dma(w + 3); fill[st] += [Wait(*toks(spr[w]))] + spd[w + 3]
    kvflag_st = 7 if full else None
    if full:
        fill[7] = kvst + fill[7]
        pre_bar[10] += toks(kvst); post_bar[10] += [flag_store(F_KV, 42)]
        fill[12] = fill[12] + kpre
        fill[13] = fill[13] + [kchk] + stamp_n('kchk') + kdm
    main = [Wait(*toks(wd[0])), BAR()] + stamp_n("b0") + reads(0) + reads(1) + reads(2) + reads(3)
    for n in range(nstep):
        m0, m1 = mm(n)
        main += [Wait(*toks(rd[n])), m0]
        nx = n + 4
        if nx < nstep and nx % 8 == 0:
            st = nx // 8
            main += [m1, [Wait(*(toks(rd[n + 3]) + toks(wd[st]) + pre_bar[st])), BAR()] + stamp_n(f"b{st}") + post_bar[st]] + reads(nx)
        elif nx < nstep:
            r = reads(nx); main += r[:2] + [m1] + r[2:]
        else:
            main += [m1]
    for st in range(1, nst):
        lo = 2 * (8 * st - 4) + 2; hi = min(2 * (8 * (st + 1) - 4) + 1, 2 * nstep)
        main = weave(main, fill[st], lo, hi)
    tail = []
    if full:
        main = weave(main, rarr_write(), 4, 12)
        main = weave(main, kvi, 64 + 4, 100)
        main = weave(main, q_epilogue(20), 160 + 4, 160 + 24)
        main = weave(main, gelu(accA, 32, True) + stats_publish(), 128 + 4, OPT["g1"])
        zst = None
    else:
        main = weave(main, rarr_write() + stats_publish(zero=True), 4, 24)
        main = weave(main, kvi + kvst, 64 + 4, 96)
        zst = []
        tail += q_epilogue(20) + [Wait(*toks(kvst)), BAR(), flag_store(F_KV, 42)] + kpre + [kchk] + kdm
    return spd, main + tail, kdm, zst

KF, S0, S1, Mc, Ma, Cm, Cx, P0, P1, Vf, O = 128, 164, 180, 196, 212, 228, 48, 64, 72, 32, 16
vM, vKa, vVa, vVs, vTmp = 244, 246, 247, 248, 245
Q = accD

def att_setup(kdm):
    c = []
    c += [I(f"s_lshl_b32 {s(sT1)}, {s(sW)}, 12"), I(f"v_add_u32 {v(vKa)}, {s(sT1)}, {v(vL16)}"),
          I(f"s_mov_b32 {s(sVm)}, 0xffff"), I(f"s_mov_b32 {s(sVm + 1)}, 0xffff")]
    c += [I(f"v_bfe_u32 {v(249)}, {v(vL16)}, 4, 5"), I(f"v_lshrrev_b32 {v(250)}, 9, {v(vL16)}"), I(f"v_lshlrev_b32 {v(250)}, 2, {v(250)}"),
          I(f"v_sub_u32 {v(249)}, {v(249)}, {v(250)}"), I(f"v_mov_b32 {v(251)}, 0xff800000")]
    for r in range(16):
        key = (r & 3) + 8 * (r >> 2)
        c += [I(f"v_cmp_gt_i32 vcc, {key}, {v(249)}"), I(f"v_cndmask_b32 {v(Mc + r)}, 0, {v(251)}, vcc"),
              I(f"v_xor_b32 {v(Ma + r)}, {v(Mc + r)}, {v(251)}")]
    c += [I(f"s_sub_u32 {s(sJmin)}, 8, {s(sTB)}")]
    c += [Wait(*toks(kdm)), I("s_waitcnt lgkmcnt(0)"), BAR()] + stamp_at(6)
    return c

def k_reads(hd):
    return {j: dsr(v(KF + 4 * j, 4), vKa, j * 4096 + hd * 1024) for j in range(8, -1, -1)}
def maxops(S, first):
    o = []
    if first:
        o.append(I(f"v_max3_f32 {v(vM)}, {v(S)}, {v(S + 1)}, {v(S + 2)}"))
        for e in range(3, 15, 2): o.append(I(f"v_max3_f32 {v(vM)}, {v(vM)}, {v(S + e)}, {v(S + e + 1)}"))
        o.append(I(f"v_max_f32 {v(vM)}, {v(vM)}, {v(S + 15)}"))
    else:
        for e in range(0, 16, 2): o.append(I(f"v_max3_f32 {v(vM)}, {v(vM)}, {v(S + e)}, {v(S + e + 1)}"))
    return o
def c_setup():
    o = cross_half("v_max_f32", vM, vTmp)
    o += [I(f"v_sub_f32 {v(Cx + r)}, {v(Mc + r)}, {v(vM)}") for r in range(16)]
    o += [I(f"v_sub_f32 {v(Cm + r)}, 0, {v(vM)}") for r in range(16)]
    return o
def att_final(hd):
    o = [I(f"v_rcp_f32 {v(vTmp)}, {v(O + 8)}")]
    o += [I(f"v_mul_f32 {v(O + e)}, {v(O + e)}, {v(vTmp)}") for e in range(8)]
    o += [I(f"v_cvt_pk_bf16_f32 {v(O + j)}, {v(O + 2 * j)}, {v(O + 2 * j + 1)}") for j in range(4)]
    g = gstore(v(O, 4), vL16, sWs, s(sT1))
    o += [[I(f"s_lshl_b32 {s(sT1)}, {s(sTB)}, 4"), I(f"s_add_u32 {s(sT1)}, {s(sT1)}, {s(sHP)}"), I(f"s_lshl_b32 {s(sT1)}, {s(sT1)}, 11"),
           I(f"s_add_u32 {s(sT1)}, {s(sT1)}, {WS_O + hd * 1024}"), g]]
    return o, g
def v_reads(j, hd):
    f = Vf + 8 * (j & 1); o = j * 4096 + 2048 + hd * 256
    return [I(f"s_mov_b64 exec, {s(sVm, 2)}"), dsr(v(f, 4), vKa, o), dsr(v(f + 4, 4), vKa, o + 1024), I("s_mov_b64 exec, -1")]

def attention(edge, hooks, otok):
    c = []
    fin_prev = []
    for hd in range(2):
        q = v(Q + 4 * hd, 4)
        kr = k_reads(hd)
        c += list(kr.values()) + hooks.get(f"top{hd}", [])
        SB = [S0, S1, Cm]
        def ms(j, S, C): return mfma(S, v(KF + 4 * j, 4), q, C)
        if not edge:
            js = list(range(8, -1, -1))
            cop = lambda j: v(Mc, 16) if j == 8 else (v(Ma, 16) if j == 0 else "0")
            for k in range(3): c += [Wait(kr[js[k]].tok), ms(js[k], SB[k], cop(js[k]))]
            c += fin_prev
            for k in range(9):
                c += maxops(SB[k % 3], k == 0)
                if k + 3 < 9: c += [Wait(kr[js[k + 3]].tok), ms(js[k + 3], SB[k % 3], cop(js[k + 3]))]
            vr = {8: v_reads(8, hd)}
            c += stamp_n(f"a{hd}p1") + hooks.get(f"pre{hd}", []) + ([I(f"v_mov_b32 {v(Vf + i)}, {s(sOnes)}") for i in range(16)] if hd == 0 else []) + vr[8] + c_setup() + hooks.get(f"mid{hd}", []) + stamp_n(f"mid{hd}")
            SS = [S0, S1]; PP = [P0, P1]
            c2 = lambda j: v(Cx, 16) if j in (8, 0) else v(Cm, 16)
            c += [ms(8, S0, c2(8)), ms(7, S1, c2(7))]
            prev = None
            for k, j in enumerate(js):
                S = SS[k & 1]; P = PP[k & 1]
                ex = [I(f"v_exp_f32 {v(S + e)}, {v(S + e)}") for e in range(16)]
                cv = [I(f"v_cvt_pk_bf16_f32 {v(P + e)}, {v(S + 2 * e)}, {v(S + 2 * e + 1)}") for e in range(8)]
                blk = []
                if prev is None:
                    vr[j - 1] = v_reads(j - 1, hd)
                    blk += vr[j - 1] + [I(f"v_sub_f32 {v(Cx + r)}, {v(Ma + r)}, {v(vM)}") for r in range(16)] + ex
                else:
                    pj, pS, pP = prev
                    f = Vf + 8 * (pj & 1)
                    blk += ex[:2]
                    if pj - 2 >= 0: blk.append(ms(pj - 2, pS, c2(pj - 2)))
                    blk += ex[2:7] + [Wait(vr[pj][2].tok), mfma(O, v(f, 4), v(pP, 4), "0" if pj == 8 else v(O, 16))]
                    blk += ex[7:12] + [mfma(O, v(f + 4, 4), v(pP + 4, 4), v(O, 16))]
                    if j - 1 >= 0:
                        vr[j - 1] = v_reads(j - 1, hd); blk += vr[j - 1]
                    blk += ex[12:]
                blk += cv + hooks.get(f"blk{hd}_{k}", [])
                c += blk
                prev = (j, S, P)
            pj, pS, pP = prev; f = Vf + 8 * (pj & 1)
            c += [Wait(vr[pj][2].tok), mfma(O, v(f, 4), v(pP, 4), v(O, 16)), mfma(O, v(f + 4, 4), v(pP + 4, 4), v(O, 16))]
            c += stamp_n(f"a{hd}p2")
            fin_prev, g = att_final(hd); g.tok = otok[hd]
        else:
            c += fin_prev + [I("s_waitcnt lgkmcnt(0)")]
            l1 = newlab("e1")
            for j in range(8, 0, -1):
                c += [ms(j, S0, v(Mc, 16) if j == 8 else "0")] + maxops(S0, j == 8)
                if j > 1: c += [I(f"s_cmp_eq_u32 {s(sJmin)}, {j}"), I(f"s_cbranch_scc1 {l1}")]
            c += [Label(l1), I("s_nop 7")] + hooks.get(f"pre{hd}", []) + ([I(f"v_mov_b32 {v(Vf + i)}, {s(sOnes)}") for i in range(16)] if hd == 0 else []) + c_setup() + hooks.get(f"mid{hd}", [])
            l2 = newlab("e2")
            for j in range(8, 0, -1):
                vr = v_reads(j, hd); f = Vf + 8 * (j & 1)
                c += vr + [ms(j, S0, v(Cx, 16) if j == 8 else v(Cm, 16))]
                c += [I(f"v_exp_f32 {v(S0 + e)}, {v(S0 + e)}") for e in range(16)]
                c += [I(f"v_cvt_pk_bf16_f32 {v(P0 + e)}, {v(S0 + 2 * e)}, {v(S0 + 2 * e + 1)}") for e in range(8)]
                c += [I("s_waitcnt lgkmcnt(0)"), mfma(O, v(f, 4), v(P0, 4), "0" if j == 8 else v(O, 16)), mfma(O, v(f + 4, 4), v(P0 + 4, 4), v(O, 16))]
                if j > 1: c += [I(f"s_cmp_eq_u32 {s(sJmin)}, {j}"), I(f"s_cbranch_scc1 {l2}")]
            c += [Label(l2), I("s_nop 11")]
            for k in range(9): c += hooks.get(f"blk{hd}_{k}", [])
            fin_prev, g = att_final(hd); g.tok = otok[hd]
    c += fin_prev
    return c

ZF, acc0, acc1, Cb, vZr, vBv = 128, 160, 192, 224, 240, 244
vTRp, vTRy, vWo, vWout, vRingV, vPoll, vPollA = 245, 246, 247, 248, 249, 250, 251
acc3 = 48; RES = 20; vOut = 28

def z_poll_addr(va):
    return [I(f"v_bfe_u32 {v(va)}, {v(vL16)}, 7, 1"), I(f"v_xor_b32 {v(va)}, {s(sCG)}, {v(va)}"), I(f"v_and_b32 {v(va + 1)}, 0x70, {v(vL16)}"),
            I(f"v_add_u32 {v(va)}, {v(va)}, {v(va + 1)}"), I(f"v_lshlrev_b32 {v(va)}, 8, {v(va)}"),
            [I(f"s_lshl_b32 {s(sT1)}, {s(sP)}, 15"), I(f"s_add_u32 {s(sT1)}, {s(sT1)}, {WS_FLAGS + F_Z * 65536}"), I(f"v_add_u32 {v(va)}, {s(sT1)}, {v(va)}")]]
def row_poll_addr(va, ftype, nmax):
    return [I(f"v_bfe_u32 {v(va)}, {v(vL16)}, 4, 4"), I(f"v_min_u32 {v(va)}, {nmax}, {v(va)}"), I(f"v_lshlrev_b32 {v(va)}, 8, {v(va)}"),
            [I(f"s_lshl_b32 {s(sT1)}, {s(sRB)}, 12"), I(f"s_add_u32 {s(sT1)}, {s(sT1)}, {WS_FLAGS + ftype * 65536}"), I(f"v_add_u32 {v(va)}, {s(sT1)}, {v(va)}")]]

def ring_setup_early():
    it = [I(f"s_lshl_b32 {s(sRingR)}, {s(sW)}, 12"), I(f"s_xor_b32 {s(sT1)}, {s(sCG)}, 1"), I(f"s_lshl_b32 {s(sT1)}, {s(sT1)}, 18"),
          I(f"s_lshl_b32 {s(sT2)}, {s(sP)}, 17"), I(f"s_add_u32 {s(sT1)}, {s(sT1)}, {s(sT2)}"), I(f"s_add_u32 {s(sT1)}, {s(sT1)}, {s(sRingR)}"),
          I(f"s_add_u32 {s(sZbase)}, {s(sT1)}, {WS_Z}")]
    if OPT["rot"]:
        it += [I(f"s_and_b32 {s(sT1)}, {s(sRB)}, 3"), I(f"s_lshl_b32 {s(sZrot)}, {s(sT1)}, 15")]
    else: it += [I(f"s_mov_b32 {s(sZrot)}, 0")]
    return [it]

NQ = 27
def slot(q): return ((q + 6) % 10) * 16384
RT = {q: [Tok("vm", f"ring{q}_{i}") for i in range(4)] for q in range(NQ)}
def ring_dma(q):
    it = [I(f"s_add_u32 m0, {s(sRingR)}, {slot(q)}")]
    if q < 16:
        pre = []
        if q == 8:
            pre = [I(f"s_lshl_b32 {s(sT1)}, {s(sP)}, 19"), I(f"s_add_u32 {s(sZbase)}, {s(sZbase)}, {s(sT1)}"), I(f"s_sub_u32 {s(sZbase)}, {s(sZbase)}, 262144")]
        it.append(pre + [I(f"s_add_u32 {s(sZoff)}, {s(sZbase)}, {s(sZrot)}"), I(f"s_add_u32 {s(sZrot)}, {s(sZrot)}, 16384"), I(f"s_and_b32 {s(sZrot)}, {s(sZrot)}, 0x1ffff")])
        it += [dma(vL16, sWs, s(sZoff), 1024 * i, sc1=True, tok=RT[q][i]) for i in range(4)]
    else:
        va, r = (vWo, sWo) if q < 20 else (vWout, sWout)
        if q < 20:
            it.append([I(f"v_add_u32 {v(vTRy)}, {s(sR4)}, {v(va)}"), I(f"s_add_u32 {s(sR4)}, {s(sR4)}, 65536"), I(f"s_and_b32 {s(sR4)}, {s(sR4)}, 0x3ffff")])
        else:
            it.append([I(f"v_add_u32 {v(vTRy)}, {s(sR3)}, {v(va)}"), I(f"s_add_u32 {s(sR3)}, {s(sR3)}, 65536"), I(f"s_cmp_eq_u32 {s(sR3)}, {7 * 65536}"),
                       I(f"s_cselect_b32 {s(sR3)}, 0, {s(sR3)}")])
        it += [dma(vTRy, r, s(sOO + i) if i else "0", 1024 * i, tok=RT[q][i]) for i in range(4)]
    return it

def p3_setup():
    t0, t1, t2 = T, T + 1, T + 2
    it = [[I(f"s_lshl_b32 {s(sN0)}, {s(sC)}, 7"), I(f"s_lshr_b32 {s(sKH)}, {s(sW)}, 1"),
           I(f"s_and_b32 {s(sT1)}, {s(sW)}, 1"), I(f"s_lshl_b32 {s(sT2)}, {s(sP)}, 1"), I(f"s_add_u32 {s(sT1)}, {s(sT1)}, {s(sT2)}"),
           I(f"s_lshl_b32 {s(sT2)}, {s(sRB)}, 2"), I(f"s_add_u32 {s(sTok3)}, {s(sT1)}, {s(sT2)}")],
          ([I(f"s_add_u32 {s(sT1)}, {s(sRB)}, {s(sC)}"), I(f"s_and_b32 {s(sT1)}, {s(sT1)}, 3"), I(f"s_lshl_b32 {s(sR4)}, {s(sT1)}, 16"), I(f"s_lshl_b32 {s(sR4o)}, {s(sT1)}, 12"),
            I(f"s_and_b32 {s(sT1)}, {s(sRB)}, 3"), I(f"s_lshl_b32 {s(sT1)}, {s(sT1)}, 1"), I(f"s_add_u32 {s(sT1)}, {s(sT1)}, {s(sC)}"),
            I(f"s_sub_u32 {s(sT2)}, {s(sT1)}, 7"), I(f"s_cmp_ge_u32 {s(sT1)}, 7"), I(f"s_cselect_b32 {s(sT1)}, {s(sT2)}, {s(sT1)}"),
            I(f"s_lshl_b32 {s(sR3)}, {s(sT1)}, 16"), I(f"s_lshl_b32 {s(sR3y)}, {s(sT1)}, 12")] if OPT["rot"] else
           [I(f"s_mov_b32 {s(r)}, 0") for r in (sR4, sR4o, sR3, sR3y)]),
          I(f"v_bfe_u32 {v(t0)}, {v(vL16)}, 6, 3"), I(f"v_lshlrev_b32 {v(t0)}, 10, {v(t0)}"), I(f"v_and_b32 {v(t1)}, 48, {v(vL16)}"),
          I(f"v_or_b32 {v(t0)}, {v(t0)}, {v(t1)}"), I(f"v_lshrrev_b32 {v(t1)}, 9, {v(vL16)}"), I(f"v_lshl_add_u32 {v(t0)}, {v(t1)}, 6, {v(t0)}"),
          [I(f"s_and_b32 {s(sT1)}, {s(sW)}, 1"), I(f"s_lshl_b32 {s(sT1)}, {s(sT1)}, 15"), I(f"s_add_u32 {s(sT1)}, {s(sT1)}, {s(sN0)}"),
           I(f"v_add_u32 {v(t0)}, {s(sT1)}, {v(t0)}")],
          [I(f"s_mul_i32 {s(sT1)}, {s(sKH)}, {448 * 1024}"), I(f"v_add_u32 {v(vWout)}, {s(sT1)}, {v(t0)}")],
          [I(f"s_lshl_b32 {s(sT1)}, {s(sKH)}, 18"), I(f"v_add_u32 {v(vWo)}, {s(sT1)}, {v(t0)}")],
          I(f"v_bfe_u32 {v(t0)}, {v(vL16)}, 6, 2"), I(f"v_lshl_add_u32 {v(t0)}, {v(t1)}, 2, {v(t0)}"), I(f"v_lshlrev_b32 {v(t0)}, 6, {v(t0)}"),
          I(f"v_bfe_u32 {v(t2)}, {v(vL16)}, 8, 1"), I(f"v_lshl_add_u32 {v(t0)}, {v(t2)}, 5, {v(t0)}"),
          I(f"v_bfe_u32 {v(t2)}, {v(vL16)}, 4, 2"), I(f"v_lshl_add_u32 {v(t0)}, {v(t2)}, 3, {v(t0)}"),
          [I(f"s_lshl_b32 {s(sT1)}, {s(sKH)}, 13"), I(f"v_add_u32 {v(vTRp)}, {s(sT1)}, {v(t0)}")]]
    return it

OT = [Tok("vm", f"o{i}") for i in range(16)]
def o_loads():
    it = [[I(f"s_lshl_b32 {s(sT2)}, {s(sTok3)}, 15"), I(f"s_lshl_b32 {s(sT1)}, {s(sKH)}, 14"), I(f"s_add_u32 {s(sT2)}, {s(sT2)}, {s(sT1)}"),
           I(f"s_add_u32 {s(84)}, {s(sT2)}, {WS_O}")]]
    for i in range(16):
        if i % 4 == 0: it.append([I(f"s_add_u32 {s(sT3)}, {s(84)}, {s(sR4o)}"), I(f"s_add_u32 {s(sR4o)}, {s(sR4o)}, 4096"), I(f"s_and_b32 {s(sR4o)}, {s(sR4o)}, 0x3fff")])
        it.append(gload(a(4 * i, 4), vL16, sWs, s(sT3), 1024 * (i % 4), sc1=True, tok=OT[i]))
    return it
RSD = [Tok("vm", "res0"), Tok("vm", "res1")]
def res_loads():
    return [I(f"v_lshrrev_b32 {v(vOut)}, 7, {v(vL16)}"), I(f"v_lshlrev_b32 {v(vOut)}, 10, {v(vOut)}"), I(f"v_and_b32 {v(vOut + 1)}, 0x70, {v(vL16)}"),
            I(f"v_or_b32 {v(vOut)}, {v(vOut)}, {v(vOut + 1)}"),
            [I(f"s_lshl_b32 {s(sT1)}, {s(sRB)}, 17"), I(f"s_lshl_b32 {s(sT2)}, {s(sP)}, 16"), I(f"s_add_u32 {s(sT1)}, {s(sT1)}, {s(sT2)}"),
             I(f"s_lshl_b32 {s(sT2)}, {s(sW)}, 13"), I(f"s_add_u32 {s(sT1)}, {s(sT1)}, {s(sT2)}"), I(f"s_add_u32 {s(sT1)}, {s(sT1)}, {s(sN0)}"),
             I(f"v_add_u32 {v(vOut)}, {s(sT1)}, {v(vOut)}")],
            I(f"v_add_u32 {v(vOut + 1)}, 32768, {v(vOut)}"),
            gload(v(RES, 4), vOut, sX, "0", tok=RSD[0]), gload(v(RES + 4, 4), vOut + 1, sX, "0", tok=RSD[1])]

def p2_setup():
    t0, t1, t2, t3 = T, T + 1, T + 2, T + 3
    it = [I(f"v_bfe_u32 {v(t0)}, {v(vL16)}, 8, 1"), I(f"v_bfe_u32 {v(t1)}, {v(vL16)}, 5, 1"),
          I(f"v_lshlrev_b32 {v(t2)}, 10, {v(t0)}"), I(f"v_lshl_add_u32 {v(t2)}, {v(t1)}, 9, {v(t2)}"),
          I(f"v_bfe_u32 {v(t3)}, {v(vL16)}, 4, 1"), I(f"v_lshl_add_u32 {v(t2)}, {v(t3)}, 3, {v(t2)}"), I(f"v_add_u32 {v(t2)}, {slot(0) & ~0xffff}, {v(t2)}"),
          I(f"v_lshlrev_b32 {v(t0)}, 3, {v(t0)}"), I(f"v_lshl_add_u32 {v(t0)}, {v(t1)}, 2, {v(t0)}"),
          I(f"v_lshrrev_b32 {v(t1)}, 9, {v(vL16)}"), I(f"v_lshl_add_u32 {v(t0)}, {v(t1)}, 3, {v(t0)}"),
          I(f"v_bfe_u32 {v(t1)}, {v(vL16)}, 6, 2"), I(f"v_add_u32 {v(t0)}, {v(t0)}, {v(t1)}")]
    for u in range(2):
        for e in range(2):
            d = vZr + 2 * u + e
            it += [I(f"v_add_u32 {v(d)}, {16 * u + 4 * e}, {v(t0)}"), I(f"v_and_b32 {v(d)}, 31, {v(d)}"), I(f"v_lshl_add_u32 {v(d)}, {v(d)}, 4, {v(t2)}")]
    bl = gload(v(vBv), t0, sB, s(sT1), op="ushort")
    it += [I(f"v_bfe_u32 {v(t0)}, {v(vL16)}, 4, 5"), I(f"v_lshlrev_b32 {v(t0)}, 1, {v(t0)}"), [I(f"s_lshl_b32 {s(sT1)}, {s(sTB)}, 6"), bl]]
    return it, bl

def win(q): return slot(q) & ~0xffff
def rewin(regs_, q):
    d = win(q) - win(q - 1)
    return [I(f"v_add_u32 {v(r)}, {hx(d)}, {v(r)}") for r in regs_] if d else []

def phase2(otok):
    rd = {}
    def reads(n):
        q, r = divmod(n, 8); tbl, u = r >> 1, r & 1; f = ZF + 8 * (n % 4)
        rd[n] = [dstr(v(f + 4 * ft + 2 * e, 2), vZr + 2 * u + e, slot(q) - win(q) + tbl * 4096 + ft * 2048) for ft in range(2) for e in range(2)]
        adj = rewin(range(vZr, vZr + 4), q) if r == 0 and q else []
        return adj + rd[n][:2], rd[n][2:]
    setup, bl = p2_setup()
    pre = {q: [] for q in range(17)}; post = {q: [] for q in range(17)}; fill = {q: [] for q in range(17)}
    sched = {0: (4, 5, 6), 2: (7, 8, 9), 4: (10, 11, 12), 6: (13, 14, 15), 8: (16, 17), 10: (18, 19), 12: (20, 21), 14: (22, 23), 16: (24, 25)}
    pre[4] += otok; post[4] += [flag_store(F_O, 30)]
    pit = []
    for j in range(16):
        pit += [I(f"v_cvt_pk_bf16_f32 {v(acc0 + 2 * j)}, {v(acc0 + 2 * j)}, {v(acc0 + 2 * j + 1)}"), I(f"v_mov_b32 {v(acc0 + 2 * j + 1)}, {s(sNonce)}")]
        if j == 0:
            pit += [[I(f"s_lshl_b32 {s(sT2)}, {s(sRB)}, 4"), I(f"s_add_u32 {s(sT2)}, {s(sT2)}, {s(sCG)}"), I(f"s_lshl_b32 {s(sT2)}, {s(sT2)}, 2"),
                     I(f"s_add_u32 {s(sT2)}, {s(sT2)}, {s(sW)}"), I(f"s_lshl_b32 {s(sT2)}, {s(sT2)}, 13"), I(f"s_add_u32 {s(sPa)}, {s(sT2)}, {WS_PART}"),
                     I(f"s_add_u32 {s(sPb)}, {s(sPa)}, 4096")]]
        if j & 1:
            k = j >> 1
            pit.append(gstore(v(acc0 + 4 * k, 4), vL16, sWs, s(sPa if k < 4 else sPb), 1024 * (k & 3)))
    pit += [I(f"s_xor_b32 {s(sPa)}, {s(sPa)}, 32768"), I(f"s_xor_b32 {s(sPb)}, {s(sPb)}, 32768")]
    def ploads(): return [gload(v(acc0 + 4 * k, 4), vL16, sWs, s(sPa if k < 4 else sPb), 1024 * (k & 3), sc1=True) for k in range(8)]
    def chain():
        o = [I(f"v_xor_b32 {v(vPoll)}, {s(sNonce)}, {v(acc0 + 1)}")]
        for k in range(1, 16): o.append(I(f"v_bitop3_b32 {v(vPoll)}, {v(vPoll)}, {v(acc0 + 2 * k + 1)}, {s(sNonce)} bitop3:0xf6"))
        return o
    pld = ploads()
    ls, lb, ll = newlab("slow"), newlab("back"), newlab("loop")
    slow.extend([Label(ls), I(f"s_mov_b32 {s(sSpin)}, {OPT['spin']}"), Label(ll), I("s_sleep 1")] + ploads() + [I("s_waitcnt vmcnt(0)")] + chain() + [
        I(f"v_cmp_ne_u32 {s(sMask, 2)}, 0, {v(vPoll)}"), I("s_nop 1"), I(f"s_cmp_eq_u64 {s(sMask, 2)}, 0"), I(f"s_cbranch_scc1 {lb}"),
        I(f"s_sub_u32 {s(sSpin)}, {s(sSpin)}, 1"), I(f"s_cmp_lg_u32 {s(sSpin)}, 0"), I(f"s_cbranch_scc1 {ll}"), I(f"s_branch {lb}")])
    pchk = [Wait(pld[7].tok)] + chain() + [[I(f"v_cmp_ne_u32 {s(sMask, 2)}, 0, {v(vPoll)}"), I(f"s_cmp_lg_u64 {s(sMask, 2)}, 0"), I(f"s_cbranch_scc1 {ls}"), Label(lb)]]
    pchk += [[I(f"s_or_b32 {s(sT1)}, {s(sRB)}, {s(sCG)}"), I(f"s_cmp_eq_u32 {s(sT1)}, 0"), I(f"s_cselect_b32 {s(sT1)}, 0, 0x80000000"),
              I(f"v_or_b32 {v(30)}, {s(sT1)}, {v(vFL)}"), I(f"v_mov_b32 {v(31)}, {s(sNonce)}"), gstore(v(31), 30, sWs, "0", WS_EPOCH, op="dword")]]
    for j in range(16):
        g = acc0 + 2 * j
        pchk += [I(f"v_and_b32 {v(g + 1)}, 0xffff0000, {v(g)}"), I(f"v_lshlrev_b32 {v(g)}, 16, {v(g)}"),
                 I(f"v_mul_f32 {v(g + 1)}, {v(g + 1)}, {v(accB + 2 * j + 1)}"), I(f"v_mul_f32 {v(g)}, {v(g)}, {v(accB + 2 * j)}")]
    ol = poll_issue(vPoll, vPollA)
    for q in sched:
        for x in sched[q]: fill[q] += ring_dma(x)
    fill[8] += row_poll_addr(vPollA, F_O, 15) + [ol]
    fill[10] = [poll_check(ol, vPoll, vPollA)] + o_loads() + fill[10]
    fill[12] = res_loads() + fill[12]
    r0, r1, r2, r3 = reads(0), reads(1), reads(2), reads(3)
    main = setup + p3_setup() + [Wait(*(RT[0] + RT[1])), I("s_waitcnt lgkmcnt(0)"), BAR()] + stamp_n("q0") + list(r0 + r1 + r2 + r3)
    for n in range(128):
        ps = n // 64; f = ZF + 8 * (n % 4); d = acc1 if ps else acc0; first = n % 64 == 0
        B = a(4 * (n % 64), 4)
        c0 = ("0" if ps == 0 else v(Cb, 16)) if first else v(d, 16)
        c1 = ("0" if ps == 0 else v(Cb, 16)) if first else v(d + 16, 16)
        m0, m1 = mfma(d, v(f, 4), B, c0), mfma(d + 16, v(f + 4, 4), B, c1)
        main += [Wait(*toks(rd[n])), m0]
        nx = n + 4
        if nx % 16 == 0 and nx <= 128:
            q = nx // 8
            main += [m1, [Wait(*(toks(rd[n + 3]) + RT[q] + RT[q + 1] + pre[q])), BAR()] + stamp_n(f"q{q}") + post[q]]
            if nx < 128:
                ra, rb_ = reads(nx); main += ra + rb_
        elif nx < 128:
            ra, rb_ = reads(nx); main += ra + [m1] + rb_
        else: main += [m1]
    main = flat1(main)
    for q in range(0, 17, 2):
        lo = max(2 * (8 * q - 4) + 2, 0); hi = min(2 * (8 * (q + 2) - 4) + 1, 256)
        main = weave(main, fill[q], lo, hi)
    cb = [Wait(bl.tok), I(f"v_lshlrev_b32 {v(vBv)}, 16, {v(vBv)}")] + [I(f"v_mov_b32 {v(Cb + r)}, {v(vBv)}") for r in range(16)]
    main = weave(main, cb, 60, 120)
    main = weave(main, gelu(accB, 32, False), 2, OPT['gz'])
    main = weave(main, pit, 130, 146)
    main = weave(main, pld, OPT["pl0"], OPT["pl0"] + 8)
    main = weave(main, pchk, OPT["pl1"], 256)
    ep = []
    yst = []
    ep += [[I(f"s_mul_i32 {s(sT2)}, {s(sTB)}, 56"), I(f"s_lshl_b32 {s(sT1)}, {s(sCG)}, 2"), I(f"s_add_u32 {s(sT2)}, {s(sT2)}, {s(sT1)}"),
            I(f"s_lshl_b32 {s(sT2)}, {s(sT2)}, 10"), I(f"s_add_u32 {s(sT2)}, {s(sT2)}, {WS_Y}")]]
    for ft in range(2):
        b = acc1 + 16 * ft
        for i in range(2):
            ep += [I(f"v_fma_f32 {v(b + e)}, {v(b + e)}, {v(accB + 16 * ft + e)}, {v(acc0 + 16 * ft + e)}") for e in range(8 * i, 8 * i + 8)]
            ep += [I(f"v_cvt_pk_bf16_f32 {v(b + 8 * i + j)}, {v(b + 8 * i + 2 * j)}, {v(b + 8 * i + 2 * j + 1)}") for j in range(4)]
            g = gstore(v(b + 8 * i, 4), vL16, sWs, s(sT2), 1024 * (2 * ft + i)); yst.append(g); ep.append(g)
    return main + stamp_at(7) + ep + stamp_n("ep"), yst
sPa, sPb = 61, 62

def flat1(x):
    out = []
    for e in x:
        if isinstance(e, list) and e and all(isinstance(y, Ins) and (y.kind == "ds" or y.op == "v_add_u32") for y in e): out.extend(e)
        else: out.append(e)
    return out

YT = [Tok("vm", f"yst{i}") for i in range(4)]
def light2(otok):
    c = ring_setup_early() + p3_setup() + [Wait(*otok), BAR(), flag_store(F_O, 30)]
    for q in range(16, 26): c += ring_dma(q)
    c += res_loads()
    ol = poll_issue(vPoll, vPollA)
    c += row_poll_addr(vPollA, F_O, 15) + [ol, poll_check(ol, vPoll, vPollA, sleep=8)] + o_loads()
    c += [Wait(*(RT[16] + RT[17])), BAR()]
    return c

def phase3():
    c = []
    rd = {}
    F3 = ZF
    def reads(n):
        q = 16 + n // 4; j = n % 4; f = F3 + 8 * (n % 4)
        rd[n] = [dstr(v(f + 4 * u + 2 * e, 2), vTRp, slot(q) - win(q) + j * 2048 + e * 1024 + u * 512) for u in range(2) for e in range(2)]
        adj = rewin([vTRp], q) if j == 0 and q > 16 else []
        return adj + rd[n]
    assert win(16) == 0
    c += reads(0) + reads(1) + reads(2)
    for n in range(16):
        f = F3 + 8 * (n % 4); B = a(4 * n, 4); nx = n + 3
        c += [Wait(*(toks(rd[n]) + [OT[n]])), mfma(acc3, v(f, 4), B, "0" if n == 0 else v(acc3, 16))]
        if nx == 8: c += [Wait(*(RT[18] + RT[19] + toks(rd[n + 2]))), BAR()]
        c += [mfma(acc3 + 16, v(f + 4, 4), B, "0" if n == 0 else v(acc3 + 16, 16))]
        if nx == 8: c += ring_dma(26)
        if nx < 16: c += reads(nx)
    c += stamp_at(8)
    c += row_poll_addr(vPollA, F_Y, 13)
    c += [I(f"s_mul_i32 {s(sT2)}, {s(sTok3)}, 56"), I(f"s_mul_i32 {s(sT1)}, {s(sKH)}, 28"), I(f"s_add_u32 {s(sT2)}, {s(sT2)}, {s(sT1)}"),
          I(f"s_lshl_b32 {s(sT2)}, {s(sT2)}, 10"), I(f"s_add_u32 {s(sPa)}, {s(sT2)}, {WS_Y}")]
    c += [Wait(*(YT + RT[25])), BAR(), flag_store(F_Y, T + 14)]
    yl = poll_issue(vPoll, vPollA)
    c += [yl] + reads(16) + reads(17) + reads(18)
    wa, ra = 32, 40
    c += [I(f"v_bfe_u32 {v(T)}, {v(vL16)}, 4, 4"), I(f"v_lshrrev_b32 {v(T + 1)}, 9, {v(vL16)}"), I(f"v_xor_b32 {v(T)}, {v(T)}, {v(T + 1)}"),
          I(f"v_lshlrev_b32 {v(T)}, 4, {v(T)}"), I(f"v_and_b32 {v(T + 1)}, 0x1f0, {v(vL16)}"), I(f"v_lshl_add_u32 {v(T)}, {v(T + 1)}, 4, {v(T)}"),
          I(f"s_and_b32 {s(sT1)}, {s(sW)}, 1"), I(f"s_lshl_b32 {s(sT1)}, {s(sT1)}, 13"), I(f"s_lshl_b32 {s(sT3)}, {s(sKH)}, 14"),
          I(f"s_add_u32 {s(sT1)}, {s(sT1)}, {s(sT3)}"), I(f"s_add_u32 {s(sT1)}, {s(sT1)}, {L_RED}"), I(f"v_add_u32 {v(wa)}, {s(sT1)}, {v(T)}")]
    for i in range(1, 8): c.append(I(f"v_xor_b32 {v(wa + i)}, {32 * i}, {v(wa)}"))
    c += [I(f"v_lshrrev_b32 {v(T)}, 7, {v(vL16)}"), I(f"s_lshl_b32 {s(sT1)}, {s(sW)}, 3"), I(f"v_add_u32 {v(T)}, {s(sT1)}, {v(T)}"),
          I(f"v_and_b32 {v(T + 1)}, 15, {v(T)}"), I(f"v_bfe_u32 {v(T + 2)}, {v(vL16)}, 4, 3"), I(f"v_lshlrev_b32 {v(T + 2)}, 1, {v(T + 2)}"),
          I(f"v_xor_b32 {v(T + 1)}, {v(T + 1)}, {v(T + 2)}"), I(f"v_lshlrev_b32 {v(T + 1)}, 4, {v(T + 1)}"), I(f"v_lshl_add_u32 {v(T)}, {v(T)}, 8, {v(T + 1)}"),
          I(f"v_add_u32 {v(ra)}, {L_RED}, {v(T)}"), I(f"v_xor_b32 {v(ra + 1)}, 16, {v(ra)}")]
    c += poll_check(yl, vPoll, vPollA, sleep=0)
    c += stamp_at(9)
    yld = {}
    def yload(k):
        o = [I(f"s_add_u32 {s(sPb)}, {s(sPa)}, {s(sR3y)}"), I(f"s_add_u32 {s(sR3y)}, {s(sR3y)}, 4096"), I(f"s_cmp_eq_u32 {s(sR3y)}, {7 * 4096}"),
             I(f"s_cselect_b32 {s(sR3y)}, 0, {s(sR3y)}")] if k % 4 == 0 else []
        yld[k] = gload(a(64 + 4 * k, 4), vL16, sWs, s(sPb), 1024 * (k % 4), sc1=True)
        return o + [yld[k]]
    LA = OPT["yla"]
    for k in range(LA): c += yload(k)
    for k in range(28):
        n = 16 + k; f = F3 + 8 * (n % 4); B = a(64 + 4 * k, 4)
        c += [Wait(*(toks(rd[n]) + [yld[k].tok])), mfma(acc3, v(f, 4), B, v(acc3, 16))]
        if k == 8: c += [Wait(*RT[26]), BAR()]
        r = reads(n + 3) if k + 3 < 28 else []
        c += r[:-2] + [mfma(acc3 + 16, v(f + 4, 4), B, v(acc3 + 16, 16))] + r[-2:]
        if k + LA < 28: c += yload(k + LA)
    ws = [dsw(wa + 4 * u + q, v(acc3 + 16 * u + 4 * q, 4)) for u in range(2) for q in range(4)]
    c += stamp_n("y28") + ws + [Wait(*toks(ws)), BAR()] + stamp_n("red")
    D = 128
    rr = [[dsr(v(D + 16 * k + 8 * hf + 4 * j, 4), ra + j, k * 8192 + hf * 16384) for hf in range(2) for j in range(2)] for k in range(2)]
    c += rr[0] + rr[1]
    for k in range(2):
        b = D + 16 * k; x = RES + 4 * k
        c += [Wait(*(toks(rr[k]) + [RSD[k]]))]
        c += [I(f"v_add_f32 {v(b + e)}, {v(b + e)}, {v(b + 8 + e)}") for e in range(8)]
        for j in range(4):
            c += [I(f"v_lshlrev_b32 {v(b + 8 + 2 * j)}, 16, {v(x + j)}"), I(f"v_and_b32 {v(b + 9 + 2 * j)}, 0xffff0000, {v(x + j)}")]
        c += [I(f"v_add_f32 {v(b + e)}, {v(b + e)}, {v(b + 8 + e)}") for e in range(8)]
        c += [I(f"v_cvt_pk_bf16_f32 {v(b + j)}, {v(b + 2 * j)}, {v(b + 2 * j + 1)}") for j in range(4)]
        c += [gstore(v(b, 4), vOut + k, sOut, "0", sc1=False)]
    c += stamp_at(10)
    if OPT["probe"]:
        c += [I("s_waitcnt lgkmcnt(0)"), I(f"s_sub_u32 {s(sT1)}, {s(sStamp + 2)}, {s(sStamp)}"), I(f"s_mul_i32 {s(sT1)}, {s(sT1)}, {0 if OPT['probe'] == 'end' else 4}"),
              I(f"s_cmp_eq_u32 {s(sC)}, 7"), I(f"s_cselect_b32 {s(sT1)}, 0, {s(sT1)}"), I(f"s_add_u32 {s(sT1)}, {s(sT1)}, 6000"), I(f"s_min_u32 {s(sT1)}, {s(sT1)}, 50000"), Label("L_probe"), I(f"s_memrealtime {s(sStamp + 4, 2)}"), I("s_waitcnt lgkmcnt(0)"),
              I(f"s_sub_u32 {s(sT2)}, {s(sStamp + 4)}, {s(sStamp)}"), I(f"s_cmp_lt_u32 {s(sT2)}, {s(sT1)}"), I("s_cbranch_scc1 L_probe")]
    if OPT["stamps"]:
        c += [I("s_waitcnt lgkmcnt(0)")]
        for i in range(7): c.append(I(f"v_mov_b32 {v(128 + i)}, {s(sStamp + 2 * i)}"))
        c += [I(f"s_lshl_b32 {s(sT1)}, s2, 8"), I(f"s_lshl_b32 {s(sT2)}, {s(sW)}, 6"), I(f"s_add_u32 {s(sT1)}, {s(sT1)}, {s(sT2)}"),
              I(f"s_add_u32 {s(sT1)}, {s(sT1)}, {WS_DBG}"), I(f"v_mov_b32 {v(140)}, 0")]
        for i in range(2): c.append(gstore(v(128 + 4 * i, 4), 140, sWs, s(sT1), 16 * i, sc1=False))
    return c

def build():
    fr, wd = front()
    wdF = dict(wd); wdL = dict(wd)
    for d in (wdF, wdL):
        d[2] = w_dma(KFULL, 2); d[3] = w_dma(KFULL, 3)
    lnf = ln_finish(wdF[2] + wdF[3]); lnl = ln_finish(wdL[2] + wdL[3])
    spd, p1F, kdmF, zst = p1_main(KFULL, wdF, True)
    _, p1L, kdmL, _ = p1_main(KLIGHT, wdL, False)
    otok = [Tok("vm", "ost0"), Tok("vm", "ost1")]
    def hooks_full():
        zl = poll_issue(254, 252)
        h = {f"blk{hd}_{k}": [] for hd in range(2) for k in range(9)}
        spre, spost = stats_recv()
        zi, zst = z2_publish()
        h["top0"] = spre
        h["pre0"] = spost + zi
        h[f"blk0_{OPT['zf']}"] = [Wait(*toks(zst)), BAR(), flag_store(F_Z, 253)]
        places = [f"blk0_{k}" for k in range(0, 9)] + ["blk1_0", "blk1_1", "blk1_2"]
        left = list(range(OPT["sp1"], 16)); d = dict(spd)
        for i, w in enumerate(left):
            pl = places[(i * len(places)) // len(left)]
            r = sp_read(w)
            h[pl] += [Wait(*toks(d[w]))] + r
            if w + 3 < 16:
                d[w + 3] = sp_dma(w + 3)
                nxt = places[min((i * len(places)) // len(left) + 1, len(places) - 1)]
                h[nxt] = [Wait(*toks(r))] + d[w + 3] + h[nxt]
        zp = OPT["zp"]
        h[f"blk1_{zp}"] += ring_setup_early() + z_poll_addr(252) + [zl]
        h[f"blk1_{min(zp + 3, 8)}"] += [poll_check(zl, 254, 252)] + stamp_n("zchk") + ring_dma(0)
        h[f"blk1_{min(zp + 4, 8)}"] += ring_dma(1); h[f"blk1_{min(zp + 5, 8)}"] += ring_dma(2); h["blk1_8"] += ring_dma(3)
        return h
    segs = {}
    segs["front"] = flat(fr + [I(f"s_cmp_ge_u32 {s(sCG)}, 14"), I("s_cbranch_scc1 L_light")])
    segs["fullP1"] = flat(lnf + stamp_at(3) + p1F + stamp_at(4) + att_setup(kdmF) + [I(f"s_cmp_lt_u32 {s(sRB)}, 2"), I("s_cbranch_scc1 L_fedge")])
    segs["fullAtt"] = flat(attention(False, hooks_full(), otok))
    p2, yst = phase2(otok)
    for g, t in zip(yst, YT): g.tok = t
    segs["P2"] = flat([Label("L_p2")] + stamp_at(5) + p2)
    segs["P3"] = flat([Label("L_p3")] + phase3() + [Label("L_end"), I("s_endpgm")])
    segs["fullEdge"] = flat([Label("L_fedge")] + attention(True, hooks_full(), otok) + [I("s_branch L_p2")])
    segs["lightP1"] = flat([Label("L_light")] + lnl + stamp_at(3) + p1L + stamp_at(4) + att_setup(kdmL) + [I(f"s_cmp_lt_u32 {s(sRB)}, 2"), I("s_cbranch_scc1 L_ledge")])
    segs["lightAtt"] = flat(attention(False, {}, otok))
    l2 = light2(otok)
    fake = [VM(f"buffer_load_dword {v(T + 15)}, {v(vFL)}, {srd(sB)}, 0 offen", tok=t) for t in YT]
    segs["light2"] = flat([Label("L_l2")] + stamp_at(5) + fake + l2 + stamp_at(7) + [I("s_branch L_p3")])
    segs["lightEdge"] = flat([Label("L_ledge")] + attention(True, {}, otok) + [I("s_branch L_l2")])
    paths = [["front", "fullP1", "fullAtt", "P2", "P3"], ["front", "fullP1", "fullEdge", "P2", "P3"],
             ["front", "lightP1", "lightAtt", "light2", "P3"], ["front", "lightP1", "lightEdge", "light2", "P3"]]
    finalize([flat([segs[n] for n in p]) for p in paths] + [flat(slow)])
    order = ["front", "fullP1", "fullAtt", "P2", "P3", "fullEdge", "lightP1", "lightAtt", "light2", "lightEdge"]
    body = "\n".join(render(segs[n]) for n in order) + "\n" + render(flat(slow))
    hdr = open(__file__.rsplit("/", 1)[0] + "/../cdna_kernels/parallel_sum__sliding_block__mixer_gmlp__prompt.s.ref").read().split("; Override launch")[0]
    out = hdr + "; @launch grid=(256,1,1) block=(256,1,1) lds=163840\n" + f'''.amdgcn_target "amdgcn-amd-amdhsa--gfx950"
.text
.globl {KNAME}
.p2align 8
.type {KNAME},@function
{KNAME}:
{body}
.section .rodata,"a"
.p2align 6
.amdhsa_kernel {KNAME}
  .amdhsa_next_free_vgpr 512
  .amdhsa_next_free_sgpr 102
  .amdhsa_accum_offset 256
  .amdhsa_group_segment_fixed_size 0
  .amdhsa_kernarg_size 88
  .amdhsa_user_sgpr_count 2
  .amdhsa_user_sgpr_kernarg_segment_ptr 1
  .amdhsa_system_sgpr_workgroup_id_x 1
  .amdhsa_float_denorm_mode_32 3
.end_amdhsa_kernel
'''
    if OPT["stamps"]: out = out.replace("; @launch", "; stamps: " + " ".join(PROFS[OPT["stamps"]]) + "\n; @launch")
    open(sys.argv[1], "w").write(out)
    n = {k: len(x) for k, x in segs.items()}
    pads = {k: sum(i.pad for i in x) for k, x in segs.items()}
    print("instr counts", n, "pads", pads, file=sys.stderr)

build()
```

```python
import sys, math, struct
sys.path.insert(0, __file__.rsplit("/", 1)[0])
from asmlib import *

KNAME = "parallel_sum__sliding_block__mixer_gmlp__prompt_kernel"
OPT = dict(stamps=0, spin=20000, nt_x=0, nt_w=0, probe=None, nt_sp=0, nt_o=0, nt_t=0, rot=1, sp0=5, sp1=10, spm=0, touch=1, touch_o=1, pl0=204, pl1=228, ps1=160, zn=3, yp=12, yla=10, g1=131, s0=176, s1=196, skipbar=1, zp=9, nosp=0)
for arg in sys.argv[2:]:
    k, val = arg.split("="); OPT[k] = val if k == "probe" else int(val)

def fbits(x): return struct.unpack("<I", struct.pack("<f", x))[0]
def hx(x): return hex(x & 0xffffffff)

WS_EPOCH = 0
WS_FLAGS = 0x1000
WS_STATS = 0x100000
WS_KV = 0x200000
WS_Z = 0x600000
WS_PART = 0xA00000
WS_O = 0x1200000
WS_Y = 0x1400000
WS_DBG = 0x1800000
F_KV, F_Z, F_PART, F_O, F_Y = range(5)
L_STG = 48 * 1024; L_RING = 96 * 1024; L_RED = 48 * 1024
sX, sWq, sWi, sWsp, sWo, sWout, sB, sOut, sWs = 4, 8, 12, 16, 20, 24, 28, 32, 36
sRB, sCG, sP, sW, sNonce, sHP, sTB, sT0 = 40, 41, 42, 43, 44, 45, 46, 47
sOI, sOQ, sOO = 48, 52, 56
sMyFlag = 48
sJmin = 52
sN0 = 56
sSpA, sSpB, sRingW, sStg, sZoff, sRingR = 61, 62, 63, 64, 65, 66
sTok3 = 67
sKH = 68
sC10, sC01, sOnes = 70, 71, 72
sKVo, sKVs, sZo = 60, 69, 73
sMask = 74; sSpin = 76; sT1, sT2, sT3 = 77, 78, 79
sRotI, sRotQ = 80, 84
sR4, sR4o, sR3, sR3y = 80, 81, 82, 83
sStamp = 88
sC = 3; sSpBase = 0; sSpRot = 1; sVm = 70; sZbase = 60; sZrot = 69
vL16, vTR, vWd, vSpA, vSpB, vSpR, vFL, vR, vGA, vGB, vD, vSum, vSq = 0, 1, 2, 3, 4, 5, 9, 10, 11, 12, 13, 14, 15
T = 16
accA, accB, accD, X = 48, 80, 112, 128
vStD, vStA, vStB, vStC = 43, 45, 46, 47
AF = 224

slow = []
_lab = [0]
def newlab(n):
    _lab[0] += 1; return f"L_{n}_{_lab[0]}"

_st = [0]
def stamp():
    if not OPT["stamps"]: return []
    i = _st[0]; _st[0] += 1
    assert sStamp + 2 * i + 1 <= 101
    return [I(f"s_memtime {s(sStamp + 2 * i, 2)}")]
PROFS = {1: ["start", "center", "P1", "att", "P2", "yflag", "end"],
         2: ["start", "b0", "b4", "b8", "b10", "b12", "P1"],
         4: ["start", "b10", "b11", "b12", "sld", "schk", "P1"],
         6: ["start", "b3", "b4", "b5", "b6", "b7", "b8"],
         10: ["start", "b8", "b9", "b10", "b11", "b12", "b13"],
         3: ["start", "q0", "q4", "q8", "q12", "pchk", "P2"],
         5: ["start", "dma0", "x0", "x3", "xbar", "stats", "lnpre"],
         7: ["start", "P2", "ybar", "opart", "yflag", "y28", "end"],
         8: ["start", "P1", "kchk", "attbar", "a0p2", "zchk", "att"],
         9: ["start", "rt:start", "P1", "rt:P1", "P2", "end", "rt:end"]}
OLD = ["start", "x0", "stats", "center", "P1", "att", "attbar", "P2", "opart", "yflag", "end"]
def stamp_n(name):
    if OPT["probe"]:
        if name == "start": return [I(f"s_memrealtime {s(sStamp, 2)}")]
        if name == OPT["probe"]: return [I(f"s_memrealtime {s(sStamp + 2, 2)}")]
        return []
    if not OPT["stamps"]: return []
    L = PROFS[OPT["stamps"]]
    if name not in L: return []
    o = [I(f"s_memtime {s(sStamp + 2 * L.index(name), 2)}")]
    if "rt:" + name in L: o.append(I(f"s_memrealtime {s(sStamp + 2 * L.index('rt:' + name), 2)}"))
    return o
def stamp_at(i): return stamp_n(OLD[i])

def srd(r): return s(r, 4)
def dma(vaddr, r, soff, imm, sc1=False, tok=None):
    o = f" offset:{imm}" if imm else ""
    nt = {sX: OPT["nt_x"], sWq: OPT["nt_w"], sWi: OPT["nt_w"], sWsp: OPT["nt_sp"], sWo: OPT["nt_o"], sWout: OPT["nt_o"]}.get(r, 0)
    return VM(f"buffer_load_dwordx4 {v(vaddr)}, {srd(r)}, {soff} offen{o}{' sc1' if sc1 else ''}{' nt' if nt else ''} lds", tok=tok)
def gload(dst, vaddr, r, soff, imm=0, sc1=False, tok=None, op="dwordx4"):
    o = f" offset:{imm}" if imm else ""
    return VM(f"buffer_load_{op} {dst}, {v(vaddr)}, {srd(r)}, {soff} offen{o}{' sc1' if sc1 else ''}", tok=tok)
def gstore(src, vaddr, r, soff, imm=0, sc1=True, op="dwordx4", tok=None):
    o = f" offset:{imm}" if imm else ""
    return VM(f"buffer_store_{op} {src}, {v(vaddr)}, {srd(r)}, {soff} offen{o}{' sc1' if sc1 else ''}", tok=tok)
def dsr(dst, vaddr, imm=0, op="ds_read_b128"):
    o = f" offset:{imm}" if imm else ""
    return DS(f"{op} {dst}, {v(vaddr)}{o}")
def dstr(dst, vaddr, imm=0): return dsr(dst, vaddr, imm, "ds_read_b64_tr_b16")
def dsw(vaddr, src, imm=0, op="ds_write_b128"):
    o = f" offset:{imm}" if imm else ""
    return DS(f"{op} {v(vaddr)}, {src}{o}")
def mfma(d, A, B, C):
    return I(f"v_mfma_f32_32x32x16_bf16 {v(d, 16)}, {A}, {B}, {C}")
def toks(items): return [x.tok for x in flat(items) if x.tok is not None]
def vmtoks(items): return [x.tok for x in flat(items) if x.tok is not None and x.kind == "vmem"]
def lgtoks(items): return [x.tok for x in flat(items) if x.tok is not None and x.kind == "ds"]
BAR = lambda: I("s_barrier")

def rne_bf16(dst, src):
    return [I(f"v_cvt_pk_bf16_f32 {v(dst)}, {v(src)}, {v(src)}"), I(f"v_and_b32 {v(dst)}, 0xffff0000, {v(dst)}")]
def cross_half(op, r, tmp):
    return [I(f"v_mov_b32 {v(tmp)}, {v(r)}"), I(f"v_permlane32_swap_b32 {v(r)}, {v(tmp)}"), I(f"{op} {v(r)}, {v(r)}, {v(tmp)}")]

def flag_store(ftype, vtmp):
    return [I(f"s_add_u32 {s(sT1)}, {s(sMyFlag)}, {ftype * 65536}"), I(f"v_mov_b32 {v(vtmp)}, {s(sNonce)}"),
            gstore(v(vtmp), vFL, sWs, s(sT1), op="dword")]
def poll_issue(vdst, vaddr):
    return gload(v(vdst), vaddr, sWs, "0", sc1=True, op="dword")
def poll_check(ld, vdst, vaddr, sleep=1):
    ls, lb, ll = newlab("slow"), newlab("back"), newlab("loop")
    slow.extend([Label(ls), I(f"s_mov_b32 {s(sSpin)}, {OPT['spin']}"), Label(ll)] + ([I(f"s_sleep {sleep}")] if sleep else []) + [
        gload(v(vdst), vaddr, sWs, "0", sc1=True, op="dword"), I("s_waitcnt vmcnt(0)"),
        I(f"v_cmp_ne_u32 {s(sMask, 2)}, {s(sNonce)}, {v(vdst)}"), I("s_nop 1"), I(f"s_cmp_eq_u64 {s(sMask, 2)}, 0"), I(f"s_cbranch_scc1 {lb}"),
        I(f"s_sub_u32 {s(sSpin)}, {s(sSpin)}, 1"), I(f"s_cmp_lg_u32 {s(sSpin)}, 0"), I(f"s_cbranch_scc1 {ll}"), I(f"s_branch {lb}")])
    return [Wait(ld.tok), I(f"v_cmp_ne_u32 {s(sMask, 2)}, {s(sNonce)}, {v(vdst)}"), I(f"s_cmp_lg_u64 {s(sMask, 2)}, 0"),
            I(f"s_cbranch_scc1 {ls}"), Label(lb)]

def prologue():
    c = []
    c += [I("s_cmp_ge_u32 s2, 256"), I("s_cbranch_scc1 L_end")]
    c += stamp_at(0)
    for r, off in ((sX, 0), (sWq, 8), (sWs, 80), (sWi, 32), (sWsp, 40), (sWo, 16), (sB, 48), (sWout, 56), (sOut, 64)):
        c.append(I(f"s_load_dwordx2 {s(r, 2)}, s[0:1], {off}"))
    c += [I(f"v_lshrrev_b32 {v(16)}, 6, v0"), I(f"v_and_b32 {v(17)}, 63, v0"), I(f"v_readfirstlane_b32 {s(sW)}, {v(16)}"),
          I("v_cmp_ne_u32 vcc, 0, v0"), I(f"v_bfrev_b32 {v(18)}, 1"), I(f"v_lshlrev_b32 {v(vL16)}, 4, {v(17)}"),
          I(f"v_cndmask_b32 {v(vFL)}, 0, {v(18)}, vcc")]
    for r, n in ((sX, 2097152), (sWq, 1572864), (sWi, 1835008), (sWsp, 8388608), (sWo, 524288), (sWout, 917504), (sB, 4096), (sOut, 2097152), (sWs, 0x10000000)):
        c += [I(f"s_mov_b32 {s(r + 2)}, {n}"), I(f"s_mov_b32 {s(r + 3)}, 0x20000")]
    c += [I(f"s_and_b32 {s(sP)}, s2, 1"), I(f"s_bfe_u32 {s(sRB)}, s2, {1 | (2 << 16)}"), I(f"s_lshl_b32 {s(sRB)}, {s(sRB)}, 2"),
          I(f"s_bfe_u32 {s(sT0)}, s2, {3 | (2 << 16)}"), I(f"s_add_u32 {s(sRB)}, {s(sRB)}, {s(sT0)}"),
          I(f"s_lshr_b32 {s(sC)}, s2, 5"), I(f"s_add_u32 {s(sC)}, {s(sC)}, 7"), I(f"s_and_b32 {s(sC)}, {s(sC)}, 7"), I(f"s_lshl_b32 {s(sCG)}, {s(sC)}, 1"), I(f"s_or_b32 {s(sCG)}, {s(sCG)}, {s(sP)}"),
          I(f"s_lshl_b32 {s(sHP)}, {s(sP)}, 3"), I(f"s_add_u32 {s(sHP)}, {s(sHP)}, {s(sC)}"),
          I(f"s_lshl_b32 {s(sTB)}, {s(sRB)}, 2"), I(f"s_add_u32 {s(sTB)}, {s(sTB)}, {s(sW)}")]
    l = 17
    c += [I(f"v_lshrrev_b32 {v(18)}, 4, {v(l)}"), I(f"v_and_b32 {v(19)}, 15, {v(l)}")]
    for i in range(4):
        c += [I(f"v_or_b32 {v(20 + i)}, {4 * i}, {v(18)}"), I(f"v_xor_b32 {v(20 + i)}, {v(20 + i)}, {v(19)}"),
              I(f"v_lshlrev_b32 {v(20 + i)}, 4, {v(20 + i)}"), I(f"v_lshl_add_u32 {v(20 + i)}, {v(18)}, 10, {v(20 + i)}")]
        if i: c.append(I(f"v_add_u32 {v(20 + i)}, {3072 * i}, {v(20 + i)}"))
    if OPT["rot"]:
        c += [I(f"s_add_u32 {s(sT0)}, {s(sT0)}, {s(sC)}"), I(f"s_and_b32 {s(sT0)}, {s(sT0)}, 3"), I(f"s_lshr_b32 {s(sT1)}, {s(sC)}, 2")]
    else:
        c += [I(f"s_mov_b32 {s(sT0)}, 0"), I(f"s_mov_b32 {s(sT1)}, 0")]
    c += [I(f"s_lshl_b32 {s(sXg)}, {s(sTB)}, 1"), I(f"s_add_u32 {s(sXg)}, {s(sXg)}, {s(sT1)}"), I(f"s_lshl_b32 {s(sXg)}, {s(sXg)}, 14"),
          I(f"s_lshl_b32 {s(sXl)}, {s(sW)}, 3"), I(f"s_add_u32 {s(sXl)}, {s(sXl)}, {s(sT1)}"), I(f"s_lshl_b32 {s(sXl)}, {s(sXl)}, 12")]
    for g in range(4):
        c += [I(f"s_add_u32 {s(sT1)}, {s(sT0)}, {g}"), I(f"s_and_b32 {s(sRotQ + g)}, {s(sT1)}, 3")]
    c += [I("s_waitcnt lgkmcnt(0)"), I(f"s_load_dword {s(sNonce)}, {s(sWs, 2)}, {WS_EPOCH}")]
    if OPT["touch"]:
        nt = " nt" if OPT["nt_t"] else ""
        c += [I(f"s_cmp_lt_u32 {s(sC)}, 7"), I("s_cbranch_scc1 L_notouch"),
              I(f"v_lshlrev_b32 {v(24)}, 12, {v(l)}"), I(f"s_lshl_b32 {s(sT1)}, {s(sRB)}, 1"), I(f"s_and_b32 {s(sT2)}, {s(sW)}, 1"), I(f"s_add_u32 {s(sT1)}, {s(sT1)}, {s(sT2)}"),
              I(f"s_lshl_b32 {s(sT1)}, {s(sT1)}, 18"), I(f"s_lshl_b32 {s(sT2)}, {s(sP)}, 11"), I(f"s_add_u32 {s(sT1)}, {s(sT1)}, {s(sT2)}"),
              I(f"v_add_u32 {v(24)}, {s(sT1)}, {v(24)}"),
              I(f"s_and_b32 {s(sT1)}, {s(sRB)}, 3"), I(f"s_lshl_b32 {s(sT1)}, {s(sT1)}, 9"), I(f"s_lshr_b32 {s(sT2)}, {s(sW)}, 1"), I(f"s_lshl_b32 {s(sT2)}, {s(sT2)}, 7"),
              I(f"s_add_u32 {s(sT1)}, {s(sT1)}, {s(sT2)}")]
        for j in range(8):
            c += [VM(f"buffer_load_dword {v(42)}, {v(24)}, {srd(sWsp)}, {s(sT1)} offen{nt}"),
                  I(f"s_add_u32 {s(sT1)}, {s(sT1)}, 256"), I(f"s_and_b32 {s(sT1)}, {s(sT1)}, 2047")]
        if OPT["touch_o"]:
            c += [I(f"s_lshl_b32 {s(sT1)}, {s(sRB)}, 1"), I(f"s_add_u32 {s(sT1)}, {s(sT1)}, {s(sP)}"), I(f"s_lshl_b32 {s(sT1)}, {s(sT1)}, 2"),
                  I(f"s_add_u32 {s(sT1)}, {s(sT1)}, {s(sW)}"), I(f"v_lshlrev_b32 {v(24)}, 7, {v(l)}"),
                  I(f"s_mul_i32 {s(sT2)}, {s(sT1)}, 7168"), I(f"s_lshl_b32 {s(sT1)}, {s(sT1)}, 12"),
                  VM(f"buffer_load_dword {v(42)}, {v(24)}, {srd(sWout)}, {s(sT2)} offen"), I(f"v_and_b32 {v(24)}, 0xfff, {v(24)}"),
                  VM(f"buffer_load_dword {v(42)}, {v(24)}, {srd(sWo)}, {s(sT1)} offen")]
        c += [Label("L_notouch")]
    return c, l

sXg, sXl, sXo = 61, 62, 65
def x_dma(g):
    it = []
    for hh in range(2):
        if hh == 0:
            it.append([I(f"s_lshl_b32 {s(sT1)}, {s(sRotQ + g)}, 8"), I(f"s_add_u32 {s(sXo)}, {s(sXg)}, {s(sT1)}"), I(f"s_add_u32 m0, {s(sXl)}, {g * 8192}")])
        else:
            it.append([I(f"s_xor_b32 {s(sXo)}, {s(sXo)}, 16384"), I(f"s_xor_b32 m0, m0, 4096")])
        it += [dma(20 + i, sX, s(sXo), 1024 * i) for i in range(4)]
    return it

def w_addr(l):
    c = []
    for base, rs in ((sOI, 3584), (sOQ, 3072), (sOO, 1024)):
        for i in range(1, 4): c.append(I(f"s_mov_b32 {s(base + i)}, {i * (8 * rs - 1024)}"))
    c += [I(f"s_lshl_b32 {s(sRingW)}, {s(sW)}, 12"), I(f"s_add_u32 {s(sRingW)}, {s(sRingW)}, {L_RING}")]
    kr, u, cc = 32, 33, 34
    c += [I(f"v_bfe_u32 {v(kr)}, {v(l)}, 2, 3"), I(f"s_lshl_b32 {s(sT1)}, {s(sW)}, 5"), I(f"v_add_u32 {v(kr)}, {s(sT1)}, {v(kr)}"),
          I(f"v_lshrrev_b32 {v(u)}, 5, {v(l)}"), I(f"v_and_b32 {v(cc)}, 3, {v(l)}"), I(f"v_lshlrev_b32 {v(cc)}, 4, {v(cc)}"),
          I(f"v_mul_u32_u24 {v(35)}, 3072, {v(kr)}"), I(f"v_add_u32 {v(35)}, {v(35)}, {v(cc)}"),
          I(f"s_lshl_b32 {s(sT1)}, {s(sHP)}, 6"), I(f"v_add_u32 {v(vStD)}, {s(sT1)}, {v(35)}"),
          I(f"v_lshl_add_u32 {v(vStB)}, {v(u)}, 10, {v(vStD)}"), I(f"v_add_u32 {v(vStB)}, 1024, {v(vStB)}"),
          I(f"v_mul_u32_u24 {v(35)}, 3584, {v(kr)}"), I(f"v_add_u32 {v(35)}, {v(35)}, {v(cc)}"),
          I(f"v_lshl_add_u32 {v(35)}, {v(u)}, 6, {v(35)}"), I(f"s_lshl_b32 {s(sT1)}, {s(sCG)}, 7"),
          I(f"v_add_u32 {v(vStC)}, {s(sT1)}, {v(35)}"), I(f"v_add_u32 {v(vStA)}, 1792, {v(vStC)}")]
    return c
def w_addr2():
    c = []
    for g in range(4):
        c += [I(f"s_mul_i32 {s(sRotI + g)}, {s(sRotQ + g)}, {128 * 3584}"), I(f"s_mul_i32 {s(sRotQ + g)}, {s(sRotQ + g)}, {128 * 3072}")]
    c += [I(f"v_cmp_lt_u32 vcc, 511, {v(vL16)}"), I(f"v_mov_b32 {v(32)}, {s(sRotQ + 1)}"), I(f"v_mov_b32 {v(33)}, {s(sRotQ + 3)}"),
          I(f"v_cndmask_b32 {v(32)}, {v(32)}, {v(33)}, vcc"), I(f"v_add_u32 {v(vStD + 1)}, {v(32)}, {v(vStD)}"),
          I(f"v_mov_b32 {v(32)}, {s(sRotQ)}"), I(f"v_mov_b32 {v(33)}, {s(sRotQ + 2)}"),
          I(f"v_cndmask_b32 {v(32)}, {v(32)}, {v(33)}, vcc"), I(f"v_add_u32 {v(vStD)}, {v(32)}, {v(vStD)}")]
    return c

def w_dma(kinds, st):
    k = kinds[st]; sg = st - kinds.index(k)
    r, so = (sWi, sOI) if k in "AC" else (sWq, sOQ)
    it = [I(f"s_add_u32 m0, {s(sRingW)}, {((st + 2) % 4) * 16384}")]
    if k == "D": va = vStD + sg
    else:
        va = vWd
        it.append(I(f"v_add_u32 {v(vWd)}, {s((sRotQ if k == 'B' else sRotI) + sg)}, {v(dict(A=vStA, B=vStB, C=vStC)[k])}"))
    for i in range(4): it.append(dma(va, r, s(so + i) if i else "0", 1024 * i))
    return it

def sp_dma(w):
    if OPT["nosp"]: return []
    it = [[I(f"s_add_u32 {s(sSpA)}, {s(sSpBase)}, {s(sSpRot)}"), I(f"s_add_u32 {s(sSpB)}, {s(sSpA)}, 63488"),
           I(f"s_add_u32 m0, {s(sStg)}, {(w % 3) * 4096}"), I(f"s_add_u32 {s(sSpRot)}, {s(sSpRot)}, 128"), I(f"s_and_b32 {s(sSpRot)}, {s(sSpRot)}, 2047")]]
    it += [dma(vSpA, sWsp, s(sSpA), 0), dma(vSpB, sWsp, s(sSpA), 1024), dma(vSpA, sWsp, s(sSpB), 2048), dma(vSpB, sWsp, s(sSpB), 3072)]
    return it
def sp_read(w):
    if OPT["nosp"]: return []
    return [dsr(a(16 * w + 4 * j, 4), vSpR + j, (w % 3) * 4096) for j in range(4)]

KFULL = list("AAAABBBBDDCCCC"); KLIGHT = list("BBBBDD")

def spread(main, filler):
    out = []; n = len(main); k = 0
    for i, e in enumerate(main):
        while k < len(filler) and k * n <= i * len(filler): out.append(filler[k]); k += 1
        out.append(e)
    return out + filler[k:]

def front():
    c, l = prologue()
    c += stamp_n("dma0")
    xg = [x_dma(g) for g in range(4)]
    c += xg[0]
    c += w_addr(l)
    t, h = 18, 19
    XR = 24
    c += [I(f"v_and_b32 {v(t)}, 31, {v(l)}"), I(f"v_lshrrev_b32 {v(h)}, 5, {v(l)}"), I(f"s_lshl_b32 {s(sT3)}, {s(sW)}, 15")]
    c += [I(f"v_and_b32 {v(36)}, 15, {v(l)}"), I(f"v_xor_b32 {v(36)}, {v(36)}, {v(h)}"), I(f"v_lshlrev_b32 {v(36)}, 4, {v(36)}"),
          I(f"v_lshl_add_u32 {v(36)}, {v(t)}, 8, {v(36)}"), I(f"v_add_u32 {v(XR)}, {s(sT3)}, {v(36)}")]
    for j in range(1, 8): c.append(I(f"v_xor_b32 {v(XR + j)}, {32 * j}, {v(XR)}"))
    c += [I(f"v_bfe_u32 {v(36)}, {v(l)}, 2, 2"), I(f"v_lshlrev_b32 {v(36)}, 6, {v(36)}"), I(f"v_lshl_add_u32 {v(36)}, {v(h)}, 10, {v(36)}"),
          I(f"v_bfe_u32 {v(37)}, {v(l)}, 4, 1"), I(f"v_lshl_add_u32 {v(36)}, {v(37)}, 5, {v(36)}"),
          I(f"v_and_b32 {v(37)}, 3, {v(l)}"), I(f"v_lshl_add_u32 {v(36)}, {v(37)}, 3, {v(36)}"), I(f"v_add_u32 {v(vTR)}, {L_RING}, {v(36)}")]
    c += [I(f"s_mul_i32 {s(sStg)}, {s(sW)}, 12288"), I(f"s_add_u32 {s(sStg)}, {s(sStg)}, {L_STG}"),
          I(f"s_lshl_b32 {s(sSpBase)}, {s(sTB)}, 17"), I(f"s_lshl_b32 {s(sT1)}, {s(sP)}, 11"), I(f"s_add_u32 {s(sSpBase)}, {s(sSpBase)}, {s(sT1)}")]
    if OPT["rot"]:
        c += [I(f"s_and_b32 {s(sT1)}, {s(sRB)}, 3"), I(f"s_lshl_b32 {s(sSpRot)}, {s(sT1)}, 9")]
    else: c += [I(f"s_mov_b32 {s(sSpRot)}, 0")]
    c += [I(f"v_lshrrev_b32 {v(36)}, 4, {v(l)}"), I(f"v_and_b32 {v(37)}, 7, {v(l)}"), I(f"v_lshrrev_b32 {v(38)}, 3, {v(l)}"),
          I(f"v_xor_b32 {v(36)}, {v(36)}, {v(37)}"), I(f"v_lshlrev_b32 {v(36)}, 4, {v(36)}"), I(f"v_lshl_add_u32 {v(vSpA)}, {v(38)}, 12, {v(36)}"),
          I(f"v_xor_b32 {v(vSpB)}, 64, {v(vSpA)}"), I(f"v_add_u32 {v(vSpB)}, 31744, {v(vSpB)}"),
          I(f"v_bfe_u32 {v(36)}, {v(l)}, 1, 3"), I(f"v_xor_b32 {v(36)}, {v(36)}, {v(h)}"), I(f"v_lshlrev_b32 {v(36)}, 4, {v(36)}"),
          I(f"v_lshl_add_u32 {v(36)}, {v(t)}, 7, {v(36)}"), I(f"v_add_u32 {v(vSpR)}, {s(sStg)}, {v(36)}")]
    for j in range(1, 4): c.append(I(f"v_xor_b32 {v(vSpR + j)}, {32 * j}, {v(vSpR)}"))
    c += [I(f"s_mov_b32 {s(sC10)}, 0x3f80"), I(f"s_mov_b32 {s(sC01)}, 0x3f800000"), I(f"s_mov_b32 {s(sOnes)}, 0x3f803f80"),
          I(f"s_lshl_b32 {s(sT1)}, {s(sRB)}, 4"), I(f"s_add_u32 {s(sT1)}, {s(sT1)}, {s(sCG)}"), I(f"s_lshl_b32 {s(sT1)}, {s(sT1)}, 8"),
          I(f"s_add_u32 {s(sMyFlag)}, {s(sT1)}, {WS_FLAGS}"),
          I("s_waitcnt lgkmcnt(0)"), I(f"s_add_u32 {s(sNonce)}, {s(sNonce)}, 1")]
    for i in range(4): c.append(I(f"v_mov_b32 {v(DA + i)}, 0"))
    c += xg[1]
    rd = [[dsr(v(X + 32 * g + 4 * j, 4), XR + j, g * 8192) for j in range(8)] for g in range(4)]
    def dots(g):
        o = []
        for j in range(8):
            o.append(Wait(rd[g][j].tok))
            for q in range(4):
                reg = X + 32 * g + 4 * j + q
                o += [I(f"v_dot2_f32_bf16 {v(DA + (q & 1))}, {v(reg)}, {s(sOnes)}, {v(DA + (q & 1))}"),
                      I(f"v_dot2_f32_bf16 {v(DA + 2 + (q & 1))}, {v(reg)}, {v(reg)}, {v(DA + 2 + (q & 1))}")]
        return o
    for g in range(2):
        c += [Wait(*toks(xg[g]))] + rd[g] + stamp_n(f"x{g}")
        c += spread(dots(g), xg[g + 2])
    def rest(kinds):
        o = []
        wd = {st: w_dma(kinds, st) for st in range(4)}
        for g in (2, 3):
            rd[g] = [dsr(v(X + 32 * g + 4 * j, 4), XR + j, g * 8192) for j in range(8)]
            o += [Wait(*toks(xg[g]))] + rd[g] + stamp_n(f"x{g}")
            o += spread(dots(g), w_addr2() + wd[0] if g == 2 else wd[1])
        o += [BAR()] + stamp_n("xbar") + stamp_at(2)
        return o + ln_finish(wd[2] + wd[3]), wd
    return c, rest
DA = 36

def ln_finish(extra):
    c = []
    c += [I(f"v_add_f32 {v(DA + 0)}, {v(DA + 0)}, {v(DA + 1)}"), I(f"v_add_f32 {v(DA + 2)}, {v(DA + 2)}, {v(DA + 3)}")]
    c += cross_half("v_add_f32", DA, DA + 1) + cross_half("v_add_f32", DA + 2, DA + 3)
    c += [I(f"v_mul_f32 {v(DA + 0)}, {hx(fbits(1 / 512))}, {v(DA + 0)}"), I(f"v_mul_f32 {v(DA + 2)}, {hx(fbits(1 / 512))}, {v(DA + 2)}"),
          I(f"v_fma_f32 {v(DA + 2)}, -{v(DA + 0)}, {v(DA + 0)}, {v(DA + 2)}"), I(f"v_max_f32 {v(DA + 2)}, 0, {v(DA + 2)}")]
    c += rne_bf16(DA, DA) + rne_bf16(DA + 2, DA + 2)
    c += [I(f"v_add_f32 {v(DA + 2)}, {hx(fbits(1e-5))}, {v(DA + 2)}")] + rne_bf16(DA + 2, DA + 2)
    c += [I(f"v_sqrt_f32 {v(DA + 2)}, {v(DA + 2)}"), I(f"v_xor_b32 {v(DA + 0)}, 0x80000000, {v(DA + 0)}")] + rne_bf16(vD, DA + 2)
    c += [I(f"v_rcp_f32 {v(vR)}, {v(vD)}")]
    k0 = -2.0 * math.log2(math.e) * math.sqrt(2.0 / math.pi)
    c += [I(f"v_mul_f32 {v(vGB)}, {hx(fbits(k0))}, {v(vR)}"), I(f"v_mul_f32 {v(DA + 1)}, {v(vR)}, {v(vR)}"),
          I(f"v_mul_f32 {v(DA + 1)}, {hx(fbits(0.044715))}, {v(DA + 1)}"), I(f"v_mul_f32 {v(vGA)}, {v(DA + 1)}, {v(vGB)}")]
    c += stamp_n("lnpre")
    pre = c; c = []
    for b in range(0, 128, 4):
        for q in range(4):
            c += [I(f"v_dot2_f32_bf16 {v(16 + 2 * q)}, {v(X + b + q)}, {s(sC10)}, {v(DA + 0)}"),
                  I(f"v_dot2_f32_bf16 {v(17 + 2 * q)}, {v(X + b + q)}, {s(sC01)}, {v(DA + 0)}")]
        for q in range(4):
            c.append(I(f"v_cvt_pk_bf16_f32 {v(X + b + q)}, {v(16 + 2 * q)}, {v(17 + 2 * q)}"))
    return pre + spread(c, extra)

def gelu(base, n, stats):
    it = []
    for g in range(0, n, 4):
        R = [base + g + q for q in range(4)]; t = [T + q for q in range(4)]
        it += [I(f"v_mul_f32 {v(t[q])}, {v(R[q])}, {v(R[q])}") for q in range(4)]
        it += [I(f"v_fma_f32 {v(t[q])}, {v(t[q])}, {v(vGA)}, {v(vGB)}") for q in range(4)]
        it += [I(f"v_mul_f32 {v(t[q])}, {v(t[q])}, {v(R[q])}") for q in range(4)]
        it += [I(f"v_exp_f32 {v(t[q])}, {v(t[q])}") for q in range(4)]
        it += [I(f"v_fma_f32 {v(t[q])}, {v(t[q])}, {v(vD)}, {v(vD)}") for q in range(4)]
        it += [I(f"v_rcp_f32 {v(t[q])}, {v(t[q])}") for q in range(4)]
        it += [I(f"v_mul_f32 {v(R[q])}, {v(R[q])}, {v(t[q])}") for q in range(4)]
        if stats:
            for q in range(4):
                if g == 0 and q == 0:
                    it += [I(f"v_mov_b32 {v(vSum)}, {v(R[q])}"), I(f"v_mul_f32 {v(vSq)}, {v(R[q])}, {v(R[q])}")]
                else:
                    it += [I(f"v_add_f32 {v(vSum)}, {v(vSum)}, {v(R[q])}"), I(f"v_fma_f32 {v(vSq)}, {v(R[q])}, {v(R[q])}, {v(vSq)}")]
    return it

def stats_publish(zero=False):
    g = T + 4
    it = []
    if not zero:
        it += cross_half("v_add_f32", vSum, T) + cross_half("v_add_f32", vSq, T + 1)
        it += [I(f"v_mov_b32 {v(g)}, {v(vSum)}"), I(f"v_mov_b32 {v(g + 2)}, {v(vSq)}")]
    else:
        it += [I(f"v_mov_b32 {v(g)}, 0"), I(f"v_mov_b32 {v(g + 2)}, 0")]
    it += [I(f"v_mov_b32 {v(g + 1)}, {s(sNonce)}"), I(f"v_mov_b32 {v(g + 3)}, {s(sNonce)}"),
           I(f"v_lshlrev_b32 {v(g + 4)}, 22, {v(vL16)}"), I(f"v_and_b32 {v(g + 4)}, 0x80000000, {v(g + 4)}"), I(f"v_or_b32 {v(g + 4)}, {v(g + 4)}, {v(vL16)}"),
           [I(f"s_lshl_b32 {s(sT1)}, {s(sTB)}, 4"), I(f"s_add_u32 {s(sT1)}, {s(sT1)}, {s(sCG)}"), I(f"s_lshl_b32 {s(sT1)}, {s(sT1)}, 9"),
            I(f"s_add_u32 {s(sT1)}, {s(sT1)}, {WS_STATS}"), gstore(v(g, 4), g + 4, sWs, s(sT1))]]
    return it

def rarr_write():
    return [I(f"v_and_b32 {v(T)}, 0x1f0, {v(vL16)}"), I(f"v_lshrrev_b32 {v(T)}, 2, {v(T)}"),
            [I(f"s_lshl_b32 {s(sT1)}, {s(sW)}, 7"), I(f"v_add_u32 {v(T)}, {s(sT1)}, {v(T)}")], dsw(T, v(vR), op="ds_write_b32")]

def kv_epilogue():
    it = []; st = []; kw = []
    RA = 24; va = 20; vg = 21
    it += [I(f"v_lshrrev_b32 {v(va)}, 9, {v(vL16)}"), I(f"v_lshlrev_b32 {v(va)}, 4, {v(va)}"),
           [I(f"s_lshl_b32 {s(sT1)}, {s(sW)}, 7"), I(f"v_add_u32 {v(va)}, {s(sT1)}, {v(va)}")]]
    rr = [dsr(v(RA + 4 * q, 4), va, 32 * q) for q in range(4)]
    it += rr
    it += [[I(f"s_lshl_b32 {s(sT1)}, {s(sW)}, 12"), I(f"s_add_u32 {s(sT1)}, {s(sT1)}, 32768"), I(f"v_add_u32 {v(vg)}, {s(sT1)}, {v(vL16)}")]]
    it += [I(f"v_mul_f32 {v(accB + e)}, {v(accB + e)}, {v(vR)}") for e in range(16)]
    it += [I(f"v_cvt_pk_bf16_f32 {v(accB + j)}, {v(accB + 2 * j)}, {v(accB + 2 * j + 1)}") for j in range(8)]
    it += [[I(f"s_lshl_b32 {s(sT2)}, {s(sCG)}, 6"), I(f"s_add_u32 {s(sT2)}, {s(sT2)}, {s(sTB)}"), I(f"s_lshl_b32 {s(sT2)}, {s(sT2)}, 12"),
            I(f"s_add_u32 {s(sKVo)}, {s(sT2)}, {WS_KV}")]]
    for i in range(2):
        g = gstore(v(accB + 4 * i, 4), vL16, sWs, s(sKVo), 1024 * i); st.append(g)
        kw.append([g]); kw.append([dsw(vg, v(accB + 4 * i, 4), 1024 * i)])
    it += [Wait(rr[3].tok)]
    V = accB + 16
    it += spread([I(f"v_mul_f32 {v(V + e)}, {v(V + e)}, {v(RA + e)}") for e in range(16)] +
                 [I(f"v_cvt_pk_bf16_f32 {v(V + j)}, {v(V + 2 * j)}, {v(V + 2 * j + 1)}") for j in range(8)], kw)
    for i in range(2):
        g = gstore(v(V + 4 * i, 4), vL16, sWs, s(sKVo), 2048 + 1024 * i); st.append(g)
        it += [g, dsw(vg, v(V + 4 * i, 4), 2048 + 1024 * i)]
    return it, st

def q_epilogue(_):
    t = 40
    it = [I(f"v_mul_f32 {v(t)}, {hx(fbits(0.25 * math.log2(math.e)))}, {v(vR)}")]
    it += [I(f"v_mul_f32 {v(accD + e)}, {v(accD + e)}, {v(t)}") for e in range(16)]
    it += [I(f"v_cvt_pk_bf16_f32 {v(accD + j)}, {v(accD + 2 * j)}, {v(accD + 2 * j + 1)}") for j in range(8)]
    return it

def kv_fetch():
    va, vf = vWd, vR
    pre = [[I(f"s_max_u32 {s(sT1)}, {s(sRB)}, 1"), I(f"s_sub_u32 {s(sT1)}, {s(sT1)}, 1"), I(f"s_max_u32 {s(sT2)}, {s(sRB)}, 2"), I(f"s_sub_u32 {s(sT2)}, {s(sT2)}, 2"),
            I(f"s_sub_u32 {s(sT1)}, {s(sT1)}, {s(sT2)}"), I(f"s_lshl_b32 {s(sT1)}, {s(sT1)}, 8"),
            I(f"s_lshl_b32 {s(sT2)}, {s(sT2)}, 4"), I(f"s_add_u32 {s(sT2)}, {s(sT2)}, {s(sCG)}"), I(f"s_lshl_b32 {s(sT2)}, {s(sT2)}, 8"),
            I(f"s_add_u32 {s(sT2)}, {s(sT2)}, {WS_FLAGS + F_KV * 65536}"),
            I(f"v_and_b32 {v(va)}, 16, {v(vL16)}"), I(f"v_mul_u32_u24 {v(va)}, {s(sT1)}, {v(va)}"), I(f"v_add_u32 {v(va)}, {s(sT2)}, {v(va)}")]]
    ld = poll_issue(vf, va)
    chk = poll_check(ld, vf, va)
    dm = []
    for b in range(2):
        grp = [[I(f"s_lshl_b32 {s(sT1)}, {s(sW)}, 1"), I(f"s_add_u32 {s(sT1)}, {s(sT1)}, {b}"), I(f"s_lshl_b32 m0, {s(sT1)}, 12"),
                I(f"s_lshl_b32 {s(sT2)}, {s(sRB)}, 2"), I(f"s_add_u32 {s(sT1)}, {s(sT1)}, {s(sT2)}"), I(f"s_max_u32 {s(sT1)}, {s(sT1)}, 8"),
                I(f"s_sub_u32 {s(sT1)}, {s(sT1)}, 8"), I(f"s_lshl_b32 {s(sT2)}, {s(sCG)}, 6"), I(f"s_add_u32 {s(sT1)}, {s(sT1)}, {s(sT2)}"),
                I(f"s_lshl_b32 {s(sT1)}, {s(sT1)}, 12"), I(f"s_add_u32 {s(sKVs)}, {s(sT1)}, {WS_KV}")]]
        grp += [dma(vL16, sWs, s(sKVs), 1024 * i, sc1=True) for i in range(4)]
        dm += grp
    return pre + [ld], chk, dm

def stats_recv():
    va = vSum
    pre = [I(f"v_and_b32 {v(va)}, 0x1f0, {v(vL16)}"), I(f"v_and_b32 {v(vSq)}, 0x200, {v(vL16)}"), I(f"v_lshl_add_u32 {v(va)}, {v(vSq)}, 3, {v(va)}"),
           [I(f"s_lshl_b32 {s(sT1)}, {s(sTB)}, 13"), I(f"s_add_u32 {s(sT1)}, {s(sT1)}, {WS_STATS}"), I(f"v_add_u32 {v(va)}, {s(sT1)}, {v(va)}")]]
    def loads(): return [gload(v(T + 4 * k, 4), va, sWs, "0", 512 * k, sc1=True) for k in range(8)]
    def chain():
        o = [I(f"v_xor_b32 {v(vSq)}, {s(sNonce)}, {v(T + 1)}")]
        for k in range(1, 16): o.append(I(f"v_bitop3_b32 {v(vSq)}, {v(vSq)}, {v(T + 2 * k + 1)}, {s(sNonce)} bitop3:0xf6"))
        return o
    ld = loads()
    ls, lb, ll = newlab("slow"), newlab("back"), newlab("loop")
    slow.extend([Label(ls), I(f"s_mov_b32 {s(sSpin)}, {OPT['spin']}"), Label(ll), I("s_sleep 1")] + loads() + [I("s_waitcnt vmcnt(0)")] + chain() + [
        I(f"v_cmp_ne_u32 {s(sMask, 2)}, 0, {v(vSq)}"), I("s_nop 1"), I(f"s_cmp_eq_u64 {s(sMask, 2)}, 0"), I(f"s_cbranch_scc1 {lb}"),
        I(f"s_sub_u32 {s(sSpin)}, {s(sSpin)}, 1"), I(f"s_cmp_lg_u32 {s(sSpin)}, 0"), I(f"s_cbranch_scc1 {ll}"), I(f"s_branch {lb}")])
    post = [Wait(ld[7].tok)] + stamp_n('sld') + chain() + [[I(f"v_cmp_ne_u32 {s(sMask, 2)}, 0, {v(vSq)}"), I(f"s_cmp_lg_u64 {s(sMask, 2)}, 0"), I(f"s_cbranch_scc1 {ls}"), Label(lb)]]
    post += stamp_n('schk')
    for step in (4, 8, 16):
        for k in range(0, 32, 2 * step):
            post += [I(f"v_add_f32 {v(T + k)}, {v(T + k)}, {v(T + k + step)}"), I(f"v_add_f32 {v(T + k + 2)}, {v(T + k + 2)}, {v(T + k + step + 2)}")]
    S, Q = T, T + 2
    post += cross_half("v_add_f32", S, T + 1) + cross_half("v_add_f32", Q, T + 3)
    post += [I(f"v_mul_f32 {v(S)}, {hx(fbits(1 / 896))}, {v(S)}"), I(f"v_mul_f32 {v(Q)}, {hx(fbits(1 / 896))}, {v(Q)}"),
             I(f"v_fma_f32 {v(Q)}, -{v(S)}, {v(S)}, {v(Q)}"), I(f"v_max_f32 {v(Q)}, 0, {v(Q)}")]
    post += rne_bf16(S, S) + rne_bf16(Q, Q) + [I(f"v_add_f32 {v(Q)}, {hx(fbits(1e-5))}, {v(Q)}")] + rne_bf16(Q, Q)
    post += [I(f"v_sqrt_f32 {v(Q)}, {v(Q)}")] + rne_bf16(Q, Q) + [I(f"v_rcp_f32 {v(vSum)}, {v(Q)}"), I(f"v_mul_f32 {v(vSq)}, {v(S)}, {v(vSum)}"),
                                                                   I(f"v_xor_b32 {v(vSq)}, 0x80000000, {v(vSq)}")]
    return pre + ld, post

def z2_publish():
    it = []; st = []
    va = T + 4
    it += [I(f"v_lshrrev_b32 {v(T)}, 3, {v(vL16)}"), I(f"v_and_b32 {v(T)}, 64, {v(T)}"), I(f"v_add_u32 {v(T)}, {v(T)}, {v(vL16)}"),
           I(f"v_and_b32 {v(T + 1)}, 0x200, {v(vL16)}"),
           I(f"v_and_b32 {v(va)}, 0x1f0, {v(T)}"), I(f"v_or_b32 {v(va)}, {v(va)}, {v(T + 1)}"),
           I(f"v_add_u32 {v(T)}, 128, {v(T)}"), I(f"v_and_b32 {v(va + 1)}, 0x1f0, {v(T)}"), I(f"v_or_b32 {v(va + 1)}, {v(va + 1)}, {v(T + 1)}"),
           [I(f"s_lshl_b32 {s(sT2)}, {s(sCG)}, 6"), I(f"s_add_u32 {s(sT2)}, {s(sT2)}, {s(sTB)}"), I(f"s_lshl_b32 {s(sT2)}, {s(sT2)}, 12"),
            I(f"s_add_u32 {s(sZo)}, {s(sT2)}, {WS_Z}")]]
    for ft in range(2):
        b = accA + 16 * ft
        it += [I(f"v_fma_f32 {v(b + e)}, {v(b + e)}, {v(vSum)}, {v(vSq)}") for e in range(16)]
        it += [I(f"v_cvt_pk_bf16_f32 {v(b + j)}, {v(b + 2 * j)}, {v(b + 2 * j + 1)}") for j in range(8)]
        it += [I(f"v_permlane32_swap_b32 {v(b + x)}, {v(b + x + 2)}") for x in (0, 1, 4, 5)]
        for i in range(2):
            g = gstore(v(b + 4 * i, 4), va + i, sWs, s(sZo), ft * 2048 + i * 1024); st.append(g); it.append(g)
    return it, st

def p1_main(kinds, wd, full):
    nst = len(kinds); nstep = 8 * nst
    rd = {}
    def reads(n):
        st, ks = divmod(n, 8); f = AF + 8 * (n % 4)
        rd[n] = [dstr(a(f + 4 * u + 2 * e, 2), vTR, ((st + 2) % 4) * 16384 + ks * 2048 + u * 512 + e * 256) for u in range(2) for e in range(2)]
        return rd[n]
    pre_bar = {i: [] for i in range(nst + 1)}; post_bar = {i: [] for i in range(nst + 1)}
    def mm(n):
        st, ks = divmod(n, 8); k = kinds[st]; f = AF + 8 * (n % 4)
        st0 = kinds.index(k); ksg = (st - st0) * 8 + ks; first = ksg == 0
        W0, W1 = a(f, 4), a(f + 4, 4); x0 = v(X + 4 * ksg, 4)
        if k == "B": return mfma(accB, W0, x0, "0" if first else v(accB, 16)), mfma(accB + 16, x0, W1, "0" if first else v(accB + 16, 16))
        if k == "D": return mfma(accD, W0, x0, "0" if first else v(accD, 16)), mfma(accD, W1, v(X + 4 * (ksg + 16), 4), v(accD, 16))
        d = accA if k == "A" else accB
        return mfma(d, W0, x0, "0" if first else v(d, 16)), mfma(d + 16, W1, x0, "0" if first else v(d + 16, 16))
    spd = {}; spr = {}
    sp_first = OPT["sp0"]
    rd_st = dict(enumerate({0: [8, 9, 10, 11, 12, 13], 1: [9, 10, 11, 12, 13], 2: [7, 8, 9, 10, 11, 12, 13], 3: [11, 12, 13], 4: [6, 7, 8, 9, 10, 11, 12, 13]}[OPT["spm"]]))
    if full: OPT["sp1"] = len(rd_st)
    kvi, kvst = kv_epilogue()
    kpre, kchk, kdm = kv_fetch()
    bars = [1, 2, 3, 4, 5, 6, 7, 8, 10, 12] if full and OPT["skipbar"] else list(range(1, nst))
    fill = {i: [] for i in range(nst + 1)}
    issued = 3
    for st in range(1, nst):
        lastbar = max(b for b in bars if b <= st)
        while issued + 1 < nst and issued + 1 <= lastbar + 3:
            issued += 1; wd[issued] = w_dma(kinds, issued); fill[st] += wd[issued]
        if full:
            if st in (sp_first, sp_first + 1, sp_first + 2):
                w = st - sp_first; spd[w] = sp_dma(w); fill[st] += spd[w]
            for w in [w for w in rd_st if rd_st[w] == st]:
                spr[w] = sp_read(w)
                fill[st] = [Wait(*toks(spd[w]))] + spr[w] + fill[st]
                if w + 3 < 16:
                    spd[w + 3] = sp_dma(w + 3); fill[st] += [Wait(*toks(spr[w]))] + spd[w + 3]
    assert issued == nst - 1
    if full:
        pre_bar[12] += toks(kvst); post_bar[12] += [flag_store(F_KV, 9 + 0 if False else 127)]
        fill[13] = fill[13] + kpre
    main = [Wait(*toks(wd[0])), BAR()] + stamp_n("b0") + reads(0) + reads(1) + reads(2) + reads(3)
    for n in range(nstep):
        m0, m1 = mm(n)
        main += [Wait(*toks(rd[n])), m0]
        nx = n + 4
        if nx < nstep and nx % 8 == 0 and nx // 8 in bars:
            st = nx // 8
            nb_ = min([b for b in bars if b > st] + [nst])
            need = [t for x in range(st, nb_) for t in toks(wd[x])]
            main += [m1, [Wait(*(toks(rd[n + 3]) + need + pre_bar[st])), BAR()] + stamp_n(f"b{st}") + post_bar[st]] + reads(nx)
        elif nx < nstep:
            r = reads(nx); main += r[:2] + [m1] + (stamp_n(f"b{nx // 8}") if nx % 8 == 0 else []) + r[2:]
        else:
            main += [m1]
    for st in range(1, nst):
        lo = 2 * (8 * st - 4) + 2; hi = min(2 * (8 * (st + 1) - 4) + 1, 2 * nstep)
        main = weave(main, fill[st], lo, hi)
    if full:
        main = weave(main, rarr_write(), 4, 12)
        main = weave(main, gelu(accA, 32, True) + stats_publish(), 64 + 3, OPT["g1"])
        main = weave(main, kvi, OPT["g1"], 160)
        main = weave(main, q_epilogue(20), 160 + 3, 160 + 14)
        spre, spost = stats_recv()
        zi, zst = z2_publish()
        main = weave(main, spre, OPT["s0"], OPT["s0"] + 8)
        main = weave(main, spost + zi, OPT["s1"], 224)
        g = gelu(accB, 32, False); h = len(g) // 2
        tail = stamp_at(4) + g[:h] + [kchk] + stamp_n("kchk") + spread(g[h:], kdm)
    else:
        main = weave(main, rarr_write() + stats_publish(zero=True), 4, 24)
        main = weave(main, kvi, 64 + 4, 96)
        zst = []
        tail = q_epilogue(20) + [Wait(*toks(kvst)), BAR(), flag_store(F_KV, 127)] + kpre + [kchk] + kdm + stamp_at(4)
    return spd, main + tail, kdm, zst

KF, S0, S1, Mc, Ma, P0, P1, Vf = 128, 144, 160, 176, 192, 208, 216, 224
OO = [240, 16]
Cz = 32
vKa, vTmp, vM, vPz, vPzA = 120, 121, 122, 123, 124
RO = [48, 52]
Q = accD
sBad = 86; sRet = 84

def att_setup(kdm, zst):
    c = []
    c += [I(f"s_lshl_b32 {s(sT1)}, {s(sW)}, 12"), I(f"v_add_u32 {v(vKa)}, {s(sT1)}, {v(vL16)}"),
          I(f"s_mov_b32 {s(sVm)}, 0xffff"), I(f"s_mov_b32 {s(sVm + 1)}, 0xffff")]
    c += [I(f"v_bfe_u32 {v(125)}, {v(vL16)}, 4, 5"), I(f"v_lshrrev_b32 {v(126)}, 9, {v(vL16)}"), I(f"v_lshlrev_b32 {v(126)}, 2, {v(126)}"),
          I(f"v_sub_u32 {v(125)}, {v(125)}, {v(126)}"), I(f"v_mov_b32 {v(127)}, 0xff800000")]
    for r in range(0, 16, 2):
        k0 = (r & 3) + 8 * (r >> 2)
        c += [I(f"v_cmp_gt_i32 vcc, {k0}, {v(125)}"), I(f"v_cmp_gt_i32 {s(sMask, 2)}, {k0 + 1}, {v(125)}"), I(f"v_mov_b32 {v(Vf + r)}, {s(sOnes)}"),
              I(f"v_cndmask_b32 {v(Mc + r)}, 0, {v(127)}, vcc"), I(f"v_cndmask_b32 {v(Mc + r + 1)}, 0, {v(127)}, {s(sMask, 2)}"),
              I(f"v_mov_b32 {v(Vf + r + 1)}, {s(sOnes)}"),
              I(f"v_xor_b32 {v(Ma + r)}, {v(Mc + r)}, {v(127)}"), I(f"v_xor_b32 {v(Ma + r + 1)}, {v(Mc + r + 1)}, {v(127)}")]
    c += [I(f"s_min_u32 {s(sJmin)}, {s(sTB)}, 8"), I(f"s_sub_u32 {s(sJmin)}, 8, {s(sJmin)}")]
    c += [Wait(*(toks(kdm) + toks(zst))), I("s_waitcnt lgkmcnt(0)"), BAR()] + ([flag_store(F_Z, 126)] if zst else []) + stamp_at(6)
    return c

def maxops(S, first):
    o = []
    if first:
        o.append(I(f"v_max3_f32 {v(vM)}, {v(S)}, {v(S + 1)}, {v(S + 2)}"))
        for e in range(3, 15, 2): o.append(I(f"v_max3_f32 {v(vM)}, {v(vM)}, {v(S + e)}, {v(S + e + 1)}"))
        o.append(I(f"v_max_f32 {v(vM)}, {v(vM)}, {v(S + 15)}"))
    else:
        for e in range(0, 16, 2): o.append(I(f"v_max3_f32 {v(vM)}, {v(vM)}, {v(S + e)}, {v(S + e + 1)}"))
    return o
def att_scale(hd, check):
    O = OO[hd]; o = []
    if check:
        o += [I(f"v_max3_f32 {v(vM)}, |{v(O)}|, |{v(O + 1)}|, |{v(O + 2)}|"), I(f"v_max3_f32 {v(vM)}, {v(vM)}, |{v(O + 3)}|, |{v(O + 4)}|"),
              I(f"v_max3_f32 {v(vM)}, {v(vM)}, |{v(O + 5)}|, |{v(O + 6)}|"), I(f"v_max3_f32 {v(vM)}, {v(vM)}, |{v(O + 7)}|, |{v(O + 7)}|"),
              [I(f"v_cmp_nge_f32 vcc, {hx(fbits(2.0 ** 60))}, {v(O + 8)}"),
               I(f"s_mov_b64 {s(sBad, 2)}, vcc") if hd == 0 else I(f"s_or_b64 {s(sBad, 2)}, {s(sBad, 2)}, vcc")],
              [I(f"v_cmp_nle_f32 vcc, {hx(fbits(2.0 ** -60))}, {v(O + 8)}"), I(f"s_or_b64 {s(sBad, 2)}, {s(sBad, 2)}, vcc")],
              [I(f"v_cmp_nge_f32 vcc, {hx(fbits(2.0 ** 126))}, {v(vM)}"), I(f"s_or_b64 {s(sBad, 2)}, {s(sBad, 2)}, vcc")]]
    o += [I(f"v_rcp_f32 {v(vTmp)}, {v(O + 8)}")]
    o += [I(f"v_mul_f32 {v(O + e)}, {v(O + e)}, {v(vTmp)}") for e in range(8)]
    o += [I(f"v_cvt_pk_bf16_f32 {v(RO[hd] + j)}, {v(O + 2 * j)}, {v(O + 2 * j + 1)}") for j in range(4)]
    return o
def v_reads(j, hd, f):
    o = j * 4096 + 2048 + hd * 256
    return [I(f"s_mov_b64 exec, {s(sVm, 2)}"), dsr(v(f, 4), vKa, o), dsr(v(f + 4, 4), vKa, o + 1024), I("s_mov_b64 exec, -1")]

def attention(edge, hooks, otok):
    nb = 8 if edge else 9
    blocks = [(hd, j) for hd in range(2) for j in range(8, 8 - nb, -1)]
    N = len(blocks)
    hk = {k: [] for k in range(N)}
    for k in range(18): hk[(k * N) // 18] += hooks.get(k, [])
    kr = {}; vr = {}
    def kread(k):
        hd, j = blocks[k]; kr[k] = dsr(v(KF + 4 * (k % 4), 4), vKa, j * 4096 + hd * 1024); return [kr[k]]
    def vread(k):
        hd, j = blocks[k]; vr[k] = v_reads(j, hd, Vf + 8 * (k & 1)); return [vr[k]]
    def ms(k):
        hd, j = blocks[k]; o = []
        if j == 8: C = v(Mc, 16)
        elif edge:
            C = v(Cz, 16)
            if j == 7: o += [I(f"v_mov_b32 {v(Cz + r)}, 0") for r in range(16)]
            lo, lb = newlab("cz"), newlab("czb")
            slow.extend([Label(lo), I("s_nop 7")] + [I(f"v_mov_b32 {v(Cz + r)}, 0xff800000") for r in range(16)] + [I("s_nop 1"), I(f"s_branch {lb}")])
            o += [I(f"s_cmp_eq_u32 {s(sJmin)}, {j + 1}"), I(f"s_cbranch_scc1 {lo}"), Label(lb)]
        else: C = v(Ma, 16) if j == 0 else "0"
        return o + [Wait(kr[k].tok), mfma([S0, S1][k & 1], v(KF + 4 * (k % 4), 4), v(Q + 4 * hd, 4), C)]
    def pv(k, u):
        hd, j = blocks[k]; f = Vf + 8 * (k & 1) + 4 * u; P = [P0, P1][k & 1] + 4 * u; O = OO[hd]
        return ([Wait(vr[k][2].tok)] if u == 0 else []) + [mfma(O, v(f, 4), v(P, 4), "0" if (j == 8 and u == 0) else v(O, 16))]
    top = hooks.get("top", [])
    c = kread(0) + kread(1) + kread(2) + vread(0)
    if edge: c += top + hooks.get("norm", [])
    c += ms(0) + ms(1)
    if not edge: c += top
    for k in range(N):
        S = [S0, S1][k & 1]; P = [P0, P1][k & 1]
        ex = [I(f"v_exp_f32 {v(S + e)}, {v(S + e)}") for e in range(16)]
        cv = [I(f"v_cvt_pk_bf16_f32 {v(P + e)}, {v(S + 2 * e)}, {v(S + 2 * e + 1)}") for e in range(8)]
        if k == 0: c += vread(1) + kread(3) + ex
        else:
            c += ex[:2]
            if k + 1 < N: c += ms(k + 1)
            c += ex[2:7] + pv(k - 1, 0) + ex[7:12] + pv(k - 1, 1)
            if k + 1 < N: c += vread(k + 1)
            if k + 3 < N: c += kread(k + 3)
            c += ex[12:]
        c += cv + hk[k]
        if not edge and k == OPT["zn"]: c += hooks.get("norm", [])
        if k == nb + 1: c += att_scale(0, True)
        if k == nb - 1: c += stamp_n("a0p2")
    c += pv(N - 1, 0) + pv(N - 1, 1)
    c += [I(f"s_lshl_b32 {s(sT3)}, {s(sTB)}, 4"), I(f"s_add_u32 {s(sT3)}, {s(sT3)}, {s(sHP)}"), I(f"s_lshl_b32 {s(sT3)}, {s(sT3)}, 11"),
          I(f"s_add_u32 {s(sT3)}, {s(sT3)}, {WS_O}")]
    c += hooks.get("end", [])
    lb = newlab("ok")
    c += att_scale(1, True) + [I(f"s_cmp_eq_u64 {s(sBad, 2)}, 0"), I(f"s_cbranch_scc1 {lb}"), I(f"s_call_b64 {s(sRet, 2)}, L_attslow"), Label(lb)]
    c += [gstore(v(RO[hd], 4), vL16, sWs, s(sT3), 1024 * hd, tok=otok[hd]) for hd in range(2)]
    return c

def attention_slow():
    Cm, Cx = S1, 32
    c = [Label("L_attslow"), I("s_nop 7")]
    for hd in range(2):
        q = v(Q + 4 * hd, 4); O = OO[hd]
        l1, l2 = newlab("s1"), newlab("s2")
        for j in range(8, -1, -1):
            c += [dsr(v(KF, 4), vKa, j * 4096 + hd * 1024), I("s_waitcnt lgkmcnt(0)"),
                  mfma(S0, v(KF, 4), q, v(Mc, 16) if j == 8 else (v(Ma, 16) if j == 0 else "0"))] + maxops(S0, j == 8)
            if j > 0: c += [I(f"s_cmp_eq_u32 {s(sJmin)}, {j}"), I(f"s_cbranch_scc1 {l1}")]
        c += [Label(l1), I("s_nop 7")] + cross_half("v_max_f32", vM, vTmp)
        c += [I(f"v_sub_f32 {v(Cm + r)}, 0, {v(vM)}") for r in range(16)]
        for j in range(8, -1, -1):
            if j in (8, 0): c += [I(f"v_sub_f32 {v(Cx + r)}, {v((Mc if j == 8 else Ma) + r)}, {v(vM)}") for r in range(16)]
            c += [dsr(v(KF, 4), vKa, j * 4096 + hd * 1024)] + v_reads(j, hd, Vf) + [I("s_waitcnt lgkmcnt(0)"), mfma(S0, v(KF, 4), q, v(Cx if j in (8, 0) else Cm, 16))]
            c += [I(f"v_exp_f32 {v(S0 + e)}, {v(S0 + e)}") for e in range(16)]
            c += [I(f"v_cvt_pk_bf16_f32 {v(P0 + e)}, {v(S0 + 2 * e)}, {v(S0 + 2 * e + 1)}") for e in range(8)]
            c += [mfma(O, v(Vf, 4), v(P0, 4), "0" if j == 8 else v(O, 16)), mfma(O, v(Vf + 4, 4), v(P0 + 4, 4), v(O, 16)), I("s_nop 7")]
            if j > 0: c += [I(f"s_cmp_eq_u32 {s(sJmin)}, {j}"), I(f"s_cbranch_scc1 {l2}")]
        c += [Label(l2), I("s_nop 11")] + att_scale(hd, False)
    c += [I("s_nop 1"), I(f"s_setpc_b64 {s(sRet, 2)}")]
    return c

ZF, acc0, acc1, Cb, vZr, vBv = 128, 160, 192, 224, 240, 244
vTRp, vTRy, vWo, vWout, vRingV, vPoll, vPollA = 245, 246, 247, 248, 249, 250, 251
acc3 = 48; RES = 20; vOut = 28

def z_poll_addr(va):
    return [I(f"v_bfe_u32 {v(va)}, {v(vL16)}, 7, 1"), I(f"v_xor_b32 {v(va)}, {s(sCG)}, {v(va)}"), I(f"v_and_b32 {v(va + 1)}, 0x70, {v(vL16)}"),
            I(f"v_add_u32 {v(va)}, {v(va)}, {v(va + 1)}"), I(f"v_lshlrev_b32 {v(va)}, 8, {v(va)}"),
            [I(f"s_lshl_b32 {s(sT1)}, {s(sP)}, 15"), I(f"s_add_u32 {s(sT1)}, {s(sT1)}, {WS_FLAGS + F_Z * 65536}"), I(f"v_add_u32 {v(va)}, {s(sT1)}, {v(va)}")]]
def row_poll_addr(va, ftype, nmax):
    return [I(f"v_bfe_u32 {v(va)}, {v(vL16)}, 4, 4"), I(f"v_min_u32 {v(va)}, {nmax}, {v(va)}"), I(f"v_lshlrev_b32 {v(va)}, 8, {v(va)}"),
            [I(f"s_lshl_b32 {s(sT1)}, {s(sRB)}, 12"), I(f"s_add_u32 {s(sT1)}, {s(sT1)}, {WS_FLAGS + ftype * 65536}"), I(f"v_add_u32 {v(va)}, {s(sT1)}, {v(va)}")]]

def ring_setup_early():
    it = [I(f"s_lshl_b32 {s(sRingR)}, {s(sW)}, 12"), I(f"s_xor_b32 {s(sT1)}, {s(sCG)}, 1"), I(f"s_lshl_b32 {s(sT1)}, {s(sT1)}, 18"),
          I(f"s_lshl_b32 {s(sT2)}, {s(sP)}, 17"), I(f"s_add_u32 {s(sT1)}, {s(sT1)}, {s(sT2)}"), I(f"s_add_u32 {s(sT1)}, {s(sT1)}, {s(sRingR)}"),
          I(f"s_add_u32 {s(sZbase)}, {s(sT1)}, {WS_Z}")]
    if OPT["rot"]:
        it += [I(f"s_and_b32 {s(sT1)}, {s(sRB)}, 3"), I(f"s_lshl_b32 {s(sZrot)}, {s(sT1)}, 15")]
    else: it += [I(f"s_mov_b32 {s(sZrot)}, 0")]
    return [it]

NQ = 27
SCHED = {0: (4, 5, 16), 2: (6, 7, 17), 4: (8, 9, 18), 6: (10, 11, 19), 8: (12, 13), 10: (14, 15), 12: (20, 21), 14: (22, 23), 16: (24, 25)}
SLOT = {0: 6, 1: 7, 2: 8, 3: 9}
_free = [0, 1, 2, 3, 4, 5]
for _q in sorted(SCHED):
    if _q: _free += [SLOT[_q - 2], SLOT[_q - 1]]
    for _x in SCHED[_q]: SLOT[_x] = _free.pop(0)
SLOT[26] = SLOT[23]
def slot(q): return SLOT[q] * 16384
RED = sorted([slot(24), slot(25)])
assert RED[1] - RED[0] + 8192 < 65536
RT = {q: [Tok("vm", f"ring{q}_{i}") for i in range(4)] for q in range(NQ)}
def ring_dma(q):
    it = [I(f"s_add_u32 m0, {s(sRingR)}, {slot(q)}")]
    if q < 16:
        pre = []
        if q == 8:
            pre = [I(f"s_lshl_b32 {s(sT1)}, {s(sP)}, 19"), I(f"s_add_u32 {s(sZbase)}, {s(sZbase)}, {s(sT1)}"), I(f"s_sub_u32 {s(sZbase)}, {s(sZbase)}, 262144")]
        it.append(pre + [I(f"s_add_u32 {s(sZoff)}, {s(sZbase)}, {s(sZrot)}"), I(f"s_add_u32 {s(sZrot)}, {s(sZrot)}, 16384"), I(f"s_and_b32 {s(sZrot)}, {s(sZrot)}, 0x1ffff")])
        it += [dma(vL16, sWs, s(sZoff), 1024 * i, sc1=True, tok=RT[q][i]) for i in range(4)]
    else:
        va, r = (vWo, sWo) if q >= 23 else (vWout, sWout)
        if q >= 23:
            it.append([I(f"v_add_u32 {v(vTRy)}, {s(sR4)}, {v(va)}"), I(f"s_add_u32 {s(sR4)}, {s(sR4)}, 65536"), I(f"s_and_b32 {s(sR4)}, {s(sR4)}, 0x3ffff")])
        else:
            it.append([I(f"v_add_u32 {v(vTRy)}, {s(sR3)}, {v(va)}"), I(f"s_add_u32 {s(sR3)}, {s(sR3)}, 65536"), I(f"s_cmp_eq_u32 {s(sR3)}, {7 * 65536}"),
                       I(f"s_cselect_b32 {s(sR3)}, 0, {s(sR3)}")])
        it += [dma(vTRy, r, s(sOO + i) if i else "0", 1024 * i, tok=RT[q][i]) for i in range(4)]
    return it

def p3_setup():
    t0, t1, t2 = T, T + 1, T + 2
    it = [[I(f"s_lshl_b32 {s(sN0)}, {s(sC)}, 7"), I(f"s_lshr_b32 {s(sKH)}, {s(sW)}, 1"),
           I(f"s_and_b32 {s(sT1)}, {s(sW)}, 1"), I(f"s_lshl_b32 {s(sT2)}, {s(sP)}, 1"), I(f"s_add_u32 {s(sT1)}, {s(sT1)}, {s(sT2)}"),
           I(f"s_lshl_b32 {s(sT2)}, {s(sRB)}, 2"), I(f"s_add_u32 {s(sTok3)}, {s(sT1)}, {s(sT2)}")],
          ([I(f"s_add_u32 {s(sT1)}, {s(sRB)}, {s(sC)}"), I(f"s_and_b32 {s(sT1)}, {s(sT1)}, 3"), I(f"s_lshl_b32 {s(sR4)}, {s(sT1)}, 16"), I(f"s_lshl_b32 {s(sR4o)}, {s(sT1)}, 12"),
            I(f"s_and_b32 {s(sT1)}, {s(sRB)}, 3"), I(f"s_lshl_b32 {s(sT1)}, {s(sT1)}, 1"), I(f"s_add_u32 {s(sT1)}, {s(sT1)}, {s(sC)}"),
            I(f"s_sub_u32 {s(sT2)}, {s(sT1)}, 7"), I(f"s_cmp_ge_u32 {s(sT1)}, 7"), I(f"s_cselect_b32 {s(sT1)}, {s(sT2)}, {s(sT1)}"),
            I(f"s_lshl_b32 {s(sR3)}, {s(sT1)}, 16"), I(f"s_lshl_b32 {s(sR3y)}, {s(sT1)}, 12")] if OPT["rot"] else
           [I(f"s_mov_b32 {s(r)}, 0") for r in (sR4, sR4o, sR3, sR3y)]),
          I(f"v_bfe_u32 {v(t0)}, {v(vL16)}, 6, 3"), I(f"v_lshlrev_b32 {v(t0)}, 10, {v(t0)}"), I(f"v_and_b32 {v(t1)}, 48, {v(vL16)}"),
          I(f"v_or_b32 {v(t0)}, {v(t0)}, {v(t1)}"), I(f"v_lshrrev_b32 {v(t1)}, 9, {v(vL16)}"), I(f"v_lshl_add_u32 {v(t0)}, {v(t1)}, 6, {v(t0)}"),
          [I(f"s_and_b32 {s(sT1)}, {s(sW)}, 1"), I(f"s_lshl_b32 {s(sT1)}, {s(sT1)}, 15"), I(f"s_add_u32 {s(sT1)}, {s(sT1)}, {s(sN0)}"),
           I(f"v_add_u32 {v(t0)}, {s(sT1)}, {v(t0)}")],
          [I(f"s_mul_i32 {s(sT1)}, {s(sKH)}, {448 * 1024}"), I(f"v_add_u32 {v(vWout)}, {s(sT1)}, {v(t0)}")],
          [I(f"s_lshl_b32 {s(sT1)}, {s(sKH)}, 18"), I(f"v_add_u32 {v(vWo)}, {s(sT1)}, {v(t0)}")],
          I(f"v_bfe_u32 {v(t0)}, {v(vL16)}, 6, 2"), I(f"v_lshl_add_u32 {v(t0)}, {v(t1)}, 2, {v(t0)}"), I(f"v_lshlrev_b32 {v(t0)}, 6, {v(t0)}"),
          I(f"v_bfe_u32 {v(t2)}, {v(vL16)}, 8, 1"), I(f"v_lshl_add_u32 {v(t0)}, {v(t2)}, 5, {v(t0)}"),
          I(f"v_bfe_u32 {v(t2)}, {v(vL16)}, 4, 2"), I(f"v_lshl_add_u32 {v(t0)}, {v(t2)}, 3, {v(t0)}"),
          [I(f"s_lshl_b32 {s(sT1)}, {s(sKH)}, 13"), I(f"v_add_u32 {v(vTRp)}, {s(sT1)}, {v(t0)}")]]
    return it

OT = [Tok("vm", f"o{i}") for i in range(16)]
def o_loads():
    it = [[I(f"s_lshl_b32 {s(sT2)}, {s(sTok3)}, 15"), I(f"s_lshl_b32 {s(sT1)}, {s(sKH)}, 14"), I(f"s_add_u32 {s(sT2)}, {s(sT2)}, {s(sT1)}"),
           I(f"s_add_u32 {s(84)}, {s(sT2)}, {WS_O}")]]
    for i in range(16):
        if i % 4 == 0: it.append([I(f"s_add_u32 {s(sT3)}, {s(84)}, {s(sR4o)}"), I(f"s_add_u32 {s(sR4o)}, {s(sR4o)}, 4096"), I(f"s_and_b32 {s(sR4o)}, {s(sR4o)}, 0x3fff")])
        it.append(gload(a(4 * i, 4), vL16, sWs, s(sT3), 1024 * (i % 4), sc1=True, tok=OT[i]))
    return it
RSD = [Tok("vm", "res0"), Tok("vm", "res1")]
def res_loads():
    return [I(f"v_lshrrev_b32 {v(vOut)}, 7, {v(vL16)}"), I(f"v_lshlrev_b32 {v(vOut)}, 10, {v(vOut)}"), I(f"v_and_b32 {v(vOut + 1)}, 0x70, {v(vL16)}"),
            I(f"v_or_b32 {v(vOut)}, {v(vOut)}, {v(vOut + 1)}"),
            [I(f"s_lshl_b32 {s(sT1)}, {s(sRB)}, 17"), I(f"s_lshl_b32 {s(sT2)}, {s(sP)}, 16"), I(f"s_add_u32 {s(sT1)}, {s(sT1)}, {s(sT2)}"),
             I(f"s_lshl_b32 {s(sT2)}, {s(sW)}, 13"), I(f"s_add_u32 {s(sT1)}, {s(sT1)}, {s(sT2)}"), I(f"s_add_u32 {s(sT1)}, {s(sT1)}, {s(sN0)}"),
             I(f"v_add_u32 {v(vOut)}, {s(sT1)}, {v(vOut)}")],
            I(f"v_add_u32 {v(vOut + 1)}, 32768, {v(vOut)}"),
            gload(v(RES, 4), vOut, sX, "0", tok=RSD[0]), gload(v(RES + 4, 4), vOut + 1, sX, "0", tok=RSD[1])]

def p2_setup():
    t0, t1, t2, t3 = T, T + 1, T + 2, T + 3
    it = [I(f"v_bfe_u32 {v(t0)}, {v(vL16)}, 8, 1"), I(f"v_bfe_u32 {v(t1)}, {v(vL16)}, 5, 1"),
          I(f"v_lshlrev_b32 {v(t2)}, 10, {v(t0)}"), I(f"v_lshl_add_u32 {v(t2)}, {v(t1)}, 9, {v(t2)}"),
          I(f"v_bfe_u32 {v(t3)}, {v(vL16)}, 4, 1"), I(f"v_lshl_add_u32 {v(t2)}, {v(t3)}, 3, {v(t2)}"), I(f"v_add_u32 {v(t2)}, {slot(0) & ~0xffff}, {v(t2)}"),
          I(f"v_lshlrev_b32 {v(t0)}, 3, {v(t0)}"), I(f"v_lshl_add_u32 {v(t0)}, {v(t1)}, 2, {v(t0)}"),
          I(f"v_lshrrev_b32 {v(t1)}, 9, {v(vL16)}"), I(f"v_lshl_add_u32 {v(t0)}, {v(t1)}, 3, {v(t0)}"),
          I(f"v_bfe_u32 {v(t1)}, {v(vL16)}, 6, 2"), I(f"v_add_u32 {v(t0)}, {v(t0)}, {v(t1)}")]
    for u in range(2):
        for e in range(2):
            d = vZr + 2 * u + e
            it += [I(f"v_add_u32 {v(d)}, {16 * u + 4 * e}, {v(t0)}"), I(f"v_and_b32 {v(d)}, 31, {v(d)}"), I(f"v_lshl_add_u32 {v(d)}, {v(d)}, 4, {v(t2)}")]
    bl = gload(v(vBv), t0, sB, s(sT1), op="ushort")
    it += [I(f"v_bfe_u32 {v(t0)}, {v(vL16)}, 4, 5"), I(f"v_lshlrev_b32 {v(t0)}, 1, {v(t0)}"), [I(f"s_lshl_b32 {s(sT1)}, {s(sTB)}, 6"), bl]]
    return it, bl

def win(q): return slot(q) & ~0xffff
def rewin(regs_, q, prev=None):
    d = win(q) - (win(q - 1) if prev is None else prev)
    return [I(f"v_add_u32 {v(r)}, {hx(d)}, {v(r)}") for r in regs_] if d else []

def phase2(otok):
    rd = {}
    def reads(n):
        q, r = divmod(n, 8); tbl, u = r >> 1, r & 1; f = ZF + 8 * (n % 4)
        rd[n] = [dstr(v(f + 4 * ft + 2 * e, 2), vZr + 2 * u + e, slot(q) - win(q) + tbl * 4096 + ft * 2048) for ft in range(2) for e in range(2)]
        adj = rewin(range(vZr, vZr + 4), q) if r == 0 and q else []
        return adj + rd[n][:2], rd[n][2:]
    setup, bl = p2_setup()
    pre = {q: [] for q in range(17)}; post = {q: [] for q in range(17)}; fill = {q: [] for q in range(17)}
    sched = SCHED
    pre[4] += otok; post[4] += [flag_store(F_O, 30)]
    PK = T + 0 if False else 128 + 0
    PK = 64; CK = 30
    x3 = lambda d, a_, b_, c_: I(f"v_bitop3_b32 {v(d)}, {a_}, {v(b_)}, {v(c_)} bitop3:0x96")
    def cksum(d): return [x3(d, s(sNonce) if k == 0 else v(d), PK + 2 * k, PK + 2 * k + 1) for k in range(8)]
    pit = [[I(f"s_lshl_b32 {s(sT2)}, {s(sRB)}, 4"), I(f"s_add_u32 {s(sT2)}, {s(sT2)}, {s(sCG)}"), I(f"s_lshl_b32 {s(sT2)}, {s(sT2)}, 2"),
            I(f"s_add_u32 {s(sT2)}, {s(sT2)}, {s(sW)}"), I(f"s_lshl_b32 {s(sT2)}, {s(sT2)}, 13"), I(f"s_add_u32 {s(sPa)}, {s(sT2)}, {WS_PART}"),
            I(f"s_add_u32 {s(sPb)}, {s(sPa)}, 4096")], I(f"v_lshrrev_b32 {v(31)}, 2, {v(vL16)}")]
    for k in range(4):
        pit += [I(f"v_cvt_pk_bf16_f32 {v(PK + 4 * k + j)}, {v(acc0 + 8 * k + 2 * j)}, {v(acc0 + 8 * k + 2 * j + 1)}") for j in range(4)]
        pit += [gstore(v(PK + 4 * k, 4), vL16, sWs, s(sPa), 1024 * k)]
        pit += cksum(CK)[2 * k:2 * k + 2]
    pit += [gstore(v(CK), 31, sWs, s(sPb), op="dword"), I(f"s_xor_b32 {s(sPa)}, {s(sPa)}, 32768"), I(f"s_xor_b32 {s(sPb)}, {s(sPb)}, 32768")]
    def ploads(): return [gload(v(CK), 31, sWs, s(sPb), sc1=True, op="dword")] + [gload(v(PK + 4 * k, 4), vL16, sWs, s(sPa), 1024 * k, sc1=True) for k in range(4)]
    pld = ploads()
    ls, lb, ll = newlab("slow"), newlab("back"), newlab("loop")
    slow.extend([Label(ls), I(f"s_mov_b32 {s(sSpin)}, {OPT['spin']}"), Label(ll), I("s_sleep 1")] + ploads() + [I("s_waitcnt vmcnt(0)")] + cksum(vPoll) + [
        I(f"v_cmp_ne_u32 {s(sMask, 2)}, {v(CK)}, {v(vPoll)}"), I("s_nop 1"), I(f"s_cmp_eq_u64 {s(sMask, 2)}, 0"), I(f"s_cbranch_scc1 {lb}"),
        I(f"s_sub_u32 {s(sSpin)}, {s(sSpin)}, 1"), I(f"s_cmp_lg_u32 {s(sSpin)}, 0"), I(f"s_cbranch_scc1 {ll}"), I(f"s_branch {lb}")])
    pchk = [Wait(pld[4].tok)] + cksum(vPoll) + [[I(f"v_cmp_ne_u32 {s(sMask, 2)}, {v(CK)}, {v(vPoll)}"), I(f"s_cmp_lg_u64 {s(sMask, 2)}, 0"), I(f"s_cbranch_scc1 {ls}"), Label(lb)]] + stamp_n("pchk")
    pchk += [[I(f"s_or_b32 {s(sT1)}, {s(sRB)}, {s(sCG)}"), I(f"s_cmp_eq_u32 {s(sT1)}, 0"), I(f"s_cselect_b32 {s(sT1)}, 0, 0x80000000"),
              I(f"v_or_b32 {v(30)}, {s(sT1)}, {v(vFL)}"), I(f"v_mov_b32 {v(31)}, {s(sNonce)}"), gstore(v(31), 30, sWs, "0", WS_EPOCH, op="dword")]]
    for j in range(16):
        g = acc0 + 2 * j
        pchk += [I(f"v_and_b32 {v(g + 1)}, 0xffff0000, {v(PK + j)}"), I(f"v_lshlrev_b32 {v(g)}, 16, {v(PK + j)}"),
                 I(f"v_mul_f32 {v(g + 1)}, {v(g + 1)}, {v(accB + 2 * j + 1)}"), I(f"v_mul_f32 {v(g)}, {v(g)}, {v(accB + 2 * j)}")]
    ol = poll_issue(vPoll, vPollA)
    for q in sched:
        for x in sched[q]: fill[q] += ring_dma(x)
    fill[10] += row_poll_addr(vPollA, F_O, 15) + [ol]
    fill[12] = [poll_check(ol, vPoll, vPollA)] + res_loads() + fill[12]
    r0, r1, r2, r3 = reads(0), reads(1), reads(2), reads(3)
    main = setup + p3_setup() + [Wait(*(RT[0] + RT[1])), I("s_waitcnt lgkmcnt(0)"), BAR()] + stamp_n("q0") + list(r0 + r1 + r2 + r3)
    for n in range(128):
        ps = n // 64; f = ZF + 8 * (n % 4); d = acc1 if ps else acc0; first = n % 64 == 0
        B = a(4 * (n % 64), 4)
        c0 = ("0" if ps == 0 else v(Cb, 16)) if first else v(d, 16)
        c1 = ("0" if ps == 0 else v(Cb, 16)) if first else v(d + 16, 16)
        m0, m1 = mfma(d, v(f, 4), B, c0), mfma(d + 16, v(f + 4, 4), B, c1)
        main += [Wait(*toks(rd[n])), m0]
        nx = n + 4
        if nx % 16 == 0 and nx <= 128:
            q = nx // 8
            main += [m1, [Wait(*(toks(rd[n + 3]) + (RT[q] + RT[q + 1] if q < 16 else []) + pre[q])), BAR()] + stamp_n(f"q{q}") + post[q]]
            if nx < 128:
                ra, rb_ = reads(nx); main += ra + rb_
        elif nx < 128:
            ra, rb_ = reads(nx); main += ra + [m1] + rb_
        else: main += [m1]
    main = flat1(main)
    for q in range(0, 17, 2):
        lo = max(2 * (8 * q - 4) + 2, 0); hi = min(2 * (8 * (q + 2) - 4) + 1, 256)
        main = weave(main, fill[q], lo, hi)
    cb = [Wait(bl.tok), I(f"v_lshlrev_b32 {v(vBv)}, 16, {v(vBv)}")] + [I(f"v_mov_b32 {v(Cb + r)}, {v(vBv)}") for r in range(16)]
    main = weave(main, cb, 60, 120)
    main = weave(main, pit, 130, OPT['ps1'])
    main = weave(main, pld, OPT["pl0"], OPT["pl0"] + 5)
    main = weave(main, pchk, OPT["pl1"], 256)
    ep = []
    yst = []
    ep += [[I(f"s_mul_i32 {s(sT2)}, {s(sTB)}, 56"), I(f"s_lshl_b32 {s(sT1)}, {s(sCG)}, 2"), I(f"s_add_u32 {s(sT2)}, {s(sT2)}, {s(sT1)}"),
            I(f"s_lshl_b32 {s(sT2)}, {s(sT2)}, 10"), I(f"s_add_u32 {s(sT2)}, {s(sT2)}, {WS_Y}")]]
    for ft in range(2):
        b = acc1 + 16 * ft
        for i in range(2):
            ep += [I(f"v_fma_f32 {v(b + e)}, {v(b + e)}, {v(accB + 16 * ft + e)}, {v(acc0 + 16 * ft + e)}") for e in range(8 * i, 8 * i + 8)]
            ep += [I(f"v_cvt_pk_bf16_f32 {v(b + 8 * i + j)}, {v(b + 8 * i + 2 * j)}, {v(b + 8 * i + 2 * j + 1)}") for j in range(4)]
            g = gstore(v(b + 8 * i, 4), vL16, sWs, s(sT2), 1024 * (2 * ft + i)); yst.append(g); ep.append(g)
    return main + stamp_at(7) + ep + stamp_n("ep"), yst
sPa, sPb = 61, 62

def flat1(x):
    out = []
    for e in x:
        if isinstance(e, list) and e and all(isinstance(y, Ins) and (y.kind == "ds" or y.op == "v_add_u32") for y in e): out.extend(e)
        else: out.append(e)
    return out

YT = [Tok("vm", f"yst{i}") for i in range(4)]
def light2(otok):
    c = ring_setup_early() + p3_setup() + [Wait(*otok), BAR(), flag_store(F_O, 30)]
    for q in range(16, 26): c += ring_dma(q)
    c += res_loads()
    ol = poll_issue(vPoll, vPollA)
    c += row_poll_addr(vPollA, F_O, 15) + [ol, poll_check(ol, vPoll, vPollA, sleep=8)]
    return c

def phase3():
    c = []
    rd = {}
    F3 = ZF
    stage = lambda n: 23 + n // 4 if n < 16 else 16 + (n - 16) // 4
    cur = [0]
    def reads(n):
        q = stage(n); j = n % 4; f = F3 + 8 * (n % 4)
        rd[n] = [dstr(v(f + 4 * u + 2 * e, 2), vTRp, slot(q) - win(q) + j * 2048 + e * 1024 + u * 512) for u in range(2) for e in range(2)]
        adj = rewin([vTRp], q, cur[0]); cur[0] = win(q)
        return adj + rd[n]
    c += o_loads()
    c += row_poll_addr(vPollA, F_Y, 13)
    c += [I(f"s_mul_i32 {s(sT2)}, {s(sTok3)}, 56"), I(f"s_mul_i32 {s(sT1)}, {s(sKH)}, 28"), I(f"s_add_u32 {s(sT2)}, {s(sT2)}, {s(sT1)}"),
          I(f"s_lshl_b32 {s(sT2)}, {s(sT2)}, 10"), I(f"s_add_u32 {s(sPa)}, {s(sT2)}, {WS_Y}")]
    c += [Wait(*(YT + RT[25])), BAR(), flag_store(F_Y, T + 14)] + stamp_n("ybar")
    yl = poll_issue(vPoll, vPollA)
    c += reads(0) + reads(1) + reads(2) + reads(3)
    for n in range(16):
        f = F3 + 8 * (n % 4); B = a(4 * n, 4); nx = n + 4
        c += [Wait(*(toks(rd[n]) + [OT[n]])), mfma(acc3, v(f, 4), B, "0" if n == 0 else v(acc3, 16))]
        m1 = mfma(acc3 + 16, v(f + 4, 4), B, "0" if n == 0 else v(acc3 + 16, 16))
        if n == 1: c += [m1, Wait(*toks(rd[3])), BAR()] + ring_dma(26) + reads(nx)
        elif nx == 12: c += [m1, Wait(*RT[26]), BAR()] + reads(nx)
        else:
            r = reads(nx); c += r[:-2] + [m1] + r[-2:]
        if n == OPT["yp"]: c += [yl]
    c += stamp_at(8)
    wa, ra = 32, 40
    c += [I(f"v_bfe_u32 {v(T)}, {v(vL16)}, 4, 4"), I(f"v_lshrrev_b32 {v(T + 1)}, 9, {v(vL16)}"), I(f"v_xor_b32 {v(T)}, {v(T)}, {v(T + 1)}"),
          I(f"v_lshlrev_b32 {v(T)}, 4, {v(T)}"), I(f"v_and_b32 {v(T + 1)}, 0x1f0, {v(vL16)}"), I(f"v_lshl_add_u32 {v(T)}, {v(T + 1)}, 4, {v(T)}"),
          I(f"s_and_b32 {s(sT1)}, {s(sW)}, 1"), I(f"s_lshl_b32 {s(sT1)}, {s(sT1)}, 13"), I(f"s_mul_i32 {s(sT3)}, {s(sKH)}, {RED[1] - RED[0]}"),
          I(f"s_add_u32 {s(sT1)}, {s(sT1)}, {s(sT3)}"), I(f"s_add_u32 {s(sT1)}, {s(sT1)}, {RED[0]}"), I(f"v_add_u32 {v(wa)}, {s(sT1)}, {v(T)}")]
    for i in range(1, 8): c.append(I(f"v_xor_b32 {v(wa + i)}, {32 * i}, {v(wa)}"))
    c += [I(f"v_lshrrev_b32 {v(T)}, 7, {v(vL16)}"), I(f"s_lshl_b32 {s(sT1)}, {s(sW)}, 3"), I(f"v_add_u32 {v(T)}, {s(sT1)}, {v(T)}"),
          I(f"v_and_b32 {v(T + 1)}, 15, {v(T)}"), I(f"v_bfe_u32 {v(T + 2)}, {v(vL16)}, 4, 3"), I(f"v_lshlrev_b32 {v(T + 2)}, 1, {v(T + 2)}"),
          I(f"v_xor_b32 {v(T + 1)}, {v(T + 1)}, {v(T + 2)}"), I(f"v_lshlrev_b32 {v(T + 1)}, 4, {v(T + 1)}"), I(f"v_lshl_add_u32 {v(T)}, {v(T)}, 8, {v(T + 1)}"),
          I(f"v_add_u32 {v(ra)}, {RED[0]}, {v(T)}"), I(f"v_xor_b32 {v(ra + 1)}, 16, {v(ra)}")]
    c += poll_check(yl, vPoll, vPollA, sleep=0)
    c += stamp_at(9)
    yld = {}
    def yload(k):
        o = [I(f"s_add_u32 {s(sPb)}, {s(sPa)}, {s(sR3y)}"), I(f"s_add_u32 {s(sR3y)}, {s(sR3y)}, 4096"), I(f"s_cmp_eq_u32 {s(sR3y)}, {7 * 4096}"),
             I(f"s_cselect_b32 {s(sR3y)}, 0, {s(sR3y)}")] if k % 4 == 0 else []
        yld[k] = gload(a(64 + 4 * k, 4), vL16, sWs, s(sPb), 1024 * (k % 4), sc1=True)
        return o + [yld[k]]
    LA = OPT["yla"]
    for k in range(LA): c += yload(k)
    for k in range(28):
        n = 16 + k; f = F3 + 8 * (n % 4); B = a(64 + 4 * k, 4)
        c += [Wait(*(toks(rd[n]) + [yld[k].tok])), mfma(acc3, v(f, 4), B, v(acc3, 16))]
        if k == 2: c += [BAR()]
        r = reads(n + 4) if k + 4 < 28 else []
        c += r[:-2] + [mfma(acc3 + 16, v(f + 4, 4), B, v(acc3 + 16, 16))] + r[-2:]
        if k + LA < 28: c += yload(k + LA)
    ws = [dsw(wa + 4 * u + q, v(acc3 + 16 * u + 4 * q, 4)) for u in range(2) for q in range(4)]
    c += stamp_n("y28") + ws + [Wait(*toks(ws)), BAR()] + stamp_n("red")
    D = 128
    rr = [[dsr(v(D + 16 * k + 8 * hf + 4 * j, 4), ra + j, k * 8192 + hf * (RED[1] - RED[0])) for hf in range(2) for j in range(2)] for k in range(2)]
    c += rr[0] + rr[1]
    for k in range(2):
        b = D + 16 * k; x = RES + 4 * k
        c += [Wait(*(toks(rr[k]) + [RSD[k]]))]
        c += [I(f"v_add_f32 {v(b + e)}, {v(b + e)}, {v(b + 8 + e)}") for e in range(8)]
        for j in range(4):
            c += [I(f"v_lshlrev_b32 {v(b + 8 + 2 * j)}, 16, {v(x + j)}"), I(f"v_and_b32 {v(b + 9 + 2 * j)}, 0xffff0000, {v(x + j)}")]
        c += [I(f"v_add_f32 {v(b + e)}, {v(b + e)}, {v(b + 8 + e)}") for e in range(8)]
        c += [I(f"v_cvt_pk_bf16_f32 {v(b + j)}, {v(b + 2 * j)}, {v(b + 2 * j + 1)}") for j in range(4)]
        c += [gstore(v(b, 4), vOut + k, sOut, "0", sc1=False)]
    c += stamp_at(10)
    if OPT["probe"]:
        c += [I("s_waitcnt lgkmcnt(0)"), I(f"s_sub_u32 {s(sT1)}, {s(sStamp + 2)}, {s(sStamp)}"), I(f"s_mul_i32 {s(sT1)}, {s(sT1)}, {0 if OPT['probe'] == 'end' else 4}"),
              I(f"s_cmp_eq_u32 {s(sC)}, 7"), I(f"s_cselect_b32 {s(sT1)}, 0, {s(sT1)}"), I(f"s_add_u32 {s(sT1)}, {s(sT1)}, 6000"), I(f"s_min_u32 {s(sT1)}, {s(sT1)}, 50000"), Label("L_probe"), I(f"s_memrealtime {s(sStamp + 4, 2)}"), I("s_waitcnt lgkmcnt(0)"),
              I(f"s_sub_u32 {s(sT2)}, {s(sStamp + 4)}, {s(sStamp)}"), I(f"s_cmp_lt_u32 {s(sT2)}, {s(sT1)}"), I("s_cbranch_scc1 L_probe")]
    if OPT["stamps"]:
        c += [I("s_waitcnt lgkmcnt(0)")]
        for i in range(7): c.append(I(f"v_mov_b32 {v(128 + i)}, {s(sStamp + 2 * i)}"))
        c += [I(f"s_lshl_b32 {s(sT1)}, s2, 8"), I(f"s_lshl_b32 {s(sT2)}, {s(sW)}, 6"), I(f"s_add_u32 {s(sT1)}, {s(sT1)}, {s(sT2)}"),
              I(f"s_add_u32 {s(sT1)}, {s(sT1)}, {WS_DBG}"), I(f"v_mov_b32 {v(140)}, 0")]
        for i in range(2): c.append(gstore(v(128 + 4 * i, 4), 140, sWs, s(sT1), 16 * i, sc1=False))
    return c

def build():
    fr, rest = front()
    lnf, wdF = rest(KFULL); lnl, wdL = rest(KLIGHT)
    spd, p1F, kdmF, zst = p1_main(KFULL, wdF, True)
    _, p1L, kdmL, _ = p1_main(KLIGHT, wdL, False)
    otok = [Tok("vm", "ost0"), Tok("vm", "ost1")]
    def hooks_full():
        zl = poll_issue(vPz, vPzA)
        h = {k: [] for k in range(18)}
        np_ = 14
        left = list(range(OPT["sp1"], 16)); d = dict(spd)
        for i, w in enumerate(left):
            pl = (i * np_) // len(left)
            r = sp_read(w)
            h[pl] += [Wait(*toks(d[w]))] + r
            if w + 3 < 16:
                d[w + 3] = sp_dma(w + 3)
                h[pl + 1] = [Wait(*toks(r))] + d[w + 3] + h[pl + 1]
        zp = OPT["zp"]
        h[zp] += ring_setup_early() + z_poll_addr(vPzA) + [zl]
        rest = [[poll_check(zl, vPz, vPzA)] + stamp_n("zchk") + ring_dma(0), ring_dma(1), ring_dma(2), ring_dma(3)]
        h["end"] = []
        for i, x in enumerate(rest):
            k = zp + 3 + i
            h[k if k < 18 else "end"] += x
        return h
    segs = {}
    segs["front"] = flat(fr + [I(f"s_cmp_ge_u32 {s(sCG)}, 14"), I("s_cbranch_scc1 L_light")])
    segs["fullP1"] = flat(lnf + stamp_at(3) + p1F + att_setup(kdmF, zst) + [I(f"s_cmp_lt_u32 {s(sRB)}, 2"), I("s_cbranch_scc1 L_fedge")])
    segs["fullAtt"] = flat(attention(False, hooks_full(), otok))
    p2, yst = phase2(otok)
    for g, t in zip(yst, YT): g.tok = t
    segs["P2"] = flat([Label("L_p2")] + stamp_at(5) + p2)
    segs["P3"] = flat([Label("L_p3")] + phase3() + [Label("L_end"), I("s_endpgm")])
    segs["fullEdge"] = flat([Label("L_fedge")] + attention(True, hooks_full(), otok) + [I("s_branch L_p2")])
    segs["lightP1"] = flat([Label("L_light")] + lnl + stamp_at(3) + p1L + att_setup(kdmL, []) + [I(f"s_cmp_lt_u32 {s(sRB)}, 2"), I("s_cbranch_scc1 L_ledge")])
    segs["lightAtt"] = flat(attention(False, {}, otok))
    l2 = light2(otok)
    fake = [VM(f"buffer_load_dword {v(T + 15)}, {v(vFL)}, {srd(sB)}, 0 offen", tok=t) for t in YT]
    segs["light2"] = flat([Label("L_l2")] + stamp_at(5) + fake + l2 + stamp_at(7) + [I("s_branch L_p3")])
    segs["lightEdge"] = flat([Label("L_ledge")] + attention(True, {}, otok) + [I("s_branch L_l2")])
    segs["attSlow"] = flat(attention_slow())
    paths = [["front", "fullP1", "fullAtt", "P2", "P3"], ["front", "fullP1", "fullEdge", "P2", "P3"],
             ["front", "lightP1", "lightAtt", "light2", "P3"], ["front", "lightP1", "lightEdge", "light2", "P3"]]
    finalize([flat([segs[n] for n in p]) for p in paths] + [flat(slow), segs["attSlow"]])
    order = ["front", "fullP1", "fullAtt", "P2", "P3", "fullEdge", "lightP1", "lightAtt", "light2", "lightEdge", "attSlow"]
    body = "\n".join(render(segs[n]) for n in order) + "\n" + render(flat(slow))
    hdr = open(__file__.rsplit("/", 1)[0] + "/../cdna_kernels/parallel_sum__sliding_block__mixer_gmlp__prompt.s.ref").read().split("; Override launch")[0]
    out = hdr + "; @launch grid=(256,1,1) block=(256,1,1) lds=163840\n" + f'''.amdgcn_target "amdgcn-amd-amdhsa--gfx950"
.text
.globl {KNAME}
.p2align 8
.type {KNAME},@function
{KNAME}:
{body}
.section .rodata,"a"
.p2align 6
.amdhsa_kernel {KNAME}
  .amdhsa_next_free_vgpr 512
  .amdhsa_next_free_sgpr 102
  .amdhsa_accum_offset 256
  .amdhsa_group_segment_fixed_size 0
  .amdhsa_kernarg_size 88
  .amdhsa_user_sgpr_count 2
  .amdhsa_user_sgpr_kernarg_segment_ptr 1
  .amdhsa_system_sgpr_workgroup_id_x 1
  .amdhsa_float_denorm_mode_32 3
.end_amdhsa_kernel
'''
    if OPT["stamps"]: out = out.replace("; @launch", "; stamps: " + " ".join(PROFS[OPT["stamps"]]) + "\n; @launch")
    open(sys.argv[1], "w").write(out)
    n = {k: len(x) for k, x in segs.items()}
    pads = {k: sum(i.pad for i in x) for k, x in segs.items()}
    print("instr counts", n, "pads", pads, file=sys.stderr)

build()
```

```python
import sys, math, struct
sys.path.insert(0, __file__.rsplit("/", 1)[0])
from asmlib import *

KNAME = "parallel_sum__sliding_block__mixer_gmlp__prompt_kernel"
OPT = dict(stamps=0, spin=20000, nt_x=0, nt_w=0, probe=None, rt=0, cpf=1, nt_sp=0, nt_o=0, nt_t=0, rot=1, sp0=5, sp1=10, spm=0, touch=1, touch_o=0, pl0=194, pl1=230, fw=32, y0b=15, ys0=8, ys1=2, on=8, sched=0, nrot=4, crot=7, touch2=1, yc=6, yf=4, zn=3, yp=26, yla=10, gs=5, k1=150, g1=190, zf=4, skipbar=1, zp=10, nosp=0)
for arg in sys.argv[2:]:
    k, val = arg.split("="); OPT[k] = val if k == "probe" else int(val)

def fbits(x): return struct.unpack("<I", struct.pack("<f", x))[0]
def hx(x): return hex(x & 0xffffffff)

WS_EPOCH = 0
WS_FLAGS = 0x1000
WS_STATS = 0x100000
WS_KV = 0x200000
WS_Z = 0x600000
WS_PART = 0xA00000
WS_O = 0x1200000
WS_Y = 0x1400000
WS_DBG = 0x1800000
F_KV, F_Z, F_PART, F_O, F_Y = range(5)
L_STG = 48 * 1024; L_RING = 96 * 1024; L_RED = 48 * 1024
sX, sWq, sWi, sWsp, sWo, sWout, sB, sOut, sWs = 4, 8, 12, 16, 20, 24, 28, 32, 36
sRB, sCG, sP, sW, sNonce, sHP, sTB, sT0 = 40, 41, 42, 43, 44, 45, 46, 47
sOI, sOQ, sOO = 48, 52, 56
sMyFlag = 48
sJmin = 52
sN0 = 56
sSpA, sSpB, sRingW, sStg, sZoff, sRingR = 61, 62, 63, 64, 65, 66
sTok3 = 67
sKH = 68
sC10, sC01, sOnes = 70, 71, 72
sKVo, sKVs, sZo = 60, 69, 73
sMask = 74; sSpin = 76; sT1, sT2, sT3 = 77, 78, 79
sRotI, sRotQ = 80, 84
sR4, sR4o, sR3, sR3y = 80, 81, 82, 83
sStamp = 88
sC = 3; sSpBase = 0; sSpRot = 1; sVm = 70; sZbase = 60; sZrot = 69; sZbase2 = 73
vZ1 = 2
vL16, vTR, vWd, vSpA, vSpB, vSpR, vFL, vR, vGA, vGB, vD, vSum, vSq = 0, 1, 2, 3, 4, 5, 9, 10, 11, 12, 13, 14, 15
T = 16
accA, accB, accD, X = 48, 80, 112, 128
vStD, vStA, vStB, vStC = 43, 45, 46, 47
AF = 224

slow = []
_lab = [0]
def newlab(n):
    _lab[0] += 1; return f"L_{n}_{_lab[0]}"

_st = [0]
def stamp():
    if not OPT["stamps"]: return []
    i = _st[0]; _st[0] += 1
    assert sStamp + 2 * i + 1 <= 101
    return [I(f"s_memtime {s(sStamp + 2 * i, 2)}")]
PROFS = {1: ["start", "center", "P1", "att", "P2", "yflag", "end"],
         2: ["start", "b0", "b4", "b8", "b10", "b12", "P1"],
         4: ["start", "P1", "kchk", "sld", "schk", "attbar", "a0p2"],
         6: ["start", "b3", "b4", "b5", "b6", "b7", "b8"],
         10: ["start", "b8", "b9", "b10", "b11", "b12", "b13"],
         3: ["start", "q0", "q4", "q8", "q12", "pchk", "P2"],
         5: ["start", "dma0", "x0", "x3", "xbar", "stats", "lnpre"],
         7: ["start", "P2", "y0flag", "opart", "yflag", "y28", "end"],
         8: ["start", "P1", "kchk", "attbar", "a0p2", "zchk", "att"],
         9: ["start", "rt:start", "P1", "rt:P1", "P2", "end", "rt:end"]}
OLD = ["start", "x0", "stats", "center", "P1", "att", "attbar", "P2", "opart", "yflag", "end"]
def stamp_n(name):
    if OPT["probe"]:
        if name == "start": return [I(f"s_memrealtime {s(sStamp, 2)}")]
        if name == OPT["probe"]: return [I(f"s_memrealtime {s(sStamp + 2, 2)}")]
        return []
    if not OPT["stamps"]: return []
    L = PROFS[OPT["stamps"]]
    if name not in L: return []
    o = [I(f"{'s_memrealtime' if OPT['rt'] else 's_memtime'} {s(sStamp + 2 * L.index(name), 2)}")]
    if "rt:" + name in L: o.append(I(f"s_memrealtime {s(sStamp + 2 * L.index('rt:' + name), 2)}"))
    return o
def stamp_at(i): return stamp_n(OLD[i])

def srd(r): return s(r, 4)
def dma(vaddr, r, soff, imm, sc1=False, tok=None):
    o = f" offset:{imm}" if imm else ""
    nt = {sX: OPT["nt_x"], sWq: OPT["nt_w"], sWi: OPT["nt_w"], sWsp: OPT["nt_sp"], sWo: OPT["nt_o"], sWout: OPT["nt_o"]}.get(r, 0)
    return VM(f"buffer_load_dwordx4 {v(vaddr)}, {srd(r)}, {soff} offen{o}{' sc1' if sc1 else ''}{' nt' if nt else ''} lds", tok=tok)
def gload(dst, vaddr, r, soff, imm=0, sc1=False, tok=None, op="dwordx4"):
    o = f" offset:{imm}" if imm else ""
    return VM(f"buffer_load_{op} {dst}, {v(vaddr)}, {srd(r)}, {soff} offen{o}{' sc1' if sc1 else ''}", tok=tok)
def gstore(src, vaddr, r, soff, imm=0, sc1=True, op="dwordx4", tok=None):
    o = f" offset:{imm}" if imm else ""
    return VM(f"buffer_store_{op} {src}, {v(vaddr)}, {srd(r)}, {soff} offen{o}{' sc1' if sc1 else ''}", tok=tok)
def dsr(dst, vaddr, imm=0, op="ds_read_b128"):
    o = f" offset:{imm}" if imm else ""
    return DS(f"{op} {dst}, {v(vaddr)}{o}")
def dstr(dst, vaddr, imm=0): return dsr(dst, vaddr, imm, "ds_read_b64_tr_b16")
def dsw(vaddr, src, imm=0, op="ds_write_b128"):
    o = f" offset:{imm}" if imm else ""
    return DS(f"{op} {v(vaddr)}, {src}{o}")
def mfma(d, A, B, C):
    return I(f"v_mfma_f32_32x32x16_bf16 {v(d, 16)}, {A}, {B}, {C}")
def toks(items): return [x.tok for x in flat(items) if x.tok is not None]
def vmtoks(items): return [x.tok for x in flat(items) if x.tok is not None and x.kind == "vmem"]
def lgtoks(items): return [x.tok for x in flat(items) if x.tok is not None and x.kind == "ds"]
BAR = lambda: I("s_barrier")

def rne_bf16(dst, src):
    return [I(f"v_cvt_pk_bf16_f32 {v(dst)}, {v(src)}, {v(src)}"), I(f"v_and_b32 {v(dst)}, 0xffff0000, {v(dst)}")]
def cross_half(op, r, tmp):
    return [I(f"v_mov_b32 {v(tmp)}, {v(r)}"), I(f"v_permlane32_swap_b32 {v(r)}, {v(tmp)}"), I(f"{op} {v(r)}, {v(r)}, {v(tmp)}")]

def flag_store(ftype, vtmp):
    return [I(f"s_add_u32 {s(sT1)}, {s(sMyFlag)}, {ftype * 65536}"), I(f"v_mov_b32 {v(vtmp)}, {s(sNonce)}"),
            gstore(v(vtmp), vFL, sWs, s(sT1), op="dword")]
def poll_issue(vdst, vaddr):
    return gload(v(vdst), vaddr, sWs, "0", sc1=True, op="dword")
def poll_check(ld, vdst, vaddr, sleep=1):
    ls, lb, ll = newlab("slow"), newlab("back"), newlab("loop")
    slow.extend([Label(ls), I(f"s_mov_b32 {s(sSpin)}, {OPT['spin']}"), Label(ll)] + ([I(f"s_sleep {sleep}")] if sleep else []) + [
        gload(v(vdst), vaddr, sWs, "0", sc1=True, op="dword"), I("s_waitcnt vmcnt(0)"),
        I(f"v_cmp_ne_u32 {s(sMask, 2)}, {s(sNonce)}, {v(vdst)}"), I("s_nop 1"), I(f"s_cmp_eq_u64 {s(sMask, 2)}, 0"), I(f"s_cbranch_scc1 {lb}"),
        I(f"s_sub_u32 {s(sSpin)}, {s(sSpin)}, 1"), I(f"s_cmp_lg_u32 {s(sSpin)}, 0"), I(f"s_cbranch_scc1 {ll}"), I(f"s_branch {lb}")])
    return [Wait(ld.tok), I(f"v_cmp_ne_u32 {s(sMask, 2)}, {s(sNonce)}, {v(vdst)}"), I(f"s_cmp_lg_u64 {s(sMask, 2)}, 0"),
            I(f"s_cbranch_scc1 {ls}"), Label(lb)]

def prologue():
    c = []
    c += [I("s_cmp_ge_u32 s2, 256"), I("s_cbranch_scc1 L_end")]
    c += stamp_at(0)
    if OPT["cpf"]:
        c += [I(f"s_cmp_ge_u32 s2, {32 * OPT['cpf']}"), I("s_cbranch_scc1 L_nocpf"), I("s_getpc_b64 s[80:81]"), Label("L_pc"),
              I(f"s_sub_u32 s80, s80, L_pc-{KNAME}"), I("s_subb_u32 s81, s81, 0"), I(f"s_mov_b32 s82, L_codeend-{KNAME}"), I("s_mov_b32 s83, 0x20000"),
              I("s_bfe_u32 s84, s2, 0x20003"), I("s_lshl_b32 s84, s84, 14"), I("v_and_b32 v16, 31, v0"), I("v_lshrrev_b32 v17, 6, v0"),
              I("v_lshlrev_b32 v16, 7, v16"), I("v_lshl_add_u32 v16, v17, 12, v16"),
              VM("buffer_load_dword v42, v16, s[80:83], s84 offen"), Label("L_nocpf")]
    for r, off in ((sX, 0), (sWq, 8), (sWs, 80), (sWi, 32), (sWsp, 40), (sWo, 16), (sB, 48), (sWout, 56), (sOut, 64)):
        c.append(I(f"s_load_dwordx2 {s(r, 2)}, s[0:1], {off}"))
    c += [I(f"v_lshrrev_b32 {v(16)}, 6, v0"), I(f"v_and_b32 {v(17)}, 63, v0"), I(f"v_readfirstlane_b32 {s(sW)}, {v(16)}"),
          I("v_cmp_ne_u32 vcc, 0, v0"), I(f"v_bfrev_b32 {v(18)}, 1"), I(f"v_lshlrev_b32 {v(vL16)}, 4, {v(17)}"),
          I(f"v_cndmask_b32 {v(vFL)}, 0, {v(18)}, vcc")]
    for r, n in ((sX, 2097152), (sWq, 1572864), (sWi, 1835008), (sWsp, 8388608), (sWo, 524288), (sWout, 917504), (sB, 4096), (sOut, 2097152), (sWs, 0x10000000)):
        c += [I(f"s_mov_b32 {s(r + 2)}, {n}"), I(f"s_mov_b32 {s(r + 3)}, 0x20000")]
    c += [I(f"s_and_b32 {s(sP)}, s2, 1"), I(f"s_bfe_u32 {s(sRB)}, s2, {1 | (2 << 16)}"), I(f"s_lshl_b32 {s(sRB)}, {s(sRB)}, 2"),
          I(f"s_bfe_u32 {s(sT0)}, s2, {3 | (2 << 16)}"), I(f"s_add_u32 {s(sRB)}, {s(sRB)}, {s(sT0)}"),
          I(f"s_lshr_b32 {s(sC)}, s2, 5"), I(f"s_add_u32 {s(sC)}, {s(sC)}, {OPT['crot']}"), I(f"s_and_b32 {s(sC)}, {s(sC)}, 7"), I(f"s_lshl_b32 {s(sCG)}, {s(sC)}, 1"), I(f"s_or_b32 {s(sCG)}, {s(sCG)}, {s(sP)}"),
          I(f"s_lshl_b32 {s(sHP)}, {s(sP)}, 3"), I(f"s_add_u32 {s(sHP)}, {s(sHP)}, {s(sC)}"),
          I(f"s_lshl_b32 {s(sTB)}, {s(sRB)}, 2"), I(f"s_add_u32 {s(sTB)}, {s(sTB)}, {s(sW)}")]
    l = 17
    c += [I(f"v_lshrrev_b32 {v(18)}, 4, {v(l)}"), I(f"v_and_b32 {v(19)}, 15, {v(l)}")]
    for i in range(4):
        c += [I(f"v_or_b32 {v(20 + i)}, {4 * i}, {v(18)}"), I(f"v_xor_b32 {v(20 + i)}, {v(20 + i)}, {v(19)}"),
              I(f"v_lshlrev_b32 {v(20 + i)}, 4, {v(20 + i)}"), I(f"v_lshl_add_u32 {v(20 + i)}, {v(18)}, 10, {v(20 + i)}")]
        if i: c.append(I(f"v_add_u32 {v(20 + i)}, {3072 * i}, {v(20 + i)}"))
    if OPT["rot"]:
        c += [I(f"s_add_u32 {s(sT0)}, {s(sT0)}, {s(sC)}"), I(f"s_and_b32 {s(sT0)}, {s(sT0)}, 3"), I(f"s_lshr_b32 {s(sT1)}, {s(sC)}, 2")]
    else:
        c += [I(f"s_mov_b32 {s(sT0)}, 0"), I(f"s_mov_b32 {s(sT1)}, 0")]
    c += [I(f"s_lshl_b32 {s(sXg)}, {s(sTB)}, 1"), I(f"s_add_u32 {s(sXg)}, {s(sXg)}, {s(sT1)}"), I(f"s_lshl_b32 {s(sXg)}, {s(sXg)}, 14"),
          I(f"s_lshl_b32 {s(sXl)}, {s(sW)}, 3"), I(f"s_add_u32 {s(sXl)}, {s(sXl)}, {s(sT1)}"), I(f"s_lshl_b32 {s(sXl)}, {s(sXl)}, 12")]
    for g in range(4):
        c += [I(f"s_add_u32 {s(sT1)}, {s(sT0)}, {g}"), I(f"s_and_b32 {s(sRotQ + g)}, {s(sT1)}, 3")]
    c += [I("s_waitcnt lgkmcnt(0)"), I(f"s_load_dword {s(sNonce)}, {s(sWs, 2)}, {WS_EPOCH}")]
    if OPT["touch"]:
        nt = " nt" if OPT["nt_t"] else ""
        c += [I(f"s_cmp_lt_u32 {s(sC)}, 7"), I("s_cbranch_scc1 L_notouch"),
              I(f"v_lshlrev_b32 {v(24)}, 12, {v(l)}"), I(f"s_lshl_b32 {s(sT1)}, {s(sRB)}, 1"), I(f"s_and_b32 {s(sT2)}, {s(sW)}, 1"), I(f"s_add_u32 {s(sT1)}, {s(sT1)}, {s(sT2)}"),
              I(f"s_lshl_b32 {s(sT1)}, {s(sT1)}, 18"), I(f"s_lshl_b32 {s(sT2)}, {s(sP)}, 11"), I(f"s_add_u32 {s(sT1)}, {s(sT1)}, {s(sT2)}"),
              I(f"v_add_u32 {v(24)}, {s(sT1)}, {v(24)}"),
              I(f"s_and_b32 {s(sT1)}, {s(sRB)}, 3"), I(f"s_lshl_b32 {s(sT1)}, {s(sT1)}, 9"), I(f"s_lshr_b32 {s(sT2)}, {s(sW)}, 1"), I(f"s_lshl_b32 {s(sT2)}, {s(sT2)}, 7"),
              I(f"s_add_u32 {s(sT1)}, {s(sT1)}, {s(sT2)}")]
        if OPT["touch"] == 2:
            c += [I(f"v_lshrrev_b32 {v(24)}, 4, {v(l)}"), I(f"v_lshlrev_b32 {v(24)}, 12, {v(24)}"), I(f"v_and_b32 {v(25)}, 15, {v(l)}"),
                  I(f"v_lshl_add_u32 {v(24)}, {v(25)}, 7, {v(24)}"), I(f"s_lshl_b32 {s(sT1)}, {s(sTB)}, 17"), I(f"s_lshl_b32 {s(sT2)}, {s(sP)}, 11"),
                  I(f"s_add_u32 {s(sT1)}, {s(sT1)}, {s(sT2)}")]
        for j in range(8):
            c += [VM(f"buffer_load_dword {v(42)}, {v(24)}, {srd(sWsp)}, {s(sT1)} offen{nt}")]
            c += [I(f"s_add_u32 {s(sT1)}, {s(sT1)}, 256"), I(f"s_and_b32 {s(sT1)}, {s(sT1)}, 2047")] if OPT["touch"] == 1 else [I(f"s_add_u32 {s(sT1)}, {s(sT1)}, 16384")]
        if OPT["touch_o"]:
            c += [I(f"s_lshl_b32 {s(sT1)}, {s(sRB)}, 1"), I(f"s_add_u32 {s(sT1)}, {s(sT1)}, {s(sP)}"), I(f"s_lshl_b32 {s(sT1)}, {s(sT1)}, 2"),
                  I(f"s_add_u32 {s(sT1)}, {s(sT1)}, {s(sW)}"), I(f"v_lshlrev_b32 {v(24)}, 7, {v(l)}"),
                  I(f"s_mul_i32 {s(sT2)}, {s(sT1)}, 7168"), I(f"s_lshl_b32 {s(sT1)}, {s(sT1)}, 12"),
                  VM(f"buffer_load_dword {v(42)}, {v(24)}, {srd(sWout)}, {s(sT2)} offen"), I(f"v_and_b32 {v(24)}, 0xfff, {v(24)}"),
                  VM(f"buffer_load_dword {v(42)}, {v(24)}, {srd(sWo)}, {s(sT1)} offen")]
        c += [Label("L_notouch")]
    return c, l

sXg, sXl, sXo = 61, 62, 65
def x_dma(g):
    it = []
    for hh in range(2):
        if hh == 0:
            it.append([I(f"s_lshl_b32 {s(sT1)}, {s(sRotQ + g)}, 8"), I(f"s_add_u32 {s(sXo)}, {s(sXg)}, {s(sT1)}"), I(f"s_add_u32 m0, {s(sXl)}, {g * 8192}")])
        else:
            it.append([I(f"s_xor_b32 {s(sXo)}, {s(sXo)}, 16384"), I(f"s_xor_b32 m0, m0, 4096")])
        it += [dma(20 + i, sX, s(sXo), 1024 * i) for i in range(4)]
    return it

def w_addr(l):
    c = []
    for base, rs in ((sOI, 3584), (sOQ, 3072), (sOO, 1024)):
        for i in range(1, 4): c.append(I(f"s_mov_b32 {s(base + i)}, {i * (8 * rs - 1024)}"))
    c += [I(f"s_lshl_b32 {s(sRingW)}, {s(sW)}, 12"), I(f"s_add_u32 {s(sRingW)}, {s(sRingW)}, {L_RING}")]
    kr, u, cc = 32, 33, 34
    c += [I(f"v_bfe_u32 {v(kr)}, {v(l)}, 2, 3"), I(f"s_lshl_b32 {s(sT1)}, {s(sW)}, 5"), I(f"v_add_u32 {v(kr)}, {s(sT1)}, {v(kr)}"),
          I(f"v_lshrrev_b32 {v(u)}, 5, {v(l)}"), I(f"v_and_b32 {v(cc)}, 3, {v(l)}"), I(f"v_lshlrev_b32 {v(cc)}, 4, {v(cc)}"),
          I(f"v_mul_u32_u24 {v(35)}, 3072, {v(kr)}"), I(f"v_add_u32 {v(35)}, {v(35)}, {v(cc)}"),
          I(f"s_lshl_b32 {s(sT1)}, {s(sHP)}, 6"), I(f"v_add_u32 {v(vStD)}, {s(sT1)}, {v(35)}"),
          I(f"v_lshl_add_u32 {v(vStB)}, {v(u)}, 10, {v(vStD)}"), I(f"v_add_u32 {v(vStB)}, 1024, {v(vStB)}"),
          I(f"v_mul_u32_u24 {v(35)}, 3584, {v(kr)}"), I(f"v_add_u32 {v(35)}, {v(35)}, {v(cc)}"),
          I(f"v_lshl_add_u32 {v(35)}, {v(u)}, 6, {v(35)}"), I(f"s_lshl_b32 {s(sT1)}, {s(sCG)}, 7"),
          I(f"v_add_u32 {v(vStC)}, {s(sT1)}, {v(35)}"), I(f"v_add_u32 {v(vStA)}, 1792, {v(vStC)}")]
    return c
def w_addr2():
    c = []
    for g in range(4):
        c += [I(f"s_mul_i32 {s(sRotI + g)}, {s(sRotQ + g)}, {128 * 3584}"), I(f"s_mul_i32 {s(sRotQ + g)}, {s(sRotQ + g)}, {128 * 3072}")]
    c += [I(f"v_cmp_lt_u32 vcc, 511, {v(vL16)}"), I(f"v_mov_b32 {v(32)}, {s(sRotQ + 1)}"), I(f"v_mov_b32 {v(33)}, {s(sRotQ + 3)}"),
          I(f"v_cndmask_b32 {v(32)}, {v(32)}, {v(33)}, vcc"), I(f"v_add_u32 {v(vStD + 1)}, {v(32)}, {v(vStD)}"),
          I(f"v_mov_b32 {v(32)}, {s(sRotQ)}"), I(f"v_mov_b32 {v(33)}, {s(sRotQ + 2)}"),
          I(f"v_cndmask_b32 {v(32)}, {v(32)}, {v(33)}, vcc"), I(f"v_add_u32 {v(vStD)}, {v(32)}, {v(vStD)}")]
    return c

def w_dma(kinds, st):
    k = kinds[st]; sg = st - kinds.index(k)
    r, so = (sWi, sOI) if k in "AC" else (sWq, sOQ)
    it = [I(f"s_add_u32 m0, {s(sRingW)}, {((st + 2) % 4) * 16384}")]
    if k == "D": va = vStD + sg
    else:
        va = vWd
        it.append(I(f"v_add_u32 {v(vWd)}, {s((sRotQ if k == 'B' else sRotI) + sg)}, {v(dict(A=vStA, B=vStB, C=vStC)[k])}"))
    for i in range(4): it.append(dma(va, r, s(so + i) if i else "0", 1024 * i))
    return it

def sp_dma(w):
    if OPT["nosp"]: return []
    it = [I(f"s_add_u32 {s(sSpA)}, {s(sSpBase)}, {s(sSpRot)}"), I(f"s_add_u32 {s(sSpB)}, {s(sSpA)}, 63488"),
          I(f"s_add_u32 m0, {s(sStg)}, {(w % 3) * 4096}"), I(f"s_add_u32 {s(sSpRot)}, {s(sSpRot)}, 128"), I(f"s_and_b32 {s(sSpRot)}, {s(sSpRot)}, 2047")]
    it += [dma(vSpA, sWsp, s(sSpA), 0), dma(vSpB, sWsp, s(sSpA), 1024), dma(vSpA, sWsp, s(sSpB), 2048), dma(vSpB, sWsp, s(sSpB), 3072)]
    return it
def sp_read(w):
    if OPT["nosp"]: return []
    return [dsr(a(16 * w + 4 * j, 4), vSpR + j, (w % 3) * 4096) for j in range(4)]

KFULL = list("AAAABBBBDDCCCC"); KLIGHT = list("BBBBDD")

def spread(main, filler):
    out = []; n = len(main); k = 0
    for i, e in enumerate(main):
        while k < len(filler) and k * n <= i * len(filler): out.append(filler[k]); k += 1
        out.append(e)
    return out + filler[k:]

def front():
    c, l = prologue()
    c += stamp_n("dma0")
    xg = [x_dma(g) for g in range(4)]
    c += xg[0]
    c += w_addr(l)
    t, h = 18, 19
    XR = 24
    c += [I(f"v_and_b32 {v(t)}, 31, {v(l)}"), I(f"v_lshrrev_b32 {v(h)}, 5, {v(l)}"), I(f"s_lshl_b32 {s(sT3)}, {s(sW)}, 15")]
    c += [I(f"v_and_b32 {v(36)}, 15, {v(l)}"), I(f"v_xor_b32 {v(36)}, {v(36)}, {v(h)}"), I(f"v_lshlrev_b32 {v(36)}, 4, {v(36)}"),
          I(f"v_lshl_add_u32 {v(36)}, {v(t)}, 8, {v(36)}"), I(f"v_add_u32 {v(XR)}, {s(sT3)}, {v(36)}")]
    for j in range(1, 8): c.append(I(f"v_xor_b32 {v(XR + j)}, {32 * j}, {v(XR)}"))
    c += [I(f"v_bfe_u32 {v(36)}, {v(l)}, 2, 2"), I(f"v_lshlrev_b32 {v(36)}, 6, {v(36)}"), I(f"v_lshl_add_u32 {v(36)}, {v(h)}, 10, {v(36)}"),
          I(f"v_bfe_u32 {v(37)}, {v(l)}, 4, 1"), I(f"v_lshl_add_u32 {v(36)}, {v(37)}, 5, {v(36)}"),
          I(f"v_and_b32 {v(37)}, 3, {v(l)}"), I(f"v_lshl_add_u32 {v(36)}, {v(37)}, 3, {v(36)}"), I(f"v_add_u32 {v(vTR)}, {L_RING}, {v(36)}")]
    c += [I(f"s_mul_i32 {s(sStg)}, {s(sW)}, 12288"), I(f"s_add_u32 {s(sStg)}, {s(sStg)}, {L_STG}"),
          I(f"s_lshl_b32 {s(sSpBase)}, {s(sTB)}, 17"), I(f"s_lshl_b32 {s(sT1)}, {s(sP)}, 11"), I(f"s_add_u32 {s(sSpBase)}, {s(sSpBase)}, {s(sT1)}")]
    if OPT["rot"]:
        c += [I(f"s_and_b32 {s(sT1)}, {s(sRB)}, 3"), I(f"s_lshl_b32 {s(sSpRot)}, {s(sT1)}, 9")]
    else: c += [I(f"s_mov_b32 {s(sSpRot)}, 0")]
    c += [I(f"v_lshrrev_b32 {v(36)}, 4, {v(l)}"), I(f"v_and_b32 {v(37)}, 7, {v(l)}"), I(f"v_lshrrev_b32 {v(38)}, 3, {v(l)}"),
          I(f"v_xor_b32 {v(36)}, {v(36)}, {v(37)}"), I(f"v_lshlrev_b32 {v(36)}, 4, {v(36)}"), I(f"v_lshl_add_u32 {v(vSpA)}, {v(38)}, 12, {v(36)}"),
          I(f"v_xor_b32 {v(vSpB)}, 64, {v(vSpA)}"), I(f"v_add_u32 {v(vSpB)}, 31744, {v(vSpB)}"),
          I(f"v_bfe_u32 {v(36)}, {v(l)}, 1, 3"), I(f"v_xor_b32 {v(36)}, {v(36)}, {v(h)}"), I(f"v_lshlrev_b32 {v(36)}, 4, {v(36)}"),
          I(f"v_lshl_add_u32 {v(36)}, {v(t)}, 7, {v(36)}"), I(f"v_add_u32 {v(vSpR)}, {s(sStg)}, {v(36)}")]
    for j in range(1, 4): c.append(I(f"v_xor_b32 {v(vSpR + j)}, {32 * j}, {v(vSpR)}"))
    c += [I(f"s_mov_b32 {s(sC10)}, 0x3f80"), I(f"s_mov_b32 {s(sC01)}, 0x3f800000"), I(f"s_mov_b32 {s(sOnes)}, 0x3f803f80"),
          I(f"s_lshl_b32 {s(sT1)}, {s(sRB)}, 4"), I(f"s_add_u32 {s(sT1)}, {s(sT1)}, {s(sCG)}"), I(f"s_lshl_b32 {s(sT1)}, {s(sT1)}, 8"),
          I(f"s_add_u32 {s(sMyFlag)}, {s(sT1)}, {WS_FLAGS}"),
          I("s_waitcnt lgkmcnt(0)"), I(f"s_add_u32 {s(sNonce)}, {s(sNonce)}, 1")]
    for i in range(4): c.append(I(f"v_mov_b32 {v(DA + i)}, 0"))
    c += xg[1]
    rd = [[dsr(v(X + 32 * g + 4 * j, 4), XR + j, g * 8192) for j in range(8)] for g in range(4)]
    def dots(g):
        o = []
        for j in range(8):
            o.append(Wait(rd[g][j].tok))
            for q in range(4):
                reg = X + 32 * g + 4 * j + q
                o += [I(f"v_dot2_f32_bf16 {v(DA + (q & 1))}, {v(reg)}, {s(sOnes)}, {v(DA + (q & 1))}"),
                      I(f"v_dot2_f32_bf16 {v(DA + 2 + (q & 1))}, {v(reg)}, {v(reg)}, {v(DA + 2 + (q & 1))}")]
        return o
    for g in range(2):
        c += [Wait(*toks(xg[g]))] + rd[g] + stamp_n(f"x{g}")
        c += spread(dots(g), xg[g + 2])
    def rest(kinds):
        o = []
        wd = {st: w_dma(kinds, st) for st in range(4)}
        for g in (2, 3):
            rd[g] = [dsr(v(X + 32 * g + 4 * j, 4), XR + j, g * 8192) for j in range(8)]
            o += [Wait(*toks(xg[g]))] + rd[g] + stamp_n(f"x{g}")
            o += spread(dots(g), w_addr2() + wd[0] if g == 2 else wd[1])
        o += [BAR()] + stamp_n("xbar") + stamp_at(2)
        return o + ln_finish(wd[2] + wd[3]), wd
    return c, rest
DA = 36

def ln_finish(extra):
    c = []
    c += [I(f"v_add_f32 {v(DA + 0)}, {v(DA + 0)}, {v(DA + 1)}"), I(f"v_add_f32 {v(DA + 2)}, {v(DA + 2)}, {v(DA + 3)}")]
    c += cross_half("v_add_f32", DA, DA + 1) + cross_half("v_add_f32", DA + 2, DA + 3)
    c += [I(f"v_mul_f32 {v(DA + 0)}, {hx(fbits(1 / 512))}, {v(DA + 0)}"), I(f"v_mul_f32 {v(DA + 2)}, {hx(fbits(1 / 512))}, {v(DA + 2)}"),
          I(f"v_fma_f32 {v(DA + 2)}, -{v(DA + 0)}, {v(DA + 0)}, {v(DA + 2)}"), I(f"v_max_f32 {v(DA + 2)}, 0, {v(DA + 2)}")]
    c += rne_bf16(DA, DA) + rne_bf16(DA + 2, DA + 2)
    c += [I(f"v_add_f32 {v(DA + 2)}, {hx(fbits(1e-5))}, {v(DA + 2)}")] + rne_bf16(DA + 2, DA + 2)
    c += [I(f"v_sqrt_f32 {v(DA + 2)}, {v(DA + 2)}"), I(f"v_xor_b32 {v(DA + 0)}, 0x80000000, {v(DA + 0)}")] + rne_bf16(vD, DA + 2)
    c += [I(f"v_rcp_f32 {v(vR)}, {v(vD)}")]
    k0 = -2.0 * math.log2(math.e) * math.sqrt(2.0 / math.pi)
    c += [I(f"v_mul_f32 {v(vGB)}, {hx(fbits(k0))}, {v(vR)}"), I(f"v_mul_f32 {v(DA + 1)}, {v(vR)}, {v(vR)}"),
          I(f"v_mul_f32 {v(DA + 1)}, {hx(fbits(0.044715))}, {v(DA + 1)}"), I(f"v_mul_f32 {v(vGA)}, {v(DA + 1)}, {v(vGB)}")]
    c += stamp_n("lnpre")
    pre = c; c = []
    for b in range(0, 128, 4):
        for q in range(4):
            c += [I(f"v_dot2_f32_bf16 {v(16 + 2 * q)}, {v(X + b + q)}, {s(sC10)}, {v(DA + 0)}"),
                  I(f"v_dot2_f32_bf16 {v(17 + 2 * q)}, {v(X + b + q)}, {s(sC01)}, {v(DA + 0)}")]
        for q in range(4):
            c.append(I(f"v_cvt_pk_bf16_f32 {v(X + b + q)}, {v(16 + 2 * q)}, {v(17 + 2 * q)}"))
    return pre + spread(c, extra)

def gelu(base, n, stats, T=T):
    it = []
    for g in range(0, n, 4):
        R = [base + g + q for q in range(4)]; t = [T + q for q in range(4)]
        it += [I(f"v_mul_f32 {v(t[q])}, {v(R[q])}, {v(R[q])}") for q in range(4)]
        it += [I(f"v_fma_f32 {v(t[q])}, {v(t[q])}, {v(vGA)}, {v(vGB)}") for q in range(4)]
        it += [I(f"v_mul_f32 {v(t[q])}, {v(t[q])}, {v(R[q])}") for q in range(4)]
        it += [I(f"v_exp_f32 {v(t[q])}, {v(t[q])}") for q in range(4)]
        it += [I(f"v_fma_f32 {v(t[q])}, {v(t[q])}, {v(vD)}, {v(vD)}") for q in range(4)]
        it += [I(f"v_rcp_f32 {v(t[q])}, {v(t[q])}") for q in range(4)]
        it += [I(f"v_mul_f32 {v(R[q])}, {v(R[q])}, {v(t[q])}") for q in range(4)]
        if stats:
            for q in range(4):
                if g == 0 and q == 0:
                    it += [I(f"v_mov_b32 {v(vSum)}, {v(R[q])}"), I(f"v_mul_f32 {v(vSq)}, {v(R[q])}, {v(R[q])}")]
                else:
                    it += [I(f"v_add_f32 {v(vSum)}, {v(vSum)}, {v(R[q])}"), I(f"v_fmac_f32 {v(vSq)}, {v(R[q])}, {v(R[q])}")]
    return it

def stats_publish(zero=False):
    g = T + 4
    it = []
    if not zero:
        it += cross_half("v_add_f32", vSum, T) + cross_half("v_add_f32", vSq, T + 1)
        it += [I(f"v_mov_b32 {v(g)}, {v(vSum)}"), I(f"v_mov_b32 {v(g + 2)}, {v(vSq)}")]
    else:
        it += [I(f"v_mov_b32 {v(g)}, 0"), I(f"v_mov_b32 {v(g + 2)}, 0")]
    it += [I(f"v_mov_b32 {v(g + 1)}, {s(sNonce)}"), I(f"v_mov_b32 {v(g + 3)}, {s(sNonce)}"),
           I(f"v_lshlrev_b32 {v(g + 4)}, 22, {v(vL16)}"), I(f"v_and_b32 {v(g + 4)}, 0x80000000, {v(g + 4)}"), I(f"v_or_b32 {v(g + 4)}, {v(g + 4)}, {v(vL16)}"),
           [I(f"s_lshl_b32 {s(sT1)}, {s(sTB)}, 4"), I(f"s_add_u32 {s(sT1)}, {s(sT1)}, {s(sCG)}"), I(f"s_lshl_b32 {s(sT1)}, {s(sT1)}, 9"),
            I(f"s_add_u32 {s(sT1)}, {s(sT1)}, {WS_STATS}"), gstore(v(g, 4), g + 4, sWs, s(sT1))]]
    return it

def rarr_write():
    return [I(f"v_and_b32 {v(T)}, 0x1f0, {v(vL16)}"), I(f"v_lshrrev_b32 {v(T)}, 2, {v(T)}"),
            [I(f"s_lshl_b32 {s(sT1)}, {s(sW)}, 7"), I(f"v_add_u32 {v(T)}, {s(sT1)}, {v(T)}")], dsw(T, v(vR), op="ds_write_b32")]

def kv_epilogue():
    it = []; st = []; kw = []
    RA = 24; va = 20; vg = 21
    it += [I(f"v_lshrrev_b32 {v(va)}, 9, {v(vL16)}"), I(f"v_lshlrev_b32 {v(va)}, 4, {v(va)}"),
           [I(f"s_lshl_b32 {s(sT1)}, {s(sW)}, 7"), I(f"v_add_u32 {v(va)}, {s(sT1)}, {v(va)}")]]
    rr = [dsr(v(RA + 4 * q, 4), va, 32 * q) for q in range(4)]
    it += rr
    it += [[I(f"s_lshl_b32 {s(sT1)}, {s(sW)}, 12"), I(f"s_add_u32 {s(sT1)}, {s(sT1)}, 32768"), I(f"v_add_u32 {v(vg)}, {s(sT1)}, {v(vL16)}")]]
    it += [I(f"v_mul_f32 {v(accB + e)}, {v(accB + e)}, {v(vR)}") for e in range(16)]
    it += [I(f"v_cvt_pk_bf16_f32 {v(accB + j)}, {v(accB + 2 * j)}, {v(accB + 2 * j + 1)}") for j in range(8)]
    it += [[I(f"s_lshl_b32 {s(sT2)}, {s(sCG)}, 6"), I(f"s_add_u32 {s(sT2)}, {s(sT2)}, {s(sTB)}"), I(f"s_lshl_b32 {s(sT2)}, {s(sT2)}, 12"),
            I(f"s_add_u32 {s(sKVo)}, {s(sT2)}, {WS_KV}")]]
    for i in range(2):
        g = gstore(v(accB + 4 * i, 4), vL16, sWs, s(sKVo), 1024 * i); st.append(g)
        kw.append([g]); kw.append([dsw(vg, v(accB + 4 * i, 4), 1024 * i)])
    it += [Wait(rr[3].tok)]
    V = accB + 16
    it += spread([I(f"v_mul_f32 {v(V + e)}, {v(V + e)}, {v(RA + e)}") for e in range(16)] +
                 [I(f"v_cvt_pk_bf16_f32 {v(V + j)}, {v(V + 2 * j)}, {v(V + 2 * j + 1)}") for j in range(8)], kw)
    for i in range(2):
        g = gstore(v(V + 4 * i, 4), vL16, sWs, s(sKVo), 2048 + 1024 * i); st.append(g)
        it += [g, dsw(vg, v(V + 4 * i, 4), 2048 + 1024 * i)]
    return it, st

def q_epilogue(_):
    t = 40
    it = [I(f"v_mul_f32 {v(t)}, {hx(fbits(0.25 * math.log2(math.e)))}, {v(vR)}")]
    it += [I(f"v_mul_f32 {v(accD + e)}, {v(accD + e)}, {v(t)}") for e in range(16)]
    it += [I(f"v_cvt_pk_bf16_f32 {v(accD + j)}, {v(accD + 2 * j)}, {v(accD + 2 * j + 1)}") for j in range(8)]
    return it

def kv_fetch():
    va, vf = vWd, vR
    pre = [[I(f"s_max_u32 {s(sT1)}, {s(sRB)}, 1"), I(f"s_sub_u32 {s(sT1)}, {s(sT1)}, 1"), I(f"s_max_u32 {s(sT2)}, {s(sRB)}, 2"), I(f"s_sub_u32 {s(sT2)}, {s(sT2)}, 2"),
            I(f"s_sub_u32 {s(sT1)}, {s(sT1)}, {s(sT2)}"), I(f"s_lshl_b32 {s(sT1)}, {s(sT1)}, 8"),
            I(f"s_lshl_b32 {s(sT2)}, {s(sT2)}, 4"), I(f"s_add_u32 {s(sT2)}, {s(sT2)}, {s(sCG)}"), I(f"s_lshl_b32 {s(sT2)}, {s(sT2)}, 8"),
            I(f"s_add_u32 {s(sT2)}, {s(sT2)}, {WS_FLAGS + F_KV * 65536}"),
            I(f"v_and_b32 {v(va)}, 16, {v(vL16)}"), I(f"v_mul_u32_u24 {v(va)}, {s(sT1)}, {v(va)}"), I(f"v_add_u32 {v(va)}, {s(sT2)}, {v(va)}")]]
    ld = poll_issue(vf, va)
    chk = poll_check(ld, vf, va)
    dm = []
    for b in range(2):
        grp = [[I(f"s_lshl_b32 {s(sT1)}, {s(sW)}, 1"), I(f"s_add_u32 {s(sT1)}, {s(sT1)}, {b}"), I(f"s_lshl_b32 m0, {s(sT1)}, 12"),
                I(f"s_lshl_b32 {s(sT2)}, {s(sRB)}, 2"), I(f"s_add_u32 {s(sT1)}, {s(sT1)}, {s(sT2)}"), I(f"s_max_u32 {s(sT1)}, {s(sT1)}, 8"),
                I(f"s_sub_u32 {s(sT1)}, {s(sT1)}, 8"), I(f"s_lshl_b32 {s(sT2)}, {s(sCG)}, 6"), I(f"s_add_u32 {s(sT1)}, {s(sT1)}, {s(sT2)}"),
                I(f"s_lshl_b32 {s(sT1)}, {s(sT1)}, 12"), I(f"s_add_u32 {s(sKVs)}, {s(sT1)}, {WS_KV}")]]
        grp += [dma(vL16, sWs, s(sKVs), 1024 * i, sc1=True) for i in range(4)]
        dm += grp
    return pre + [ld], chk, dm

def stats_recv():
    va = vSum
    pre = [I(f"v_and_b32 {v(va)}, 0x1f0, {v(vL16)}"), I(f"v_and_b32 {v(vSq)}, 0x200, {v(vL16)}"), I(f"v_lshl_add_u32 {v(va)}, {v(vSq)}, 3, {v(va)}"),
           [I(f"s_lshl_b32 {s(sT1)}, {s(sTB)}, 13"), I(f"s_add_u32 {s(sT1)}, {s(sT1)}, {WS_STATS}"), I(f"v_add_u32 {v(va)}, {s(sT1)}, {v(va)}")]]
    def loads(): return [gload(v(T + 4 * k, 4), va, sWs, "0", 512 * k, sc1=True) for k in range(8)]
    def chain():
        o = [I(f"v_xor_b32 {v(vSq)}, {s(sNonce)}, {v(T + 1)}")]
        for k in range(1, 16): o.append(I(f"v_bitop3_b32 {v(vSq)}, {v(vSq)}, {v(T + 2 * k + 1)}, {s(sNonce)} bitop3:0xf6"))
        return o
    ld = loads()
    ls, lb, ll = newlab("slow"), newlab("back"), newlab("loop")
    slow.extend([Label(ls), I(f"s_mov_b32 {s(sSpin)}, {OPT['spin']}"), Label(ll), I("s_sleep 1")] + loads() + [I("s_waitcnt vmcnt(0)")] + chain() + [
        I(f"v_cmp_ne_u32 {s(sMask, 2)}, 0, {v(vSq)}"), I("s_nop 1"), I(f"s_cmp_eq_u64 {s(sMask, 2)}, 0"), I(f"s_cbranch_scc1 {lb}"),
        I(f"s_sub_u32 {s(sSpin)}, {s(sSpin)}, 1"), I(f"s_cmp_lg_u32 {s(sSpin)}, 0"), I(f"s_cbranch_scc1 {ll}"), I(f"s_branch {lb}")])
    post = [Wait(ld[7].tok)] + stamp_n('sld') + chain() + [[I(f"v_cmp_ne_u32 {s(sMask, 2)}, 0, {v(vSq)}"), I(f"s_cmp_lg_u64 {s(sMask, 2)}, 0"), I(f"s_cbranch_scc1 {ls}"), Label(lb)]]
    post += stamp_n('schk')
    for step in (4, 8, 16):
        for k in range(0, 32, 2 * step):
            post += [I(f"v_add_f32 {v(T + k)}, {v(T + k)}, {v(T + k + step)}"), I(f"v_add_f32 {v(T + k + 2)}, {v(T + k + 2)}, {v(T + k + step + 2)}")]
    S, Q = T, T + 2
    post += cross_half("v_add_f32", S, T + 1) + cross_half("v_add_f32", Q, T + 3)
    post += [I(f"v_mul_f32 {v(S)}, {hx(fbits(1 / 896))}, {v(S)}"), I(f"v_mul_f32 {v(Q)}, {hx(fbits(1 / 896))}, {v(Q)}"),
             I(f"v_fma_f32 {v(Q)}, -{v(S)}, {v(S)}, {v(Q)}"), I(f"v_max_f32 {v(Q)}, 0, {v(Q)}")]
    post += rne_bf16(S, S) + rne_bf16(Q, Q) + [I(f"v_add_f32 {v(Q)}, {hx(fbits(1e-5))}, {v(Q)}")] + rne_bf16(Q, Q)
    post += [I(f"v_sqrt_f32 {v(Q)}, {v(Q)}")] + rne_bf16(Q, Q) + [I(f"v_rcp_f32 {v(vSum)}, {v(Q)}"), I(f"v_mul_f32 {v(vSq)}, {v(S)}, {v(vSum)}"),
                                                                   I(f"v_xor_b32 {v(vSq)}, 0x80000000, {v(vSq)}")]
    return pre + ld, post

def z2_addr():
    t0, t1, t2, t3 = ZA + 2, ZA + 3, ZA + 6, ZA + 7
    it = [I(f"v_lshrrev_b32 {v(t0)}, 3, {v(vL16)}"), I(f"v_and_b32 {v(t0)}, 64, {v(t0)}"), I(f"v_add_u32 {v(t0)}, {v(t0)}, {v(vL16)}"),
          I(f"v_and_b32 {v(t1)}, 0x200, {v(vL16)}"), I(f"v_or_b32 {v(t1)}, {s(sRingW)}, {v(t1)}"),
          I(f"v_and_b32 {v(ZA)}, 0x1f0, {v(t0)}"), I(f"v_or_b32 {v(ZA)}, {v(ZA)}, {v(t1)}"),
          I(f"v_add_u32 {v(t0)}, 128, {v(t0)}"), I(f"v_and_b32 {v(ZA + 1)}, 0x1f0, {v(t0)}"), I(f"v_or_b32 {v(ZA + 1)}, {v(ZA + 1)}, {v(t1)}")]
    it += [I(f"v_bfe_u32 {v(t0)}, {v(vL16)}, 8, 1"), I(f"v_bfe_u32 {v(t1)}, {v(vL16)}, 5, 1"),
           I(f"v_lshlrev_b32 {v(t2)}, 10, {v(t0)}"), I(f"v_lshl_add_u32 {v(t2)}, {v(t1)}, 9, {v(t2)}"),
           I(f"v_bfe_u32 {v(t3)}, {v(vL16)}, 4, 1"), I(f"v_lshl_add_u32 {v(t2)}, {v(t3)}, 3, {v(t2)}"),
           I(f"v_add_u32 {v(t2)}, {s(sRingW)}, {v(t2)}"),
           I(f"v_lshlrev_b32 {v(t3)}, 3, {v(t0)}"), I(f"v_lshl_add_u32 {v(t3)}, {v(t1)}, 2, {v(t3)}"),
           I(f"v_lshrrev_b32 {v(t1)}, 9, {v(vL16)}"), I(f"v_lshl_add_u32 {v(t3)}, {v(t1)}, 3, {v(t3)}"),
           I(f"v_bfe_u32 {v(t1)}, {v(vL16)}, 6, 2"), I(f"v_add_u32 {v(t3)}, {v(t3)}, {v(t1)}")]
    for u in range(2):
        for e in range(2):
            d = ZA + 2 + 2 * u + e
            it += [I(f"v_add_u32 {v(d)}, {16 * u + 4 * e}, {v(t3)}"), I(f"v_and_b32 {v(d)}, 31, {v(d)}"), I(f"v_lshl_add_u32 {v(d)}, {v(d)}, 4, {v(t2)}")]
    it += [[I(f"s_lshl_b32 {s(sT2)}, {s(sCG)}, 7"), I(f"s_add_u32 {s(sT2)}, {s(sT2)}, {s(sTB)}"), I(f"s_lshl_b32 {s(sT2)}, {s(sT2)}, 11"),
            I(f"s_add_u32 {s(sZo)}, {s(sT2)}, {WS_Z}")], I(f"v_add_u32 {v(ZA + 6)}, 131072, {v(vL16)}")]
    return it
ZA = 120
vTmpF = 13 if False else 2

def z2_publish():
    it = []; st = []; wr = {}
    norm = {}
    for ft in range(2):
        b = accA + 16 * ft
        o = [I(f"v_fma_f32 {v(b + e)}, {v(b + e)}, {v(vSum)}, {v(vSq)}") for e in range(16)]
        o += [I(f"v_cvt_pk_bf16_f32 {v(b + j)}, {v(b + 2 * j)}, {v(b + 2 * j + 1)}") for j in range(8)]
        o += [I(f"v_permlane32_swap_b32 {v(b + x)}, {v(b + x + 2)}") for x in (0, 1, 4, 5)]
        norm[ft] = o
        wr[ft] = [dsw(ZA + i, v(b + 4 * i, 4), ft * 2048 + i * 1024) for i in range(2)]
    def trd(ft):
        return [dstr(v(T + 8 * ft + 4 * u + 2 * e, 2), ZA + 2 + 2 * u + e, ft * 2048) for u in range(2) for e in range(2)]
    def sto(ft):
        o = [gstore(v(T + 8 * ft + 4 * u, 4), ZA + 6 if ft else vL16, sWs, s(sZo), u * 1024) for u in range(2)]
        st.extend(o); return o
    r0, r1 = trd(0), trd(1); s0_, s1_ = sto(0), sto(1)
    n1 = norm[1]
    it += norm[0] + [wr[0][0]] + n1[:6] + [wr[0][1]] + n1[6:14] + [Wait(*toks(wr[0]))] + r0 + n1[14:22] + [Wait(*toks(r0)), s0_[0]] + n1[22:]
    it += [wr[1][0], s0_[1], wr[1][1]]
    tail = [[Wait(*toks(wr[1]))] + r1, [Wait(*toks(r1)), s1_[0]], [s1_[1]]]
    return it, tail, st

def touch_out():
    if not OPT["touch2"]: return []
    c = [I(f"v_lshlrev_b32 {v(T)}, 3, {v(vL16)}"), I(f"s_and_b32 {s(sT1)}, {s(sRB)}, 3"), I(f"s_lshl_b32 {s(sT1)}, {s(sT1)}, 2"), I(f"s_add_u32 {s(sT1)}, {s(sT1)}, {s(sW)}"),
         I(f"s_mul_i32 {s(sT2)}, {s(sT1)}, 57344"), I(f"s_lshl_b32 {s(sT1)}, {s(sT1)}, 15")]
    for j in range(7):
        c += [VM(f"buffer_load_dword {v(T + 1)}, {v(T)}, {srd(sWout)}, {s(sT2)} offen"), I(f"s_add_u32 {s(sT2)}, {s(sT2)}, 8192")]
    if OPT["touch2"] > 1:
        for j in range(4):
            c += [VM(f"buffer_load_dword {v(T + 1)}, {v(T)}, {srd(sWo)}, {s(sT1)} offen"), I(f"s_add_u32 {s(sT1)}, {s(sT1)}, 8192")]
    return c

def p1_main(kinds, wd, full):
    nst = len(kinds); nstep = 8 * nst
    rd = {}
    def reads(n):
        st, ks = divmod(n, 8); f = AF + 8 * (n % 4)
        rd[n] = [dstr(a(f + 4 * u + 2 * e, 2), vTR, ((st + 2) % 4) * 16384 + ks * 2048 + u * 512 + e * 256) for u in range(2) for e in range(2)]
        return rd[n]
    pre_bar = {i: [] for i in range(nst + 1)}; post_bar = {i: [] for i in range(nst + 1)}
    def mm(n):
        st, ks = divmod(n, 8); k = kinds[st]; f = AF + 8 * (n % 4)
        st0 = kinds.index(k); ksg = (st - st0) * 8 + ks; first = ksg == 0
        W0, W1 = a(f, 4), a(f + 4, 4); x0 = v(X + 4 * ksg, 4)
        if k == "B": return mfma(accB, W0, x0, "0" if first else v(accB, 16)), mfma(accB + 16, x0, W1, "0" if first else v(accB + 16, 16))
        if k == "D": return mfma(accD, W0, x0, "0" if first else v(accD, 16)), mfma(accD, W1, v(X + 4 * (ksg + 16), 4), v(accD, 16))
        d = accA if k == "A" else accB
        return mfma(d, W0, x0, "0" if first else v(d, 16)), mfma(d + 16, W1, x0, "0" if first else v(d + 16, 16))
    spd = {}; spr = {}
    sp_first = OPT["sp0"]
    rd_st = dict(enumerate({0: [8, 9, 10, 11, 12, 13], 1: [9, 10, 11, 12, 13], 2: [7, 8, 9, 10, 11, 12, 13], 3: [11, 12, 13], 4: [6, 7, 8, 9, 10, 11, 12, 13]}[OPT["spm"]]))
    if full: OPT["sp1"] = len(rd_st)
    kvi, kvst = kv_epilogue()
    kpre, kchk, kdm = kv_fetch()
    bars = [1, 2, 3, 4, 5, 6, 7, 8, 10, 12] if full and OPT["skipbar"] else list(range(1, nst))
    fill = {i: [] for i in range(nst + 1)}
    issued = 3
    for st in range(1, nst):
        lastbar = max(b for b in bars if b <= st)
        while issued + 1 < nst and issued + 1 <= lastbar + 3:
            issued += 1; wd[issued] = w_dma(kinds, issued); fill[st] += wd[issued]
        if full:
            if st in (sp_first, sp_first + 1, sp_first + 2):
                w = st - sp_first; spd[w] = sp_dma(w); fill[st] += spd[w]
            for w in [w for w in rd_st if rd_st[w] == st]:
                spr[w] = sp_read(w)
                fill[st] = [Wait(*toks(spd[w]))] + spr[w] + fill[st]
                if w + 3 < 16:
                    spd[w + 3] = sp_dma(w + 3); fill[st] += [Wait(*toks(spr[w]))] + spd[w + 3]
    assert issued == nst - 1
    if full:
        pre_bar[12] += toks(kvst); post_bar[12] += [flag_store(F_KV, vTmpF)]
        fill[13] = fill[13] + kpre
    main = [Wait(*toks(wd[0])), BAR()] + stamp_n("b0") + reads(0) + reads(1) + reads(2) + reads(3)
    for n in range(nstep):
        m0, m1 = mm(n)
        main += [Wait(*(toks(rd[n]) + (toks(rd[n + 1]) if n % 2 == 0 else []))), m0]
        nx = n + 4
        if nx < nstep and nx % 8 == 0 and nx // 8 in bars:
            st = nx // 8
            nb_ = min([b for b in bars if b > st] + [nst])
            need = [t for x in range(st, nb_) for t in toks(wd[x])]
            main += [m1, [Wait(*(toks(rd[n + 3]) + need + pre_bar[st])), BAR()] + stamp_n(f"b{st}") + post_bar[st]] + reads(nx)
        elif nx < nstep:
            r = reads(nx); main += r[:2] + [m1] + (stamp_n(f"b{nx // 8}") if nx % 8 == 0 else []) + r[2:]
        else:
            main += [m1]
    for st in range(1, nst):
        lo = 2 * (8 * st - 4) + 2; hi = min(2 * (8 * (st + 1) - 4) + 1, 2 * nstep)
        main = weave(main, fill[st], lo, hi)
    if full:
        main = weave(main, rarr_write(), 4, 12)
        g2 = gelu(accA, 32, True); per = len(g2) // 8; cut = per * OPT["gs"]
        main = weave(main, g2[:cut], 64 + 3, 131)
        main = weave(main, kvi, 131, OPT["k1"])
        main = weave(main, g2[cut:] + stats_publish(), OPT["k1"], OPT["g1"])
        spre, spost = stats_recv()
        zi, ztail, zst = z2_publish()
        main = weave(main, q_epilogue(20) + z2_addr(), OPT["g1"], 216)
        main = weave(main, spre, 216, 224)
        g = gelu(accB, 32, False, 128); h = len(g) // 2; q3 = h + h // 2
        tail = stamp_at(4) + g[:h] + [kchk] + stamp_n("kchk") + spread(g[h:q3], kdm) + spost + zi
        r = g[q3:]
        tail += r[:16] + ztail[0] + r[16:32] + ztail[1] + r[32:] + ztail[2]
    else:
        main = weave(main, rarr_write() + stats_publish(zero=True), 4, 24)
        main = weave(main, kvi, 64 + 4, 96)
        zst = []
        tail = q_epilogue(20) + [Wait(*toks(kvst)), BAR(), flag_store(F_KV, 127)] + touch_out() + kpre + [kchk] + kdm + stamp_at(4)
    return spd, main + tail, kdm, zst

KF, S0, S1, Mc, Ma, P0, P1, Vf = 128, 144, 160, 176, 192, 208, 216, 224
OO = [240, 16]
Cz = 32
vKa, vTmp, vM, vPz, vPzA = 120, 121, 122, 123, 124
RO = [48, 52]
Q = accD
sBad = 86; sRet = 84

def att_setup(kdm, zst):
    c = []
    c += [I(f"s_lshl_b32 {s(sT1)}, {s(sW)}, 12"), I(f"v_add_u32 {v(vKa)}, {s(sT1)}, {v(vL16)}"),
          I(f"s_mov_b32 {s(sVm)}, 0xffff"), I(f"s_mov_b32 {s(sVm + 1)}, 0xffff")]
    c += [I(f"v_bfe_u32 {v(125)}, {v(vL16)}, 4, 5"), I(f"v_lshrrev_b32 {v(126)}, 9, {v(vL16)}"), I(f"v_lshlrev_b32 {v(126)}, 2, {v(126)}"),
          I(f"v_sub_u32 {v(125)}, {v(125)}, {v(126)}"), I(f"v_mov_b32 {v(127)}, 0xff800000")]
    for r in range(0, 16, 2):
        k0 = (r & 3) + 8 * (r >> 2)
        c += [I(f"v_cmp_gt_i32 vcc, {k0}, {v(125)}"), I(f"v_cmp_gt_i32 {s(sMask, 2)}, {k0 + 1}, {v(125)}"), I(f"v_mov_b32 {v(Vf + r)}, {s(sOnes)}"),
              I(f"v_cndmask_b32 {v(Mc + r)}, 0, {v(127)}, vcc"), I(f"v_cndmask_b32 {v(Mc + r + 1)}, 0, {v(127)}, {s(sMask, 2)}"),
              I(f"v_mov_b32 {v(Vf + r + 1)}, {s(sOnes)}"),
              I(f"v_xor_b32 {v(Ma + r)}, {v(Mc + r)}, {v(127)}"), I(f"v_xor_b32 {v(Ma + r + 1)}, {v(Mc + r + 1)}, {v(127)}")]
    c += [I(f"s_min_u32 {s(sJmin)}, {s(sTB)}, 8"), I(f"s_sub_u32 {s(sJmin)}, 8, {s(sJmin)}")]
    c += [Wait(*toks(kdm)), I("s_waitcnt lgkmcnt(0)"), BAR()] + stamp_at(6)
    return c

def maxops(S, first):
    o = []
    if first:
        o.append(I(f"v_max3_f32 {v(vM)}, {v(S)}, {v(S + 1)}, {v(S + 2)}"))
        for e in range(3, 15, 2): o.append(I(f"v_max3_f32 {v(vM)}, {v(vM)}, {v(S + e)}, {v(S + e + 1)}"))
        o.append(I(f"v_max_f32 {v(vM)}, {v(vM)}, {v(S + 15)}"))
    else:
        for e in range(0, 16, 2): o.append(I(f"v_max3_f32 {v(vM)}, {v(vM)}, {v(S + e)}, {v(S + e + 1)}"))
    return o
def att_scale(hd, check):
    O = OO[hd]; o = []
    if check:
        o += [I(f"v_max3_f32 {v(vM)}, |{v(O)}|, |{v(O + 1)}|, |{v(O + 2)}|"), I(f"v_max3_f32 {v(vM)}, {v(vM)}, |{v(O + 3)}|, |{v(O + 4)}|"),
              I(f"v_max3_f32 {v(vM)}, {v(vM)}, |{v(O + 5)}|, |{v(O + 6)}|"), I(f"v_max3_f32 {v(vM)}, {v(vM)}, |{v(O + 7)}|, |{v(O + 7)}|"),
              [I(f"v_cmp_nge_f32 vcc, {hx(fbits(2.0 ** 60))}, {v(O + 8)}"),
               I(f"s_mov_b64 {s(sBad, 2)}, vcc") if hd == 0 else I(f"s_or_b64 {s(sBad, 2)}, {s(sBad, 2)}, vcc")],
              [I(f"v_cmp_nle_f32 vcc, {hx(fbits(2.0 ** -60))}, {v(O + 8)}"), I(f"s_or_b64 {s(sBad, 2)}, {s(sBad, 2)}, vcc")],
              [I(f"v_cmp_nge_f32 vcc, {hx(fbits(2.0 ** 126))}, {v(vM)}"), I(f"s_or_b64 {s(sBad, 2)}, {s(sBad, 2)}, vcc")]]
    o += [I(f"v_rcp_f32 {v(vTmp)}, {v(O + 8)}")]
    o += [I(f"v_mul_f32 {v(O + e)}, {v(O + e)}, {v(vTmp)}") for e in range(8)]
    o += [I(f"v_cvt_pk_bf16_f32 {v(RO[hd] + j)}, {v(O + 2 * j)}, {v(O + 2 * j + 1)}") for j in range(4)]
    return o
def v_reads(j, hd, f):
    o = j * 4096 + 2048 + hd * 256
    return [I(f"s_mov_b64 exec, {s(sVm, 2)}"), dsr(v(f, 4), vKa, o), dsr(v(f + 4, 4), vKa, o + 1024), I("s_mov_b64 exec, -1")]

def attention(edge, hooks, otok):
    nb = 8 if edge else 9
    blocks = [(hd, j) for hd in range(2) for j in range(8, 8 - nb, -1)]
    N = len(blocks)
    hk = {k: [] for k in range(N)}
    for k in range(18): hk[(k * N) // 18] += hooks.get(k, [])
    kr = {}; vr = {}
    def kread(k):
        hd, j = blocks[k]; kr[k] = dsr(v(KF + 4 * (k % 4), 4), vKa, j * 4096 + hd * 1024); return [kr[k]]
    def vread(k):
        hd, j = blocks[k]; vr[k] = v_reads(j, hd, Vf + 8 * (k & 1)); return [vr[k]]
    def ms(k):
        hd, j = blocks[k]; o = []
        if j == 8: C = v(Mc, 16)
        elif edge:
            C = v(Cz, 16)
            if j == 7: o += [I(f"v_mov_b32 {v(Cz + r)}, 0") for r in range(16)]
            lo, lb = newlab("cz"), newlab("czb")
            slow.extend([Label(lo), I("s_nop 7")] + [I(f"v_mov_b32 {v(Cz + r)}, 0xff800000") for r in range(16)] + [I("s_nop 1"), I(f"s_branch {lb}")])
            o += [I(f"s_cmp_eq_u32 {s(sJmin)}, {j + 1}"), I(f"s_cbranch_scc1 {lo}"), Label(lb)]
        else: C = v(Ma, 16) if j == 0 else "0"
        return o + [Wait(kr[k].tok), mfma([S0, S1][k & 1], v(KF + 4 * (k % 4), 4), v(Q + 4 * hd, 4), C)]
    def pv(k, u):
        hd, j = blocks[k]; f = Vf + 8 * (k & 1) + 4 * u; P = [P0, P1][k & 1] + 4 * u; O = OO[hd]
        return ([Wait(vr[k][2].tok)] if u == 0 else []) + [mfma(O, v(f, 4), v(P, 4), "0" if (j == 8 and u == 0) else v(O, 16))]
    top = hooks.get("top", [])
    c = kread(0) + kread(1) + kread(2) + vread(0)
    if edge: c += top + hooks.get("norm", [])
    c += ms(0) + ms(1)
    if not edge: c += top
    for k in range(N):
        S = [S0, S1][k & 1]; P = [P0, P1][k & 1]
        ex = [I(f"v_exp_f32 {v(S + e)}, {v(S + e)}") for e in range(16)]
        cv = [I(f"v_cvt_pk_bf16_f32 {v(P + e)}, {v(S + 2 * e)}, {v(S + 2 * e + 1)}") for e in range(8)]
        if k == 0: c += vread(1) + kread(3) + ex
        else:
            c += ex[:2]
            if k + 1 < N: c += ms(k + 1)
            c += ex[2:7] + pv(k - 1, 0) + ex[7:12] + pv(k - 1, 1)
            if k + 1 < N: c += vread(k + 1)
            if k + 3 < N: c += kread(k + 3)
            c += ex[12:]
        c += cv + hk[k]
        if not edge and k == OPT["zn"]: c += hooks.get("norm", [])
        if k == nb + 1: c += att_scale(0, True)
        if k == nb - 1: c += stamp_n("a0p2")
    c += pv(N - 1, 0) + pv(N - 1, 1)
    c += [I(f"s_lshl_b32 {s(sT3)}, {s(sTB)}, 4"), I(f"s_add_u32 {s(sT3)}, {s(sT3)}, {s(sHP)}"), I(f"s_lshl_b32 {s(sT3)}, {s(sT3)}, 11"),
          I(f"s_add_u32 {s(sT3)}, {s(sT3)}, {WS_O}")]
    c += hooks.get("end", [])
    lb = newlab("ok")
    c += att_scale(1, True) + [I(f"s_cmp_eq_u64 {s(sBad, 2)}, 0"), I(f"s_cbranch_scc1 {lb}"), I(f"s_call_b64 {s(sRet, 2)}, L_attslow"), Label(lb)]
    c += [gstore(v(RO[hd], 4), vL16, sWs, s(sT3), 1024 * hd, tok=otok[hd]) for hd in range(2)]
    return c

def attention_slow():
    Cm, Cx = S1, 32
    c = [Label("L_attslow"), I("s_nop 7")]
    for hd in range(2):
        q = v(Q + 4 * hd, 4); O = OO[hd]
        l1, l2 = newlab("s1"), newlab("s2")
        for j in range(8, -1, -1):
            c += [dsr(v(KF, 4), vKa, j * 4096 + hd * 1024), I("s_waitcnt lgkmcnt(0)"),
                  mfma(S0, v(KF, 4), q, v(Mc, 16) if j == 8 else (v(Ma, 16) if j == 0 else "0"))] + maxops(S0, j == 8)
            if j > 0: c += [I(f"s_cmp_eq_u32 {s(sJmin)}, {j}"), I(f"s_cbranch_scc1 {l1}")]
        c += [Label(l1), I("s_nop 7")] + cross_half("v_max_f32", vM, vTmp)
        c += [I(f"v_sub_f32 {v(Cm + r)}, 0, {v(vM)}") for r in range(16)]
        for j in range(8, -1, -1):
            if j in (8, 0): c += [I(f"v_sub_f32 {v(Cx + r)}, {v((Mc if j == 8 else Ma) + r)}, {v(vM)}") for r in range(16)]
            c += [dsr(v(KF, 4), vKa, j * 4096 + hd * 1024)] + v_reads(j, hd, Vf) + [I("s_waitcnt lgkmcnt(0)"), mfma(S0, v(KF, 4), q, v(Cx if j in (8, 0) else Cm, 16))]
            c += [I(f"v_exp_f32 {v(S0 + e)}, {v(S0 + e)}") for e in range(16)]
            c += [I(f"v_cvt_pk_bf16_f32 {v(P0 + e)}, {v(S0 + 2 * e)}, {v(S0 + 2 * e + 1)}") for e in range(8)]
            c += [mfma(O, v(Vf, 4), v(P0, 4), "0" if j == 8 else v(O, 16)), mfma(O, v(Vf + 4, 4), v(P0 + 4, 4), v(O, 16)), I("s_nop 7")]
            if j > 0: c += [I(f"s_cmp_eq_u32 {s(sJmin)}, {j}"), I(f"s_cbranch_scc1 {l2}")]
        c += [Label(l2), I("s_nop 11")] + att_scale(hd, False)
    c += [I("s_nop 1"), I(f"s_setpc_b64 {s(sRet, 2)}")]
    return c

ZF, acc0, acc1, Cb, vZr, vBv = 128, 160, 192, 224, 240, 244
vTRp, vTRy, vWo, vWout, vRingV, vPoll, vPollA = 245, 246, 247, 248, 249, 250, 251
acc3 = 48; RES = 20; vOut = 28

def z_poll_addr(va):
    return [I(f"v_bfe_u32 {v(va)}, {v(vL16)}, 7, 1"), I(f"v_xor_b32 {v(va)}, {s(sCG)}, {v(va)}"), I(f"v_and_b32 {v(va + 1)}, 0x70, {v(vL16)}"),
            I(f"v_add_u32 {v(va)}, {v(va)}, {v(va + 1)}"), I(f"v_lshlrev_b32 {v(va)}, 8, {v(va)}"),
            [I(f"s_lshl_b32 {s(sT1)}, {s(sP)}, 15"), I(f"s_add_u32 {s(sT1)}, {s(sT1)}, {WS_FLAGS + F_Z * 65536}"), I(f"v_add_u32 {v(va)}, {s(sT1)}, {v(va)}")]]
def row_poll_addr(va, ftype, nmax):
    return [I(f"v_bfe_u32 {v(va)}, {v(vL16)}, 4, 4"), I(f"v_min_u32 {v(va)}, {nmax}, {v(va)}"), I(f"v_lshlrev_b32 {v(va)}, 8, {v(va)}"),
            [I(f"s_lshl_b32 {s(sT1)}, {s(sRB)}, 12"), I(f"s_add_u32 {s(sT1)}, {s(sT1)}, {WS_FLAGS + ftype * 65536}"), I(f"v_add_u32 {v(va)}, {s(sT1)}, {v(va)}")]]

def ring_setup_early():
    it = [I(f"s_lshl_b32 {s(sRingR)}, {s(sW)}, 12"), I(f"s_xor_b32 {s(sT1)}, {s(sCG)}, 1"), I(f"s_lshl_b32 {s(sT1)}, {s(sT1)}, 18"),
          I(f"s_lshl_b32 {s(sT2)}, {s(sP)}, 16"), I(f"s_add_u32 {s(sT1)}, {s(sT1)}, {s(sT2)}"), I(f"s_add_u32 {s(sT1)}, {s(sT1)}, {s(sRingR)}"),
          I(f"s_add_u32 {s(sZbase)}, {s(sT1)}, {WS_Z}"), I(f"s_xor_b32 {s(sZbase2)}, {s(sZbase)}, 262144"), I(f"v_add_u32 {v(vZ1)}, 131072, {v(vL16)}")]
    if OPT["rot"]:
        it += [I(f"s_and_b32 {s(sT1)}, {s(sRB)}, 3"), I(f"s_lshl_b32 {s(sZrot)}, {s(sT1)}, 14")]
    else: it += [I(f"s_mov_b32 {s(sZrot)}, 0")]
    return [it]

NQ = 27
if OPT["sched"] == 0:
    PREFILL = (0, 1, 2, 3)
    SCHED = {0: (4, 5, 16), 2: (6, 7, 17), 4: (8, 9, 18), 6: (10, 11, 19), 8: (12, 13), 10: (14, 15), 12: (20, 21), 14: (22, 23), 15: (24,), 16: (25,)}
else:
    PREFILL = (0, 4, 1, 2)
    SCHED = {0: (3, 5, 16), 2: (8, 6, 7), 4: (9, 10, 17), 6: (12, 11, 18), 8: (13, 19), 10: (14, 15), 12: (20, 21), 14: (22, 23), 15: (24,), 16: (25,)}
if OPT["sched"] == 2:
    SCHED = {0: (3, 5), 2: (8, 6, 7), 4: (9, 10, 16), 6: (12, 11, 17), 8: (13, 18, 19), 10: (14, 15), 12: (20, 21), 14: (22, 23), 15: (24,), 16: (25,)}
if OPT["sched"] == 3:
    PREFILL = (0, 1, 2, 3)
    SCHED = {0: (4, 5), 2: (6, 7, 8), 4: (9, 10, 16), 6: (11, 12, 17), 8: (13, 18, 19), 10: (14, 15), 12: (20, 21), 14: (22, 23), 15: (24,), 16: (25,)}
SLOT = {q: 6 + i for i, q in enumerate(PREFILL)}
_free = [0, 1, 2, 3, 4, 5]
for _q in sorted(SCHED):
    if _q: _free += [SLOT[_q - 2], SLOT[_q - 1]] if _q < 15 else [SLOT[_q - 1]]
    for _x in SCHED[_q]: SLOT[_x] = _free.pop(0)
SLOT[26] = SLOT[23]
def slot(q): return SLOT[q] * 16384
RED = sorted([slot(24), slot(25)])
assert RED[1] - RED[0] + 8192 < 65536
RT = {q: [Tok("vm", f"ring{q}_{i}") for i in range(4)] for q in range(NQ)}
def ring_dma(q):
    it = [I(f"s_add_u32 m0, {s(sRingR)}, {slot(q)}")]
    if q < 16:
        it += [I(f"s_add_u32 {s(sZoff)}, {s(sZrot)}, {(q & 3) * 16384}"), I(f"s_and_b32 {s(sZoff)}, {s(sZoff)}, 0xffff"),
               I(f"s_add_u32 {s(sZoff)}, {s(sZoff)}, {s(sZbase if q < 8 else sZbase2)}")]
        it += [dma(vZ1 if q & 4 else vL16, sWs, s(sZoff), 1024 * i, sc1=True, tok=RT[q][i]) for i in range(4)]
    else:
        va, r = (vWo, sWo) if q >= 23 else (vWout, sWout)
        if q >= 23:
            it.append([I(f"v_add_u32 {v(vTRy)}, {s(sR4)}, {v(va)}"), I(f"s_add_u32 {s(sR4)}, {s(sR4)}, 65536"), I(f"s_and_b32 {s(sR4)}, {s(sR4)}, 0x3ffff")])
        else:
            it.append([I(f"v_add_u32 {v(vTRy)}, {s(sR3)}, {v(va)}"), I(f"s_add_u32 {s(sR3)}, {s(sR3)}, 65536"), I(f"s_cmp_eq_u32 {s(sR3)}, {7 * 65536}"),
                       I(f"s_cselect_b32 {s(sR3)}, 0, {s(sR3)}")])
        it += [dma(vTRy, r, s(sOO + i) if i else "0", 1024 * i, tok=RT[q][i]) for i in range(4)]
    return it

def p3_setup():
    t0, t1, t2 = T, T + 1, T + 2
    it = [[I(f"s_add_u32 {s(sN0)}, {s(sC)}, {OPT['nrot']}"), I(f"s_and_b32 {s(sN0)}, {s(sN0)}, 7"), I(f"s_lshl_b32 {s(sN0)}, {s(sN0)}, 7"), I(f"s_lshr_b32 {s(sKH)}, {s(sW)}, 1"),
           I(f"s_and_b32 {s(sT1)}, {s(sW)}, 1"), I(f"s_lshl_b32 {s(sT2)}, {s(sP)}, 1"), I(f"s_add_u32 {s(sT1)}, {s(sT1)}, {s(sT2)}"),
           I(f"s_lshl_b32 {s(sT2)}, {s(sRB)}, 2"), I(f"s_add_u32 {s(sTok3)}, {s(sT1)}, {s(sT2)}")],
          ([I(f"s_add_u32 {s(sT1)}, {s(sRB)}, {s(sC)}"), I(f"s_and_b32 {s(sT1)}, {s(sT1)}, 3"), I(f"s_lshl_b32 {s(sR4)}, {s(sT1)}, 16"), I(f"s_lshl_b32 {s(sR4o)}, {s(sT1)}, 12"),
            I(f"s_and_b32 {s(sT1)}, {s(sRB)}, 3"), I(f"s_lshl_b32 {s(sT1)}, {s(sT1)}, 1"), I(f"s_add_u32 {s(sT1)}, {s(sT1)}, {s(sC)}"),
            I(f"s_sub_u32 {s(sT2)}, {s(sT1)}, 7"), I(f"s_cmp_ge_u32 {s(sT1)}, 7"), I(f"s_cselect_b32 {s(sT1)}, {s(sT2)}, {s(sT1)}"),
            I(f"s_lshl_b32 {s(sR3)}, {s(sT1)}, 16"), I(f"s_lshl_b32 {s(sR3y)}, {s(sT1)}, 12")] if OPT["rot"] else
           [I(f"s_mov_b32 {s(r)}, 0") for r in (sR4, sR4o, sR3, sR3y)]),
          I(f"v_bfe_u32 {v(t0)}, {v(vL16)}, 6, 3"), I(f"v_lshlrev_b32 {v(t0)}, 10, {v(t0)}"), I(f"v_and_b32 {v(t1)}, 48, {v(vL16)}"),
          I(f"v_or_b32 {v(t0)}, {v(t0)}, {v(t1)}"), I(f"v_lshrrev_b32 {v(t1)}, 9, {v(vL16)}"), I(f"v_lshl_add_u32 {v(t0)}, {v(t1)}, 6, {v(t0)}"),
          [I(f"s_and_b32 {s(sT1)}, {s(sW)}, 1"), I(f"s_lshl_b32 {s(sT1)}, {s(sT1)}, 15"), I(f"s_add_u32 {s(sT1)}, {s(sT1)}, {s(sN0)}"),
           I(f"v_add_u32 {v(t0)}, {s(sT1)}, {v(t0)}")],
          [I(f"s_mul_i32 {s(sT1)}, {s(sKH)}, {448 * 1024}"), I(f"v_add_u32 {v(vWout)}, {s(sT1)}, {v(t0)}")],
          [I(f"s_lshl_b32 {s(sT1)}, {s(sKH)}, 18"), I(f"v_add_u32 {v(vWo)}, {s(sT1)}, {v(t0)}")],
          I(f"v_bfe_u32 {v(t0)}, {v(vL16)}, 6, 2"), I(f"v_lshl_add_u32 {v(t0)}, {v(t1)}, 2, {v(t0)}"), I(f"v_lshlrev_b32 {v(t0)}, 6, {v(t0)}"),
          I(f"v_bfe_u32 {v(t2)}, {v(vL16)}, 8, 1"), I(f"v_lshl_add_u32 {v(t0)}, {v(t2)}, 5, {v(t0)}"),
          I(f"v_bfe_u32 {v(t2)}, {v(vL16)}, 4, 2"), I(f"v_lshl_add_u32 {v(t0)}, {v(t2)}, 3, {v(t0)}"),
          [I(f"s_lshl_b32 {s(sT1)}, {s(sKH)}, 13"), I(f"v_add_u32 {v(vTRp)}, {s(sT1)}, {v(t0)}")]]
    return it

OT = [Tok("vm", f"o{i}") for i in range(16)]
def o_loads():
    it = [[I(f"s_lshl_b32 {s(sT2)}, {s(sTok3)}, 15"), I(f"s_lshl_b32 {s(sT1)}, {s(sKH)}, 14"), I(f"s_add_u32 {s(sT2)}, {s(sT2)}, {s(sT1)}"),
           I(f"s_add_u32 {s(84)}, {s(sT2)}, {WS_O}")]]
    for i in range(16):
        if i % 4 == 0: it.append([I(f"s_add_u32 {s(sT3)}, {s(84)}, {s(sR4o)}"), I(f"s_add_u32 {s(sR4o)}, {s(sR4o)}, 4096"), I(f"s_and_b32 {s(sR4o)}, {s(sR4o)}, 0x3fff")])
        it.append(gload(a(4 * i, 4), vL16, sWs, s(sT3), 1024 * (i % 4), sc1=True, tok=OT[i]))
    return it
RSD = [Tok("vm", "res0"), Tok("vm", "res1")]
def res_loads():
    return [I(f"v_lshrrev_b32 {v(vOut)}, 7, {v(vL16)}"), I(f"v_lshlrev_b32 {v(vOut)}, 10, {v(vOut)}"), I(f"v_and_b32 {v(vOut + 1)}, 0x70, {v(vL16)}"),
            I(f"v_or_b32 {v(vOut)}, {v(vOut)}, {v(vOut + 1)}"),
            [I(f"s_lshl_b32 {s(sT1)}, {s(sRB)}, 17"), I(f"s_lshl_b32 {s(sT2)}, {s(sP)}, 16"), I(f"s_add_u32 {s(sT1)}, {s(sT1)}, {s(sT2)}"),
             I(f"s_lshl_b32 {s(sT2)}, {s(sW)}, 13"), I(f"s_add_u32 {s(sT1)}, {s(sT1)}, {s(sT2)}"), I(f"s_add_u32 {s(sT1)}, {s(sT1)}, {s(sN0)}"),
             I(f"v_add_u32 {v(vOut)}, {s(sT1)}, {v(vOut)}")],
            I(f"v_add_u32 {v(vOut + 1)}, 32768, {v(vOut)}"),
            gload(v(RES, 4), vOut, sX, "0", tok=RSD[0]), gload(v(RES + 4, 4), vOut + 1, sX, "0", tok=RSD[1])]

def p2_setup():
    t0 = T
    it = [I(f"v_add_u32 {v(vZr)}, {slot(0) & ~0xffff}, {v(vL16)}")]
    bl = gload(v(vBv), t0, sB, s(sT1), op="ushort")
    it += [I(f"v_bfe_u32 {v(t0)}, {v(vL16)}, 4, 5"), I(f"v_lshlrev_b32 {v(t0)}, 1, {v(t0)}"), [I(f"s_lshl_b32 {s(sT1)}, {s(sTB)}, 6"), bl]]
    return it, bl

def win(q): return slot(q) & ~0xffff
def rewin(regs_, q, prev=None):
    d = win(q) - (win(q - 1) if prev is None else prev)
    return [I(f"v_add_u32 {v(r)}, {hx(d)}, {v(r)}") for r in regs_] if d else []

F_Y0 = F_PART
sYo = 86
def y_epilogue(ft):
    b = acc1 + 16 * ft; it = []; st = []
    for i in range(2):
        it += [I(f"v_fma_f32 {v(b + e)}, {v(b + e)}, {v(accB + 16 * ft + e)}, {v(acc0 + 16 * ft + e)}") for e in range(8 * i, 8 * i + 8)]
        it += [I(f"v_cvt_pk_bf16_f32 {v(b + 8 * i + j)}, {v(b + 8 * i + 2 * j)}, {v(b + 8 * i + 2 * j + 1)}") for j in range(4)]
        g = gstore(v(b + 8 * i, 4), vL16, sWs, s(sYo), 1024 * (2 * ft + i)); st.append(g); it.append(g)
    return it, st

def phase2(otok):
    rd = {}; LEAD = 8
    def reads(n):
        q = n // 16
        rd[n] = dsr(v(ZF + 4 * (n % 8), 4), vZr, slot(q) - win(q) + (n % 16) * 1024)
        return (rewin([vZr], q) if n % 16 == 0 and q else []) + [rd[n]]
    setup, bl = p2_setup()
    bars = sorted(SCHED)
    pre = {q: [] for q in bars}; post = {q: [] for q in bars}; fill = {q: [] for q in bars}
    pre[4] += otok; post[4] += [flag_store(F_O, 29)]
    PK = 64; PK0 = 64; CK = 30; CA = 19; sPc, sPd = 72, 87
    x3 = lambda d, a_, b_, c_: I(f"v_bitop3_b32 {v(d)}, {a_}, {v(b_)}, {v(c_)} bitop3:0x96")
    def cksum(d, ft): return [x3(d, s(sNonce) if k == 0 else v(d), PK + 8 * ft + 2 * k, PK + 8 * ft + 2 * k + 1) for k in range(4)]
    def psend(ft):
        it = []
        for k in range(2):
            it += [I(f"v_cvt_pk_bf16_f32 {v(PK + 8 * ft + 4 * k + j)}, {v(acc0 + 16 * ft + 8 * k + 2 * j)}, {v(acc0 + 16 * ft + 8 * k + 2 * j + 1)}") for j in range(4)]
            it += [gstore(v(PK0 + 8 * ft + 4 * k, 4), vL16, sWs, s(sPa), 2048 * ft + 1024 * k)] + cksum(CK + ft, ft)[2 * k:2 * k + 2]
        it += [gstore(v(CK + ft), CA, sWs, s(sPb), 256 * ft, op="dword")]
        return it
    paddr = [[I(f"s_lshl_b32 {s(sT2)}, {s(sRB)}, 4"), I(f"s_add_u32 {s(sT2)}, {s(sT2)}, {s(sCG)}"), I(f"s_lshl_b32 {s(sT2)}, {s(sT2)}, 2"),
              I(f"s_add_u32 {s(sT2)}, {s(sT2)}, {s(sW)}")], [I(f"s_lshl_b32 {s(sPa)}, {s(sT2)}, 13"), I(f"s_add_u32 {s(sPa)}, {s(sPa)}, {WS_PART}"),
              I(f"s_add_u32 {s(sPb)}, {s(sPa)}, 4096")], I(f"s_xor_b32 {s(sPc)}, {s(sPa)}, 32768"), I(f"s_xor_b32 {s(sPd)}, {s(sPb)}, 32768"),
             I(f"v_lshrrev_b32 {v(CA)}, 2, {v(vL16)}"),
             [I(f"s_mul_i32 {s(sT2)}, {s(sTB)}, 56"), I(f"s_lshl_b32 {s(sT1)}, {s(sCG)}, 2"), I(f"s_add_u32 {s(sT2)}, {s(sT2)}, {s(sT1)}"),
              I(f"s_lshl_b32 {s(sT2)}, {s(sT2)}, 10"), I(f"s_add_u32 {s(sYo)}, {s(sT2)}, {WS_Y}")]]
    def precv(ft):
        def loads(): return [gload(v(CK + ft), CA, sWs, s(sPd), 256 * ft, sc1=True, op="dword")] + [
            gload(v(PK + 8 * ft + 4 * k, 4), vL16, sWs, s(sPc), 2048 * ft + 1024 * k, sc1=True) for k in range(2)]
        ld = loads(); cr = T + ft
        ls, lb, ll = newlab("slow"), newlab("back"), newlab("loop")
        slow.extend([Label(ls), I(f"s_mov_b32 {s(sSpin)}, {OPT['spin']}"), Label(ll), I("s_sleep 1")] + loads() + [I("s_waitcnt vmcnt(0)")] + cksum(cr, ft) + [
            I(f"v_cmp_ne_u32 {s(sMask, 2)}, {v(CK + ft)}, {v(cr)}"), I("s_nop 1"), I(f"s_cmp_eq_u64 {s(sMask, 2)}, 0"), I(f"s_cbranch_scc1 {lb}"),
            I(f"s_sub_u32 {s(sSpin)}, {s(sSpin)}, 1"), I(f"s_cmp_lg_u32 {s(sSpin)}, 0"), I(f"s_cbranch_scc1 {ll}"), I(f"s_branch {lb}")])
        chk = [Wait(ld[2].tok)] + cksum(cr, ft) + [[I(f"v_cmp_ne_u32 {s(sMask, 2)}, {v(CK + ft)}, {v(cr)}"), I(f"s_cmp_lg_u64 {s(sMask, 2)}, 0"),
                                                    I(f"s_cbranch_scc1 {ls}"), Label(lb)]] + (stamp_n("pchk") if ft else [])
        for j in range(8):
            g = acc0 + 16 * ft + 2 * j; z = accB + 16 * ft + 2 * j
            chk += [I(f"v_and_b32 {v(g + 1)}, 0xffff0000, {v(PK + 8 * ft + j)}"), I(f"v_lshlrev_b32 {v(g)}, 16, {v(PK + 8 * ft + j)}"),
                    I(f"v_mul_f32 {v(g + 1)}, {v(g + 1)}, {v(z + 1)}"), I(f"v_mul_f32 {v(g)}, {v(g)}, {v(z)}")]
        return ld, chk
    ld0, chk0 = precv(0); ld1, chk1 = precv(1)
    chk0 += [[I(f"s_or_b32 {s(sT1)}, {s(sRB)}, {s(sCG)}"), I(f"s_cmp_eq_u32 {s(sT1)}, 0"), I(f"s_cselect_b32 {s(sT1)}, 0, 0x80000000"),
              I(f"v_or_b32 {v(T)}, {s(sT1)}, {v(vFL)}"), I(f"v_mov_b32 {v(T + 2)}, {s(sNonce)}"), gstore(v(T + 2), T, sWs, "0", WS_EPOCH, op="dword")]]
    ol = poll_issue(vPoll, vPollA)
    if OPT["sched"] < 2: fill[0] += p3_setup()
    for q in bars:
        for x in SCHED[q]: fill[q] += ring_dma(x)
    if OPT["sched"] >= 2: fill[0] += p3_setup()
    y0, y0st = y_epilogue(0)
    pre[OPT["y0b"]] += toks(y0st); post[OPT["y0b"]] += [flag_store(F_Y0, T + 2)]
    main = setup + [Wait(*(RT[0] + RT[1])), I("s_waitcnt lgkmcnt(0)"), BAR()] + stamp_n("q0")
    for n in range(LEAD): main += reads(n)
    for n in range(256):
        sp, ks = divmod(n, 64); d = acc0 + 16 * sp if sp < 2 else acc1 + 16 * (sp - 2)
        C = v(d, 16) if ks else ("0" if sp < 2 else v(Cb, 16))
        if n % 4 == 0: main += [Wait(*[rd[n + k].tok for k in range(4)])]
        main += [mfma(d, v(ZF + 4 * (n % 8), 4), a(4 * ks, 4), C)]
        nx = n + LEAD; q = nx // 16
        if q in bars and q and nx % 16 < 2: continue
        if q in bars and q and nx % 16 == 2:
            need = RT[q] + RT[q + 1] if q < 15 else []
            main += [[Wait(*([rd[16 * q - 1].tok] + need + pre[q])), BAR()] + stamp_n(f"q{q}") + post[q]]
            if nx < 256: main += reads(nx - 2) + reads(nx - 1)
        if nx < 256: main += reads(nx)
    for i, q in enumerate(bars):
        lo = 16 * q - LEAD + 3 if q else 0; hi = 16 * bars[i + 1] - LEAD + 2 if i + 1 < len(bars) else 256
        if q and hi - lo > 20: hi = min(hi, lo + OPT["fw"])
        main = weave(main, fill[q], lo, hi)
    main = weave(main, row_poll_addr(vPollA, F_O, 15) + [ol], 108, 118)
    main = weave(main, res_loads() + [poll_check(ol, vPoll, vPollA)], 156, 170)
    cb = [Wait(bl.tok), I(f"v_lshlrev_b32 {v(vBv)}, 16, {v(vBv)}")] + [I(f"v_mov_b32 {v(Cb + r)}, {v(vBv)}") for r in range(16)]
    main = weave(main, paddr, 40, 60)
    main = weave(main, psend(0), 74, 90)
    main = weave(main, cb, 95, 124)
    main = weave(main, ld0 + psend(1), 135, 152)
    main = weave(main, chk0, 170, 192)
    main = weave(main, y0, 197, 208)
    main = weave(main, ld1, OPT["pl0"], OPT["pl0"] + 3)
    oi = o_loads()
    cut = [k for k, e in enumerate(oi) if isinstance(e, Ins) and e.tok is OT[OPT["on"] - 1]][0] + 1
    main = weave(main, oi[:cut], 210, 236)
    main = weave(main, chk1, OPT["pl1"], 256)
    y1, yst = y_epilogue(1)
    return main + stamp_at(7) + y1 + stamp_n("ep") + oi[cut:], yst
sPa, sPb = 61, 62

def flat1(x):
    out = []
    for e in x:
        if isinstance(e, list) and e and all(isinstance(y, Ins) and (y.kind == "ds" or y.op == "v_add_u32") for y in e): out.extend(e)
        else: out.append(e)
    return out

YT = [Tok("vm", f"yst{i}") for i in range(2)]
def light2(otok):
    c = ring_setup_early() + p3_setup() + [Wait(*otok), BAR(), flag_store(F_O, 30)]
    for q in range(16, 26): c += ring_dma(q)
    c += res_loads()
    ol = poll_issue(vPoll, vPollA)
    c += row_poll_addr(vPollA, F_O, 15) + [ol, poll_check(ol, vPoll, vPollA, sleep=8)] + o_loads()
    return c

def phase3():
    c = []
    rd = {}
    F3 = ZF
    def where(n):
        if n < 16: return 23 + n // 4, n % 4
        k = (n - 16) % 14; return 16 + k // 2, (k & 1) + (2 if n >= 30 else 0)
    cur = [0]
    def reads(n):
        q, j = where(n); f = F3 + 8 * (n % 4)
        rd[n] = [dstr(v(f + 4 * u + 2 * e, 2), vTRp, slot(q) - win(q) + j * 2048 + e * 1024 + u * 512) for u in range(2) for e in range(2)]
        adj = rewin([vTRp], q, cur[0]); cur[0] = win(q)
        return adj + rd[n]
    yld = {}
    def yload(n):
        k = (n - 16) % 14; part = n >= 30
        o = [I(f"s_add_u32 {s(sPb)}, {s(sPa)}, {s(sR3y)}"), I(f"s_add_u32 {s(sR3y)}, {s(sR3y)}, 4096"), I(f"s_cmp_eq_u32 {s(sR3y)}, {7 * 4096}"),
             I(f"s_cselect_b32 {s(sR3y)}, 0, {s(sR3y)}")] if k % 2 == 0 else []
        yld[n] = gload(a(4 * n, 4), vL16, sWs, s(sPb), 1024 * ((k & 1) + 2 * part), sc1=True)
        return o + [yld[n]]
    def step(n, mid=(), end=()):
        f = F3 + 8 * (n % 4); B = a(4 * n, 4)
        o = [Wait(*(toks(rd[n]) + [OT[n] if n < 16 else yld[n].tok])), mfma(acc3, v(f, 4), B, "0" if n == 0 else v(acc3, 16))]
        m1 = mfma(acc3 + 16, v(f + 4, 4), B, "0" if n == 0 else v(acc3 + 16, 16))
        r = reads(n + 4) if n + 4 < 44 else []
        if mid: o += [m1] + list(mid) + r
        else: o += r[:-2] + [m1] + r[-2:]
        return o + list(end)
    y0l = poll_issue(vPoll, vPollA)
    c += row_poll_addr(vPollA, F_Y0, 13) + [y0l]
    c += [I(f"s_mul_i32 {s(sT2)}, {s(sTok3)}, 56"), I(f"s_mul_i32 {s(sT1)}, {s(sKH)}, 28"), I(f"s_add_u32 {s(sT2)}, {s(sT2)}, {s(sT1)}"),
          I(f"s_lshl_b32 {s(sT2)}, {s(sT2)}, 10"), I(f"s_add_u32 {s(sPa)}, {s(sT2)}, {WS_Y}")]
    c += [Wait(*(RT[22] + RT[23] + RT[24])), BAR()]
    c += reads(0) + reads(1) + reads(2) + reads(3)
    y1l = poll_issue(vPoll, vPollA)
    yc, yf = OPT["yc"], OPT["yf"]
    todo = list(range(16, 30))
    for n in range(30):
        mid = []; end = []
        if n == 1: mid = [Wait(*toks(rd[3])), BAR()] + ring_dma(26)
        if n == 4: mid = [Wait(*RT[25]), BAR()]
        if n == 8: mid = [Wait(*RT[26]), BAR()]
        if n == yf: mid += [Wait(*YT), BAR(), flag_store(F_Y, T + 14)] + stamp_n("ybar")
        if n == yc: end += poll_check(y0l, vPoll, vPollA, sleep=OPT['ys0']) + stamp_n("y0flag") + [I(f"v_add_u32 {v(vPollA)}, {(F_Y - F_Y0) * 65536}, {v(vPollA)}")]
        if n >= yc:
            for _ in range(2 if n < 15 else 14):
                if todo: end += yload(todo.pop(0))
        if n == OPT["yp"]: end += [y1l]
        if n == 13 and yf < 12: mid += [BAR()]
        if n == 15: end += stamp_at(8)
        c += step(n, mid, end)
    wa, ra = 32, 40
    c += [I(f"v_bfe_u32 {v(T)}, {v(vL16)}, 4, 4"), I(f"v_lshrrev_b32 {v(T + 1)}, 9, {v(vL16)}"), I(f"v_xor_b32 {v(T)}, {v(T)}, {v(T + 1)}"),
          I(f"v_lshlrev_b32 {v(T)}, 4, {v(T)}"), I(f"v_and_b32 {v(T + 1)}, 0x1f0, {v(vL16)}"), I(f"v_lshl_add_u32 {v(T)}, {v(T + 1)}, 4, {v(T)}"),
          I(f"s_and_b32 {s(sT1)}, {s(sW)}, 1"), I(f"s_lshl_b32 {s(sT1)}, {s(sT1)}, 13"), I(f"s_mul_i32 {s(sT3)}, {s(sKH)}, {RED[1] - RED[0]}"),
          I(f"s_add_u32 {s(sT1)}, {s(sT1)}, {s(sT3)}"), I(f"s_add_u32 {s(sT1)}, {s(sT1)}, {RED[0]}"), I(f"v_add_u32 {v(wa)}, {s(sT1)}, {v(T)}")]
    for i in range(1, 8): c.append(I(f"v_xor_b32 {v(wa + i)}, {32 * i}, {v(wa)}"))
    c += [I(f"v_lshrrev_b32 {v(T)}, 7, {v(vL16)}"), I(f"s_lshl_b32 {s(sT1)}, {s(sW)}, 3"), I(f"v_add_u32 {v(T)}, {s(sT1)}, {v(T)}"),
          I(f"v_and_b32 {v(T + 1)}, 15, {v(T)}"), I(f"v_bfe_u32 {v(T + 2)}, {v(vL16)}, 4, 3"), I(f"v_lshlrev_b32 {v(T + 2)}, 1, {v(T + 2)}"),
          I(f"v_xor_b32 {v(T + 1)}, {v(T + 1)}, {v(T + 2)}"), I(f"v_lshlrev_b32 {v(T + 1)}, 4, {v(T + 1)}"), I(f"v_lshl_add_u32 {v(T)}, {v(T)}, 8, {v(T + 1)}"),
          I(f"v_add_u32 {v(ra)}, {RED[0]}, {v(T)}"), I(f"v_xor_b32 {v(ra + 1)}, 16, {v(ra)}")]
    c += poll_check(y1l, vPoll, vPollA, sleep=OPT['ys1'])
    c += stamp_at(9)
    LA = OPT["yla"]
    for n in range(30, 30 + LA): c += yload(n)
    for n in range(30, 44):
        c += step(n, end=yload(n + LA) if n + LA < 44 else [])
    ws = [dsw(wa + 4 * u + q, v(acc3 + 16 * u + 4 * q, 4)) for u in range(2) for q in range(4)]
    c += stamp_n("y28") + ws + [Wait(*toks(ws)), BAR()] + stamp_n("red")
    D = 128
    rr = [[dsr(v(D + 16 * k + 8 * hf + 4 * j, 4), ra + j, k * 8192 + hf * (RED[1] - RED[0])) for hf in range(2) for j in range(2)] for k in range(2)]
    c += rr[0] + rr[1]
    for k in range(2):
        b = D + 16 * k; x = RES + 4 * k
        c += [Wait(*(toks(rr[k]) + [RSD[k]]))]
        c += [I(f"v_add_f32 {v(b + e)}, {v(b + e)}, {v(b + 8 + e)}") for e in range(8)]
        for j in range(4):
            c += [I(f"v_lshlrev_b32 {v(b + 8 + 2 * j)}, 16, {v(x + j)}"), I(f"v_and_b32 {v(b + 9 + 2 * j)}, 0xffff0000, {v(x + j)}")]
        c += [I(f"v_add_f32 {v(b + e)}, {v(b + e)}, {v(b + 8 + e)}") for e in range(8)]
        c += [I(f"v_cvt_pk_bf16_f32 {v(b + j)}, {v(b + 2 * j)}, {v(b + 2 * j + 1)}") for j in range(4)]
        c += [gstore(v(b, 4), vOut + k, sOut, "0", sc1=False)]
    c += stamp_at(10)
    if OPT["probe"]:
        c += [I("s_waitcnt lgkmcnt(0)"), I(f"s_sub_u32 {s(sT1)}, {s(sStamp + 2)}, {s(sStamp)}"), I(f"s_mul_i32 {s(sT1)}, {s(sT1)}, {0 if OPT['probe'] == 'end' else 4}"),
              I(f"s_cmp_eq_u32 {s(sC)}, 7"), I(f"s_cselect_b32 {s(sT1)}, 0, {s(sT1)}"), I(f"s_add_u32 {s(sT1)}, {s(sT1)}, 6000"), I(f"s_min_u32 {s(sT1)}, {s(sT1)}, 50000"), Label("L_probe"), I(f"s_memrealtime {s(sStamp + 4, 2)}"), I("s_waitcnt lgkmcnt(0)"),
              I(f"s_sub_u32 {s(sT2)}, {s(sStamp + 4)}, {s(sStamp)}"), I(f"s_cmp_lt_u32 {s(sT2)}, {s(sT1)}"), I("s_cbranch_scc1 L_probe")]
    if OPT["stamps"]:
        c += [I("s_waitcnt lgkmcnt(0)")]
        for i in range(7): c.append(I(f"v_mov_b32 {v(128 + i)}, {s(sStamp + 2 * i)}"))
        c += [I(f"s_lshl_b32 {s(sT1)}, s2, 8"), I(f"s_lshl_b32 {s(sT2)}, {s(sW)}, 6"), I(f"s_add_u32 {s(sT1)}, {s(sT1)}, {s(sT2)}"),
              I(f"s_add_u32 {s(sT1)}, {s(sT1)}, {WS_DBG}"), I(f"v_mov_b32 {v(140)}, 0")]
        for i in range(2): c.append(gstore(v(128 + 4 * i, 4), 140, sWs, s(sT1), 16 * i, sc1=False))
    return c

def build():
    fr, rest = front()
    lnf, wdF = rest(KFULL); lnl, wdL = rest(KLIGHT)
    spd, p1F, kdmF, zst = p1_main(KFULL, wdF, True)
    _, p1L, kdmL, _ = p1_main(KLIGHT, wdL, False)
    otok = [Tok("vm", "ost0"), Tok("vm", "ost1")]
    def hooks_full():
        zl = poll_issue(vPz, vPzA)
        h = {k: [] for k in range(18)}
        h[OPT["zf"]] = [Wait(*toks(zst)), BAR(), flag_store(F_Z, 126)]
        np_ = 14
        left = list(range(OPT["sp1"], 16)); d = dict(spd)
        for i, w in enumerate(left):
            pl = (i * np_) // len(left)
            r = sp_read(w)
            h[pl] += [Wait(*toks(d[w]))] + r
            if w + 3 < 16:
                d[w + 3] = sp_dma(w + 3)
                h[pl + 1] = [Wait(*toks(r))] + d[w + 3] + h[pl + 1]
        zp = OPT["zp"]
        h[zp] += ring_setup_early() + z_poll_addr(vPzA) + [zl]
        rest = [[poll_check(zl, vPz, vPzA)] + stamp_n("zchk") + ring_dma(PREFILL[0])] + [ring_dma(x) for x in PREFILL[1:]]
        h["end"] = []
        for i, x in enumerate(rest):
            k = zp + 3 + i
            h[k if k < 18 else "end"] += x
        return h
    segs = {}
    segs["front"] = flat(fr + [I(f"s_cmp_ge_u32 {s(sCG)}, 14"), I("s_cbranch_scc1 L_light")])
    segs["fullP1"] = flat(lnf + stamp_at(3) + p1F + att_setup(kdmF, zst) + [I(f"s_cmp_lt_u32 {s(sRB)}, 2"), I("s_cbranch_scc1 L_fedge")])
    segs["fullAtt"] = flat(attention(False, hooks_full(), otok))
    p2, yst = phase2(otok)
    for g, t in zip(yst, YT): g.tok = t
    segs["P2"] = flat([Label("L_p2")] + stamp_at(5) + p2)
    segs["P3"] = flat([Label("L_p3")] + phase3() + [Label("L_end"), I("s_endpgm")])
    segs["fullEdge"] = flat([Label("L_fedge")] + attention(True, hooks_full(), otok) + [I("s_branch L_p2")])
    segs["lightP1"] = flat([Label("L_light")] + lnl + stamp_at(3) + p1L + att_setup(kdmL, []) + [I(f"s_cmp_lt_u32 {s(sRB)}, 2"), I("s_cbranch_scc1 L_ledge")])
    segs["lightAtt"] = flat(attention(False, {}, otok))
    l2 = light2(otok)
    fake = [VM(f"buffer_load_dword {v(T + 15)}, {v(vFL)}, {srd(sB)}, 0 offen", tok=t) for t in YT]
    segs["light2"] = flat([Label("L_l2")] + stamp_at(5) + fake + l2 + stamp_at(7) + [I("s_branch L_p3")])
    segs["lightEdge"] = flat([Label("L_ledge")] + attention(True, {}, otok) + [I("s_branch L_l2")])
    segs["attSlow"] = flat(attention_slow())
    paths = [["front", "fullP1", "fullAtt", "P2", "P3"], ["front", "fullP1", "fullEdge", "P2", "P3"],
             ["front", "lightP1", "lightAtt", "light2", "P3"], ["front", "lightP1", "lightEdge", "light2", "P3"]]
    finalize([flat([segs[n] for n in p]) for p in paths] + [flat(slow), segs["attSlow"]])
    order = ["front", "fullP1", "fullAtt", "P2", "P3", "fullEdge", "lightP1", "lightAtt", "light2", "lightEdge", "attSlow"]
    body = "\n".join(render(segs[n]) for n in order) + "\n" + render(flat(slow)) + "\nL_codeend:\n  s_endpgm"
    hdr = open(__file__.rsplit("/", 1)[0] + "/../cdna_kernels/parallel_sum__sliding_block__mixer_gmlp__prompt.s.ref").read().split("; Override launch")[0]
    out = hdr + "; @launch grid=(256,1,1) block=(256,1,1) lds=163840\n" + f'''.amdgcn_target "amdgcn-amd-amdhsa--gfx950"
.text
.globl {KNAME}
.p2align 8
.type {KNAME},@function
{KNAME}:
{body}
.section .rodata,"a"
.p2align 6
.amdhsa_kernel {KNAME}
  .amdhsa_next_free_vgpr 512
  .amdhsa_next_free_sgpr 102
  .amdhsa_accum_offset 256
  .amdhsa_group_segment_fixed_size 0
  .amdhsa_kernarg_size 88
  .amdhsa_user_sgpr_count 2
  .amdhsa_user_sgpr_kernarg_segment_ptr 1
  .amdhsa_system_sgpr_workgroup_id_x 1
  .amdhsa_float_denorm_mode_32 3
.end_amdhsa_kernel
'''
    if OPT["stamps"]: out = out.replace("; @launch", "; stamps: " + " ".join(PROFS[OPT["stamps"]]) + "\n; @launch")
    open(sys.argv[1], "w").write(out)
    n = {k: len(x) for k, x in segs.items()}
    pads = {k: sum(i.pad for i in x) for k, x in segs.items()}
    print("instr counts", n, "pads", pads, file=sys.stderr)

build()
```

```python
import re

def v(i, n=1):
    return f"v{i}" if n == 1 else f"v[{i}:{i+n-1}]"
def a(i, n=1):
    return f"a{i}" if n == 1 else f"a[{i}:{i+n-1}]"
def s(i, n=1):
    return f"s{i}" if n == 1 else f"s[{i}:{i+n-1}]"

TRANS = ("v_exp_f32", "v_log_f32", "v_rcp_f32", "v_rsq_f32", "v_sqrt_f32", "v_sin_f32", "v_cos_f32")

VMCOST = 1
class Tok:
    __slots__ = ("cls", "name")
    def __init__(self, cls, name=""):
        self.cls = cls; self.name = name

class Ins:
    __slots__ = ("text", "kind", "tok", "waits", "W", "R", "mf", "pad", "nvm", "nlg", "op", "cost")
    def __init__(self, text, kind=None, tok=None, waits=None):
        self.text = text; self.tok = tok; self.waits = waits; self.pad = 0
        self.nvm = None; self.nlg = None
        self.op = text.split()[0] if text else ""
        self.kind = kind or classify(self.op, text)
        self.W, self.R, self.mf = rw_sets(self)
        self.cost = 2 if self.kind in ("trans", "mfma") else (0 if self.kind == "label" else (VMCOST if self.kind == "vmem" else 1))

def classify(op, text):
    if op.endswith(":"): return "label"
    if op.startswith("v_mfma"): return "mfma"
    if op in TRANS: return "trans"
    if op.startswith("v_dot2"): return "dot"
    if op.startswith("v_"): return "valu"
    if op.startswith("ds_"): return "ds"
    if op.startswith("buffer_") or op.startswith("global_"): return "vmem"
    if op.startswith("s_load") or op.startswith("s_memtime") or op.startswith("s_memrealtime"): return "smem"
    if op == "s_waitcnt": return "rawwait"
    if op == "s_barrier": return "barrier"
    if op == "s_nop": return "nop"
    if op.startswith("s_cbranch") or op in ("s_branch", "s_endpgm", "s_call_b64", "s_setpc_b64"): return "branch"
    if op.startswith("s_"): return "salu"
    return "other"

_reg = re.compile(r"^-?\|?(?:abs\()?([vas])(?:(\d+)|\[(\d+):(\d+)\])\)?\|?$")
def regs(opnd):
    opnd = opnd.strip()
    if opnd == "vcc": return {("s", 106), ("s", 107)}
    if opnd == "exec": return {("s", 126), ("s", 127)}
    if opnd == "m0": return {("s", 124)}
    m = _reg.match(opnd)
    if not m: return set()
    c = m.group(1)
    if m.group(2) is not None: return {(c, int(m.group(2)))}
    return {(c, i) for i in range(int(m.group(3)), int(m.group(4)) + 1)}

def operands(text):
    parts = text.split(None, 1)
    if len(parts) < 2: return []
    out = []
    for p in parts[1].split(","):
        out.append(p.strip().split()[0] if p.strip() else "")
    return out

def rw_sets(ins):
    k = ins.kind; op = ins.op; o = operands(ins.text); W = set(); R = set(); mf = None
    if k == "mfma":
        D, A, B, C = regs(o[0]), regs(o[1]), regs(o[2]), regs(o[3])
        W = D; R = A | B | C; mf = (D, A | B, C, 8 if "32x32" in op else 4)
    elif k in ("valu", "trans", "dot"):
        if op.startswith("v_permlane") and "swap" in op:
            W = regs(o[0]) | regs(o[1]); R = set(W)
        elif op.startswith("v_nop"):
            pass
        else:
            W = regs(o[0])
            for x in o[1:]: R |= regs(x)
            if op.startswith("v_fmac") or op.startswith("v_dot2c") or op.startswith("v_writelane"): R |= W
            if op.startswith("v_cndmask") and len(o) == 3: R |= regs("vcc")
    elif k == "ds":
        if op.startswith("ds_read"):
            W = regs(o[0]); R = regs(o[1])
        else:
            for x in o: R |= regs(x)
    elif k == "vmem":
        lds = ins.text.rstrip().endswith("lds")
        if op.startswith("buffer_load") and not lds:
            W = regs(o[0])
            for x in o[1:]: R |= regs(x)
        elif op.startswith("global_load"):
            W = regs(o[0])
            for x in o[1:]: R |= regs(x)
        else:
            for x in o: R |= regs(x)
            if lds: R |= regs("m0")
    elif k == "smem":
        W = regs(o[0])
        for x in o[1:]: R |= regs(x)
    elif k == "salu":
        if op.startswith("s_cmp") or op.startswith("s_bitcmp") or op in ("s_sleep", "s_setprio"):
            for x in o: R |= regs(x)
        else:
            W = regs(o[0])
            for x in o[1:]: R |= regs(x)
            if "saveexec" in op: W |= regs("exec")
    return W, R, mf

def I(text, tok=None):
    return Ins(text, tok=tok)
def Wait(*toks):
    toks = [t for t in toks if t is not None]
    return Ins("s_waitcnt", kind="wait", waits=toks)
def VM(text, name="", tok=None):
    return Ins(text, tok=tok or Tok("vm", name or text))
def DS(text, name="", tok=None):
    return Ins(text, tok=tok or Tok("lg", name or text))
def Label(name):
    return Ins(name + ":", kind="label")

def flat(x):
    out = []
    for e in x:
        if isinstance(e, (list, tuple)): out.extend(flat(e))
        elif e is not None: out.append(e)
    return out

def weave(main, filler, m0=0, m1=None):
    pos = [i for i, e in enumerate(main) if any(x.kind == "mfma" for x in flat([e]))]
    if m1 is None: m1 = len(pos)
    m1 = min(m1, len(pos))
    sel = pos[m0:m1]
    if not filler: return list(main)
    assert sel, "no MFMA to weave into"
    cost = [sum(x.cost for x in flat([e])) for e in filler]
    load = []
    for j, p in enumerate(sel):
        nxt = pos[pos.index(p) + 1] if pos.index(p) + 1 < len(pos) else len(main)
        load.append(sum(x.cost for e in main[p + 1:nxt] for x in flat([e])))
    total = sum(cost) + sum(load)
    per = total / len(sel)
    ins_at = {p: [] for p in sel}
    acc = 0.0; fi = 0
    for j, p in enumerate(sel):
        acc += load[j]
        target = per * (j + 1)
        while fi < len(filler) and (acc + cost[fi] / 2.0 <= target or j == len(sel) - 1):
            ins_at[p].append(filler[fi]); acc += cost[fi]; fi += 1
    out = []
    for i, e in enumerate(main):
        out.append(e)
        if i in ins_at: out.extend(ins_at[i])
    return out

LENIENT = False
def resolve_waits(path):
    vm = {}; lg = {}; nvm = 0; nlg = 0; vm_done = 0; lg_done = 0
    for x in path:
        if x.kind == "vmem":
            nvm += 1
            if x.tok: vm[id(x.tok)] = nvm
        elif x.kind == "ds":
            nlg += 1
            if x.tok: lg[id(x.tok)] = nlg
        elif x.kind == "rawwait":
            m = re.search(r"vmcnt\((\d+)\)", x.text)
            if m: vm_done = max(vm_done, nvm - int(m.group(1)))
            m = re.search(r"lgkmcnt\((\d+)\)", x.text)
            if m: lg_done = max(lg_done, nlg - int(m.group(1)))
        elif x.kind == "wait":
            needv = max([vm[id(t)] for t in x.waits if t.cls == "vm" and id(t) in vm], default=0)
            needl = max([lg[id(t)] for t in x.waits if t.cls == "lg" and id(t) in lg], default=0)
            for t in x.waits:
                if id(t) not in vm and id(t) not in lg and not LENIENT:
                    raise RuntimeError("wait on token never issued on this path: " + t.name)
            if needv > vm_done:
                n = min(nvm - needv, 63)
                x.nvm = n if x.nvm is None else min(x.nvm, n)
            if needl > lg_done:
                n = min(nlg - needl, 15)
                x.nlg = n if x.nlg is None else min(x.nlg, n)
            if x.nvm is not None: vm_done = max(vm_done, nvm - x.nvm)
            if x.nlg is not None: lg_done = max(lg_done, nlg - x.nlg)

def states(x):
    if x.kind == "label": return 0
    if x.kind == "wait" and x.nvm is None and x.nlg is None: return 0
    if x.kind == "nop": return int(x.text.split()[1]) + 1
    return 1

VALUK = ("valu", "trans", "dot")
def need_states(p, c):
    n = 0
    pv = p.kind in VALUK; cv = c.kind in VALUK
    if pv:
        vw = {r for r in p.W if r[0] in "va"}; sw = {r for r in p.W if r[0] == "s"}
        if c.kind == "mfma" and vw & c.R: n = max(n, 2)
        if p.kind == "trans" and cv and c.kind != "trans" and vw & c.R: n = max(n, 1)
        if p.kind == "trans" and c.kind == "trans" and vw & c.R: n = max(n, 1)
        if c.op.startswith("v_permlane") and vw & c.R: n = max(n, 2)
        if c.op.startswith("v_readfirstlane") or c.op.startswith("v_readlane"):
            if vw & c.R: n = max(n, 1)
        if "dpp" in c.text or "row_" in c.text or "quad_perm" in c.text:
            if vw & c.R: n = max(n, 2)
        if sw:
            if cv and sw & c.R: n = max(n, 2)
            if c.kind == "vmem" and sw & c.R: n = max(n, 5)
            if c.kind in ("salu", "branch", "smem") and (sw & c.R or c.op.startswith("s_cbranch_vcc")): n = max(n, 2)
        if p.kind == "dot":
            if c.kind == "dot" and c.op == p.op:
                o = operands(c.text)
                if vw & (regs(o[1]) | regs(o[2])): n = max(n, 3)
            elif vw & (c.R | c.W): n = max(n, 3)
    if p.kind == "mfma":
        D, AB, C, passes = p.mf
        big = 12 if passes == 8 else 8
        if c.kind == "mfma":
            D2, AB2, C2, p2 = c.mf
            if D & AB2: n = max(n, big)
            if D & C2 and not (D == C2 and p2 == passes): n = max(n, big - 2)
            if D & D2 and not (D == C2 and p2 == passes): n = max(n, big - 2)
        else:
            if D & (c.R | c.W): n = max(n, big)
            if cv and C & c.W: n = max(n, 7 if passes == 8 else 3)
    if p.kind == "salu" and ("s", 124) in p.W and c.kind == "vmem" and ("s", 124) in c.R: n = max(n, 1)
    if p.kind == "vmem" and ("store_dwordx4" in p.op or "store_dwordx3" in p.op):
        data = regs(operands(p.text)[0] if p.op.startswith("buffer") else operands(p.text)[1])
        if data & c.W: n = max(n, 2)
    return n

def pad_hazards(path):
    live = [x for x in path]
    for i, c in enumerate(live):
        if c.kind in ("label", "wait", "rawwait", "nop", "barrier"): continue
        dist = c.pad; j = i - 1; need = 0
        while j >= 0 and dist < 20:
            p = live[j]
            r = need_states(p, c)
            if r > dist: need = max(need, r - dist)
            dist += states(p) + p.pad
            j -= 1
        if need: c.pad += need

def render(seq):
    out = []
    for x in seq:
        p = x.pad
        while p > 0:
            k = min(p, 16); out.append(f"  s_nop {k-1}"); p -= k
        if x.kind == "wait":
            t = []
            if x.nvm is not None: t.append(f"vmcnt({x.nvm})")
            if x.nlg is not None: t.append(f"lgkmcnt({x.nlg})")
            if t: out.append("  s_waitcnt " + " ".join(t))
        elif x.kind == "label": out.append(x.text)
        else: out.append("  " + x.text)
    return "\n".join(out)

def finalize(paths):
    for _ in range(2):
        for p in paths: resolve_waits(p)
    for p in paths: pad_hazards(p)
```

```python
import sys, math, struct, os
sys.path.insert(0, __file__.rsplit("/", 1)[0])
from asmlib import *

KNAME = "parallel_sum__sliding_block__mixer_gmlp__prompt_kernel"
OPT = dict(stamps=0, spin=20000, nt_x=0, nt_w=0, ost=0, vmc=6, sph=0, wpre=0, npl=14, abl1=0, abl2=0, abl3=0, probe=None, rt=0, cpf=1, nt_sp=0, nt_o=0, nt_t=0, rot=1, sp0=5, sp1=10, spm=0, touch=1, touch_o=0, pl0=194, pl1=230, fw=32, y0b=15, ys0=8, ys1=2, on=8, sched=0, nrot=4, crot=7, touch2=0, yc=6, yf=4, zn=3, yp=26, yla=10, gp=0, gz0=2, gz1=165, gs=5, k1=146, g1=182, zf=4, skipbar=1, zp=10, nosp=0)
for arg in sys.argv[2:]:
    k, val = arg.split("="); OPT[k] = val if k == "probe" else int(val)

import asmlib
asmlib.VMCOST = OPT["vmc"]
def fbits(x): return struct.unpack("<I", struct.pack("<f", x))[0]
def hx(x): return hex(x & 0xffffffff)

WS_EPOCH = 0
WS_FLAGS = 0x1000
WS_STATS = 0x100000
WS_KV = 0x200000
WS_Z = 0x600000
WS_PART = 0xA00000
WS_O = 0x1200000
WS_Y = 0x1400000
WS_DBG = 0x1800000
F_KV, F_Z, F_PART, F_O, F_Y = range(5)
L_STG = 48 * 1024; L_RING = 96 * 1024; L_RED = 48 * 1024
sX, sWq, sWi, sWsp, sWo, sWout, sB, sOut, sWs = 4, 8, 12, 16, 20, 24, 28, 32, 36
sRB, sCG, sP, sW, sNonce, sHP, sTB, sT0 = 40, 41, 42, 43, 44, 45, 46, 47
sOI, sOQ, sOO = 48, 52, 56
sMyFlag = 48
sJmin = 52
sN0 = 56
sSpA, sSpB, sRingW, sStg, sZoff, sRingR = 61, 62, 63, 64, 65, 66
sTok3 = 67
sKH = 68
sC10, sC01, sOnes = 70, 71, 72
sKVo, sKVs, sZo = 60, 69, 73
sMask = 74; sSpin = 76; sT1, sT2, sT3 = 77, 78, 79
sRotI, sRotQ = 80, 84
sR4, sR4o, sR3, sR3y = 80, 81, 82, 83
sStamp = 88
sC = 3; sSpBase = 0; sSpRot = 1; sVm = 70; sZbase = 60; sZrot = 69; sZbase2 = 73
vZ1 = 2
vL16, vTR, vWd, vSpA, vSpB, vSpR, vFL, vR, vGA, vGB, vD, vSum, vSq = 0, 1, 2, 3, 4, 5, 9, 10, 11, 12, 13, 14, 15
T = 16
accA, accB, accD, X = 48, 80, 112, 128
vStD, vStA, vStB, vStC = 43, 45, 46, 47
AF = 224

slow = []
_lab = [0]
def newlab(n):
    _lab[0] += 1; return f"L_{n}_{_lab[0]}"

_st = [0]
def stamp():
    if not OPT["stamps"]: return []
    i = _st[0]; _st[0] += 1
    assert sStamp + 2 * i + 1 <= 101
    return [I(f"s_memtime {s(sStamp + 2 * i, 2)}")]
PROFS = {1: ["start", "center", "P1", "att", "P2", "yflag", "end"],
         2: ["start", "b0", "b4", "b8", "b10", "b12", "P1"],
         4: ["start", "P1", "kchk", "sld", "schk", "attbar", "a0p2"],
         6: ["start", "b3", "b4", "b5", "b6", "b7", "b8"],
         10: ["start", "b8", "b9", "b10", "b11", "b12", "b13"],
         3: ["start", "q0", "q4", "q8", "q12", "pchk", "P2"],
         5: ["start", "dma0", "x0", "x3", "xbar", "stats", "lnpre"],
         7: ["start", "P2", "y0flag", "opart", "yflag", "y28", "end"],
         8: ["start", "P1", "kchk", "attbar", "a0p2", "zchk", "att"],
         9: ["start", "rt:start", "P1", "rt:P1", "P2", "end", "rt:end"]}
OLD = ["start", "x0", "stats", "center", "P1", "att", "attbar", "P2", "opart", "yflag", "end"]
def stamp_n(name):
    if OPT["probe"]:
        if name == "start": return [I(f"s_memrealtime {s(sStamp, 2)}")]
        if name == OPT["probe"]: return [I(f"s_memrealtime {s(sStamp + 2, 2)}")]
        return []
    if not OPT["stamps"]: return []
    L = PROFS[OPT["stamps"]]
    if name not in L: return []
    o = [I(f"{'s_memrealtime' if OPT['rt'] else 's_memtime'} {s(sStamp + 2 * L.index(name), 2)}")]
    if "rt:" + name in L: o.append(I(f"s_memrealtime {s(sStamp + 2 * L.index('rt:' + name), 2)}"))
    return o
def stamp_at(i): return stamp_n(OLD[i])

def srd(r): return s(r, 4)
def dma(vaddr, r, soff, imm, sc1=False, tok=None):
    o = f" offset:{imm}" if imm else ""
    nt = {sX: OPT["nt_x"], sWq: OPT["nt_w"], sWi: OPT["nt_w"], sWsp: OPT["nt_sp"], sWo: OPT["nt_o"], sWout: OPT["nt_o"]}.get(r, 0)
    return VM(f"buffer_load_dwordx4 {v(vaddr)}, {srd(r)}, {soff} offen{o}{' sc1' if sc1 else ''}{' nt' if nt else ''} lds", tok=tok)
def gload(dst, vaddr, r, soff, imm=0, sc1=False, tok=None, op="dwordx4"):
    o = f" offset:{imm}" if imm else ""
    return VM(f"buffer_load_{op} {dst}, {v(vaddr)}, {srd(r)}, {soff} offen{o}{' sc1' if sc1 else ''}", tok=tok)
def gstore(src, vaddr, r, soff, imm=0, sc1=True, op="dwordx4", tok=None):
    o = f" offset:{imm}" if imm else ""
    return VM(f"buffer_store_{op} {src}, {v(vaddr)}, {srd(r)}, {soff} offen{o}{' sc1' if sc1 else ''}", tok=tok)
def dsr(dst, vaddr, imm=0, op="ds_read_b128"):
    o = f" offset:{imm}" if imm else ""
    return DS(f"{op} {dst}, {v(vaddr)}{o}")
def dstr(dst, vaddr, imm=0): return dsr(dst, vaddr, imm, "ds_read_b64_tr_b16")
def dsw(vaddr, src, imm=0, op="ds_write_b128"):
    o = f" offset:{imm}" if imm else ""
    return DS(f"{op} {v(vaddr)}, {src}{o}")
def mfma(d, A, B, C):
    return I(f"v_mfma_f32_32x32x16_bf16 {v(d, 16)}, {A}, {B}, {C}")
def toks(items): return [x.tok for x in flat(items) if x.tok is not None]
def vmtoks(items): return [x.tok for x in flat(items) if x.tok is not None and x.kind == "vmem"]
def lgtoks(items): return [x.tok for x in flat(items) if x.tok is not None and x.kind == "ds"]
BAR = lambda: I("s_barrier")

def rne_bf16(dst, src):
    return [I(f"v_cvt_pk_bf16_f32 {v(dst)}, {v(src)}, {v(src)}"), I(f"v_and_b32 {v(dst)}, 0xffff0000, {v(dst)}")]
def cross_half(op, r, tmp):
    return [I(f"v_mov_b32 {v(tmp)}, {v(r)}"), I(f"v_permlane32_swap_b32 {v(r)}, {v(tmp)}"), I(f"{op} {v(r)}, {v(r)}, {v(tmp)}")]

def flag_store(ftype, vtmp):
    return [I(f"s_add_u32 {s(sT1)}, {s(sMyFlag)}, {ftype * 65536}"), I(f"v_mov_b32 {v(vtmp)}, {s(sNonce)}"),
            gstore(v(vtmp), vFL, sWs, s(sT1), op="dword")]
def poll_issue(vdst, vaddr):
    return gload(v(vdst), vaddr, sWs, "0", sc1=True, op="dword")
def poll_check(ld, vdst, vaddr, sleep=1):
    ls, lb, ll = newlab("slow"), newlab("back"), newlab("loop")
    slow.extend([Label(ls), I(f"s_mov_b32 {s(sSpin)}, {OPT['spin']}"), Label(ll)] + ([I(f"s_sleep {sleep}")] if sleep else []) + [
        gload(v(vdst), vaddr, sWs, "0", sc1=True, op="dword"), I("s_waitcnt vmcnt(0)"),
        I(f"v_cmp_ne_u32 {s(sMask, 2)}, {s(sNonce)}, {v(vdst)}"), I("s_nop 1"), I(f"s_cmp_eq_u64 {s(sMask, 2)}, 0"), I(f"s_cbranch_scc1 {lb}"),
        I(f"s_sub_u32 {s(sSpin)}, {s(sSpin)}, 1"), I(f"s_cmp_lg_u32 {s(sSpin)}, 0"), I(f"s_cbranch_scc1 {ll}"), I(f"s_branch {lb}")])
    return [Wait(ld.tok), I(f"v_cmp_ne_u32 {s(sMask, 2)}, {s(sNonce)}, {v(vdst)}"), I(f"s_cmp_lg_u64 {s(sMask, 2)}, 0"),
            I(f"s_cbranch_scc1 {ls}"), Label(lb)]

def prologue():
    c = [I(f"s_load_dwordx2 {s(sX, 2)}, s[0:1], 0"), I("s_cmp_ge_u32 s2, 256"), I("s_cbranch_scc1 L_end")]
    c += stamp_at(0)
    for r, off in ((sWq, 8), (sWs, 80), (sWi, 32), (sWsp, 40), (sWo, 16), (sB, 48), (sWout, 56), (sOut, 64)):
        c.append(I(f"s_load_dwordx2 {s(r, 2)}, s[0:1], {off}"))
    l = 17
    c += [I(f"v_lshrrev_b32 {v(16)}, 6, v0"), I(f"v_and_b32 {v(l)}, 63, v0"), I(f"v_readfirstlane_b32 {s(sW)}, {v(16)}"),
          I(f"s_lshr_b32 {s(sC)}, s2, 5"), I(f"s_add_u32 {s(sC)}, {s(sC)}, {OPT['crot']}"), I(f"s_and_b32 {s(sC)}, {s(sC)}, 7")]
    if OPT["cpf"]:
        c += [I(f"s_cmp_lt_u32 s2, {32 * OPT['cpf']}"), I("s_cbranch_scc1 L_cpf"), Label("L_nocpf")]
        slow.extend([Label("L_cpf"), I("s_getpc_b64 s[80:81]"), Label("L_pc"),
                     I(f"s_sub_u32 s80, s80, L_pc-{KNAME}"), I("s_subb_u32 s81, s81, 0"), I(f"s_mov_b32 s82, L_codeend-{KNAME}"), I("s_mov_b32 s83, 0x20000"),
                     I("s_bfe_u32 s84, s2, 0x20003"), I("s_lshl_b32 s84, s84, 14"), I("v_and_b32 v18, 31, v0"),
                     I("v_lshlrev_b32 v18, 7, v18"), I("v_lshl_add_u32 v18, v16, 12, v18"),
                     VM("buffer_load_dword v42, v18, s[80:83], s84 offen"), I("s_branch L_nocpf")])
    c += [I(f"s_bfe_u32 {s(sRB)}, s2, {1 | (2 << 16)}"), I(f"s_lshl_b32 {s(sRB)}, {s(sRB)}, 2"),
          I(f"s_bfe_u32 {s(sT0)}, s2, {3 | (2 << 16)}"), I(f"s_add_u32 {s(sRB)}, {s(sRB)}, {s(sT0)}"),
          I(f"s_lshl_b32 {s(sTB)}, {s(sRB)}, 2"), I(f"s_add_u32 {s(sTB)}, {s(sTB)}, {s(sW)}"),
          I(f"s_mov_b32 {s(sX + 2)}, 2097152"), I(f"s_mov_b32 {s(sX + 3)}, 0x20000")]
    c += [I(f"v_lshrrev_b32 {v(18)}, 4, {v(l)}"), I(f"v_and_b32 {v(19)}, 15, {v(l)}"), I(f"v_xor_b32 {v(19)}, {v(18)}, {v(19)}"),
          I(f"v_lshlrev_b32 {v(19)}, 4, {v(19)}"), I(f"v_lshl_add_u32 {v(20)}, {v(18)}, 10, {v(19)}")]
    for i in range(1, 4):
        c += [I(f"v_xor_b32 {v(20 + i)}, {64 * i}, {v(20)}"), I(f"v_add_u32 {v(20 + i)}, {3072 * i}, {v(20 + i)}")]
    if OPT["rot"]:
        c += [I(f"s_add_u32 {s(sT0)}, {s(sT0)}, {s(sC)}"), I(f"s_lshr_b32 {s(sT1)}, {s(sC)}, 2")]
    else:
        c += [I(f"s_mov_b32 {s(sT0)}, 0"), I(f"s_mov_b32 {s(sT1)}, 0")]
    c += [I(f"s_lshl_b32 {s(sXg)}, {s(sTB)}, 1"), I(f"s_add_u32 {s(sXg)}, {s(sXg)}, {s(sT1)}"), I(f"s_lshl_b32 {s(sXg)}, {s(sXg)}, 14"),
          I(f"s_lshl_b32 {s(sXl)}, {s(sW)}, 3"), I(f"s_add_u32 {s(sXl)}, {s(sXl)}, {s(sT1)}"), I(f"s_lshl_b32 {s(sXl)}, {s(sXl)}, 12"),
          I(f"s_and_b32 {s(sRotQ)}, {s(sT0)}, 3"), I(f"s_and_b32 {s(sP)}, s2, 1"), I("s_waitcnt lgkmcnt(0)")]
    if OPT["touch"]:
        nt = " nt" if OPT["nt_t"] else ""
        c += [I(f"s_cmp_eq_u32 {s(sC)}, 7"), I("s_cbranch_scc1 L_touch"), Label("L_notouch")]
        t = [Label("L_touch"), I(f"s_mov_b32 {s(sWsp + 2)}, 8388608"), I(f"s_mov_b32 {s(sWsp + 3)}, 0x20000"),
             I(f"v_lshlrev_b32 {v(24)}, 12, {v(l)}"), I(f"s_lshl_b32 {s(sT1)}, {s(sRB)}, 1"), I(f"s_and_b32 {s(sT2)}, {s(sW)}, 1"), I(f"s_add_u32 {s(sT1)}, {s(sT1)}, {s(sT2)}"),
             I(f"s_lshl_b32 {s(sT1)}, {s(sT1)}, 18"), I(f"s_lshl_b32 {s(sT2)}, {s(sP)}, 11"), I(f"s_add_u32 {s(sT1)}, {s(sT1)}, {s(sT2)}"),
             I(f"v_add_u32 {v(24)}, {s(sT1)}, {v(24)}"),
             I(f"s_and_b32 {s(sT1)}, {s(sRB)}, 3"), I(f"s_lshl_b32 {s(sT1)}, {s(sT1)}, 9"), I(f"s_lshr_b32 {s(sT2)}, {s(sW)}, 1"), I(f"s_lshl_b32 {s(sT2)}, {s(sT2)}, 7"),
             I(f"s_add_u32 {s(sT1)}, {s(sT1)}, {s(sT2)}")]
        for j in range(8):
            t += [VM(f"buffer_load_dword {v(42)}, {v(24)}, {srd(sWsp)}, {s(sT1)} offen{nt}"),
                  I(f"s_add_u32 {s(sT1)}, {s(sT1)}, 256"), I(f"s_and_b32 {s(sT1)}, {s(sT1)}, 2047")]
        slow.extend(t + [I("s_branch L_notouch")])
    late = [I(f"s_load_dword {s(sNonce)}, {s(sWs, 2)}, {WS_EPOCH}"),
            I("v_cmp_ne_u32 vcc, 0, v0"), I(f"v_bfrev_b32 {v(18)}, 1"), I(f"v_lshlrev_b32 {v(vL16)}, 4, {v(l)}"), I(f"v_cndmask_b32 {v(vFL)}, 0, {v(18)}, vcc")]
    for g in range(1, 4):
        late += [I(f"s_add_u32 {s(sT1)}, {s(sT0)}, {g}"), I(f"s_and_b32 {s(sRotQ + g)}, {s(sT1)}, 3")]
    for r, n in ((sWq, 1572864), (sWi, 1835008), (sWsp, 8388608), (sWo, 524288), (sWout, 917504), (sB, 4096), (sOut, 2097152), (sWs, 0x10000000)):
        late += [I(f"s_mov_b32 {s(r + 2)}, {n}"), I(f"s_mov_b32 {s(r + 3)}, 0x20000")]
    late += [I(f"s_lshl_b32 {s(sCG)}, {s(sC)}, 1"), I(f"s_or_b32 {s(sCG)}, {s(sCG)}, {s(sP)}"),
             I(f"s_lshl_b32 {s(sHP)}, {s(sP)}, 3"), I(f"s_add_u32 {s(sHP)}, {s(sHP)}, {s(sC)}")]
    return c, late, l

sXg, sXl, sXo = 61, 62, 65
def x_dma(g):
    it = []
    for hh in range(2):
        if hh == 0:
            it.append([I(f"s_lshl_b32 {s(sT1)}, {s(sRotQ + g)}, 8"), I(f"s_add_u32 {s(sXo)}, {s(sXg)}, {s(sT1)}"), I(f"s_add_u32 m0, {s(sXl)}, {g * 8192}")])
        else:
            it.append([I(f"s_xor_b32 {s(sXo)}, {s(sXo)}, 16384"), I(f"s_xor_b32 m0, m0, 4096")])
        it += [dma(20 + i, sX, s(sXo), 1024 * i) for i in range(4)]
    return it

def w_addr(l):
    c = []
    for base, rs in ((sOI, 3584), (sOQ, 3072), (sOO, 1024)):
        for i in range(1, 4): c.append(I(f"s_mov_b32 {s(base + i)}, {i * (8 * rs - 1024)}"))
    c += [I(f"s_lshl_b32 {s(sRingW)}, {s(sW)}, 12"), I(f"s_add_u32 {s(sRingW)}, {s(sRingW)}, {L_RING}")]
    kr, u, cc = 32, 33, 34
    c += [I(f"v_bfe_u32 {v(kr)}, {v(l)}, 2, 3"), I(f"s_lshl_b32 {s(sT1)}, {s(sW)}, 5"), I(f"v_add_u32 {v(kr)}, {s(sT1)}, {v(kr)}"),
          I(f"v_lshrrev_b32 {v(u)}, 5, {v(l)}"), I(f"v_and_b32 {v(cc)}, 3, {v(l)}"), I(f"v_lshlrev_b32 {v(cc)}, 4, {v(cc)}"),
          I(f"v_mul_u32_u24 {v(35)}, 3072, {v(kr)}"), I(f"v_add_u32 {v(35)}, {v(35)}, {v(cc)}"),
          I(f"s_lshl_b32 {s(sT1)}, {s(sHP)}, 6"), I(f"v_add_u32 {v(vStD)}, {s(sT1)}, {v(35)}"),
          I(f"v_lshl_add_u32 {v(vStB)}, {v(u)}, 10, {v(vStD)}"), I(f"v_add_u32 {v(vStB)}, 1024, {v(vStB)}"),
          I(f"v_mul_u32_u24 {v(35)}, 3584, {v(kr)}"), I(f"v_add_u32 {v(35)}, {v(35)}, {v(cc)}"),
          I(f"v_lshl_add_u32 {v(35)}, {v(u)}, 6, {v(35)}"), I(f"s_lshl_b32 {s(sT1)}, {s(sCG)}, 7"),
          I(f"v_add_u32 {v(vStC)}, {s(sT1)}, {v(35)}"), I(f"v_add_u32 {v(vStA)}, 1792, {v(vStC)}")]
    return c
def w_addr2():
    c = []
    for g in range(4):
        c += [I(f"s_mul_i32 {s(sRotI + g)}, {s(sRotQ + g)}, {128 * 3584}"), I(f"s_mul_i32 {s(sRotQ + g)}, {s(sRotQ + g)}, {128 * 3072}")]
    c += [I(f"v_cmp_lt_u32 vcc, 511, {v(vL16)}"), I(f"v_mov_b32 {v(32)}, {s(sRotQ + 1)}"), I(f"v_mov_b32 {v(33)}, {s(sRotQ + 3)}"),
          I(f"v_cndmask_b32 {v(32)}, {v(32)}, {v(33)}, vcc"), I(f"v_add_u32 {v(vStD + 1)}, {v(32)}, {v(vStD)}"),
          I(f"v_mov_b32 {v(32)}, {s(sRotQ)}"), I(f"v_mov_b32 {v(33)}, {s(sRotQ + 2)}"),
          I(f"v_cndmask_b32 {v(32)}, {v(32)}, {v(33)}, vcc"), I(f"v_add_u32 {v(vStD)}, {v(32)}, {v(vStD)}")]
    return c

def w_dma(kinds, st):
    k = kinds[st]; sg = st - kinds.index(k)
    r, so = (sWi, sOI) if k in "AC" else (sWq, sOQ)
    it = [I(f"s_add_u32 m0, {s(sRingW)}, {((st + 2) % 4) * 16384}")]
    if k == "D": va = vStD + sg
    else:
        va = vWd
        it.append(I(f"v_add_u32 {v(vWd)}, {s((sRotQ if k == 'B' else sRotI) + sg)}, {v(dict(A=vStA, B=vStB, C=vStC)[k])}"))
    for i in range(4): it.append(dma(va, r, s(so + i) if i else "0", 1024 * i))
    return it

def sp_dma(w):
    if OPT["nosp"]: return []
    it = [I(f"s_add_u32 {s(sSpA)}, {s(sSpBase)}, {s(sSpRot)}"), I(f"s_add_u32 {s(sSpB)}, {s(sSpA)}, 63488"),
          I(f"s_add_u32 m0, {s(sStg)}, {(w % 3) * 4096}"), I(f"s_add_u32 {s(sSpRot)}, {s(sSpRot)}, 128"), I(f"s_and_b32 {s(sSpRot)}, {s(sSpRot)}, 2047")]
    it += [dma(vSpA, sWsp, s(sSpA), 0), dma(vSpB, sWsp, s(sSpA), 1024), dma(vSpA, sWsp, s(sSpB), 2048), dma(vSpB, sWsp, s(sSpB), 3072)]
    return it
def sp_read(w):
    if OPT["nosp"]: return []
    return [dsr(a(16 * w + 4 * j, 4), vSpR + j, (w % 3) * 4096) for j in range(4)]

KFULL = list("AAAABBBBDDCCCC"); KLIGHT = list("BBBBDD")

def spread(main, filler):
    out = []; n = len(main); k = 0
    for i, e in enumerate(main):
        while k < len(filler) and k * n <= i * len(filler): out.append(filler[k]); k += 1
        out.append(e)
    return out + filler[k:]

def front():
    c, late, l = prologue()
    c += stamp_n("dma0")
    xg = [x_dma(g) for g in range(4)]
    c += xg[0]
    c += late + w_addr(l)
    t, h = 18, 19
    XR = 24
    c += [I(f"v_and_b32 {v(t)}, 31, {v(l)}"), I(f"v_lshrrev_b32 {v(h)}, 5, {v(l)}"), I(f"s_lshl_b32 {s(sT3)}, {s(sW)}, 15")]
    c += [I(f"v_and_b32 {v(36)}, 15, {v(l)}"), I(f"v_xor_b32 {v(36)}, {v(36)}, {v(h)}"), I(f"v_lshlrev_b32 {v(36)}, 4, {v(36)}"),
          I(f"v_lshl_add_u32 {v(36)}, {v(t)}, 8, {v(36)}"), I(f"v_add_u32 {v(XR)}, {s(sT3)}, {v(36)}")]
    for j in range(1, 8): c.append(I(f"v_xor_b32 {v(XR + j)}, {32 * j}, {v(XR)}"))
    c += [I(f"v_bfe_u32 {v(36)}, {v(l)}, 2, 2"), I(f"v_lshlrev_b32 {v(36)}, 6, {v(36)}"), I(f"v_lshl_add_u32 {v(36)}, {v(h)}, 10, {v(36)}"),
          I(f"v_bfe_u32 {v(37)}, {v(l)}, 4, 1"), I(f"v_lshl_add_u32 {v(36)}, {v(37)}, 5, {v(36)}"),
          I(f"v_and_b32 {v(37)}, 3, {v(l)}"), I(f"v_lshl_add_u32 {v(36)}, {v(37)}, 3, {v(36)}"), I(f"v_add_u32 {v(vTR)}, {L_RING}, {v(36)}")]
    c += [I(f"s_mul_i32 {s(sStg)}, {s(sW)}, 12288"), I(f"s_add_u32 {s(sStg)}, {s(sStg)}, {L_STG}"),
          I(f"s_lshl_b32 {s(sSpBase)}, {s(sTB)}, 17"), I(f"s_lshl_b32 {s(sT1)}, {s(sP)}, 11"), I(f"s_add_u32 {s(sSpBase)}, {s(sSpBase)}, {s(sT1)}")]
    if OPT["rot"]:
        c += [I(f"s_and_b32 {s(sT1)}, {s(sRB)}, 3"), I(f"s_lshl_b32 {s(sSpRot)}, {s(sT1)}, 9")]
    else: c += [I(f"s_mov_b32 {s(sSpRot)}, 0")]
    c += [I(f"v_lshrrev_b32 {v(36)}, 4, {v(l)}"), I(f"v_and_b32 {v(37)}, 7, {v(l)}"), I(f"v_lshrrev_b32 {v(38)}, 3, {v(l)}"),
          I(f"v_xor_b32 {v(36)}, {v(36)}, {v(37)}"), I(f"v_lshlrev_b32 {v(36)}, 4, {v(36)}"), I(f"v_lshl_add_u32 {v(vSpA)}, {v(38)}, 12, {v(36)}"),
          I(f"v_xor_b32 {v(vSpB)}, 64, {v(vSpA)}"), I(f"v_add_u32 {v(vSpB)}, 31744, {v(vSpB)}"),
          I(f"v_bfe_u32 {v(36)}, {v(l)}, 1, 3"), I(f"v_xor_b32 {v(36)}, {v(36)}, {v(h)}"), I(f"v_lshlrev_b32 {v(36)}, 4, {v(36)}"),
          I(f"v_lshl_add_u32 {v(36)}, {v(t)}, 7, {v(36)}"), I(f"v_add_u32 {v(vSpR)}, {s(sStg)}, {v(36)}")]
    for j in range(1, 4): c.append(I(f"v_xor_b32 {v(vSpR + j)}, {32 * j}, {v(vSpR)}"))
    c += [I(f"s_mov_b32 {s(sC10)}, 0x3f80"), I(f"s_mov_b32 {s(sC01)}, 0x3f800000"), I(f"s_mov_b32 {s(sOnes)}, 0x3f803f80"),
          I(f"s_lshl_b32 {s(sT1)}, {s(sRB)}, 4"), I(f"s_add_u32 {s(sT1)}, {s(sT1)}, {s(sCG)}"), I(f"s_lshl_b32 {s(sT1)}, {s(sT1)}, 8"),
          I(f"s_add_u32 {s(sMyFlag)}, {s(sT1)}, {WS_FLAGS}"),
          I("s_waitcnt lgkmcnt(0)"), I(f"s_add_u32 {s(sNonce)}, {s(sNonce)}, 1")]
    for i in range(4): c.append(I(f"v_mov_b32 {v(DA + i)}, 0"))
    c += xg[1]
    rd = [[dsr(v(X + 32 * g + 4 * j, 4), XR + j, g * 8192) for j in range(8)] for g in range(4)]
    def dots(g):
        o = []
        for j in range(8):
            o.append(Wait(rd[g][j].tok))
            for q in range(4):
                reg = X + 32 * g + 4 * j + q
                o += [I(f"v_dot2c_f32_bf16 {v(DA + (q & 1))}, {s(sOnes)}, {v(reg)}"),
                      I(f"v_dot2c_f32_bf16 {v(DA + 2 + (q & 1))}, {v(reg)}, {v(reg)}")]
        return o
    for g in range(2):
        c += [Wait(*toks(xg[g]))] + rd[g] + stamp_n(f"x{g}")
        c += spread(dots(g), xg[g + 2])
    def rest(kinds):
        o = []
        wd = {st: w_dma(kinds, st) for st in range(4)}
        for g in (2, 3):
            rd[g] = [dsr(v(X + 32 * g + 4 * j, 4), XR + j, g * 8192) for j in range(8)]
            o += [Wait(*toks(xg[g]))] + rd[g] + stamp_n(f"x{g}")
            o += spread(dots(g), w_addr2() + wd[0] if g == 2 else wd[1])
        o += [BAR()] + stamp_n("xbar") + stamp_at(2)
        hd = []
        if OPT["sph"] and kinds[0] == "A":
            for w in range(3): SPH[w] = sp_dma(w); hd += SPH[w]
        return o + ln_finish(wd[2] + wd[3] + hd), wd
    return c, rest
DA = 36
SPH = {}

def ln_finish(extra):
    c = []
    c += [I(f"v_add_f32 {v(DA + 0)}, {v(DA + 0)}, {v(DA + 1)}"), I(f"v_add_f32 {v(DA + 2)}, {v(DA + 2)}, {v(DA + 3)}")]
    c += cross_half("v_add_f32", DA, DA + 1) + cross_half("v_add_f32", DA + 2, DA + 3)
    c += [I(f"v_mul_f32 {v(DA + 0)}, {hx(fbits(1 / 512))}, {v(DA + 0)}"), I(f"v_mul_f32 {v(DA + 2)}, {hx(fbits(1 / 512))}, {v(DA + 2)}"),
          I(f"v_fma_f32 {v(DA + 2)}, -{v(DA + 0)}, {v(DA + 0)}, {v(DA + 2)}"), I(f"v_max_f32 {v(DA + 2)}, 0, {v(DA + 2)}")]
    c += rne_bf16(DA, DA) + rne_bf16(DA + 2, DA + 2)
    c += [I(f"v_add_f32 {v(DA + 2)}, {hx(fbits(1e-5))}, {v(DA + 2)}")] + rne_bf16(DA + 2, DA + 2)
    c += [I(f"v_sqrt_f32 {v(DA + 2)}, {v(DA + 2)}"), I(f"v_xor_b32 {v(DA + 0)}, 0x80000000, {v(DA + 0)}")] + rne_bf16(vD, DA + 2)
    c += [I(f"v_rcp_f32 {v(vR)}, {v(vD)}")]
    k0 = -2.0 * math.log2(math.e) * math.sqrt(2.0 / math.pi)
    c += [I(f"v_mul_f32 {v(vGB)}, {hx(fbits(k0))}, {v(vR)}"), I(f"v_mul_f32 {v(DA + 1)}, {v(vR)}, {v(vR)}"),
          I(f"v_mul_f32 {v(DA + 1)}, {hx(fbits(0.044715))}, {v(DA + 1)}"), I(f"v_mul_f32 {v(vGA)}, {v(DA + 1)}, {v(vGB)}")]
    c += stamp_n("lnpre")
    pre = c; c = []
    for b in range(0, 128, 4):
        for q in range(4):
            c += [I(f"v_dot2_f32_bf16 {v(16 + 2 * q)}, {v(X + b + q)}, {s(sC10)}, {v(DA + 0)}"),
                  I(f"v_dot2_f32_bf16 {v(17 + 2 * q)}, {v(X + b + q)}, {s(sC01)}, {v(DA + 0)}")]
        for q in range(4):
            c.append(I(f"v_cvt_pk_bf16_f32 {v(X + b + q)}, {v(16 + 2 * q)}, {v(17 + 2 * q)}"))
    return pre + spread(c, extra)

def gelu(base, n, stats, T=T):
    it = []
    for g in range(0, n, 4):
        R = [base + g + q for q in range(4)]; t = [T + q for q in range(4)]
        it += [I(f"v_mul_f32 {v(t[q])}, {v(R[q])}, {v(R[q])}") for q in range(4)]
        it += [I(f"v_fma_f32 {v(t[q])}, {v(t[q])}, {v(vGA)}, {v(vGB)}") for q in range(4)]
        it += [I(f"v_mul_f32 {v(t[q])}, {v(t[q])}, {v(R[q])}") for q in range(4)]
        it += [I(f"v_exp_f32 {v(t[q])}, {v(t[q])}") for q in range(4)]
        it += [I(f"v_fma_f32 {v(t[q])}, {v(t[q])}, {v(vD)}, {v(vD)}") for q in range(4)]
        it += [I(f"v_rcp_f32 {v(t[q])}, {v(t[q])}") for q in range(4)]
        it += [I(f"v_mul_f32 {v(R[q])}, {v(R[q])}, {v(t[q])}") for q in range(4)]
        if stats:
            for q in range(4):
                if g == 0 and q == 0:
                    it += [I(f"v_mov_b32 {v(vSum)}, {v(R[q])}"), I(f"v_mul_f32 {v(vSq)}, {v(R[q])}, {v(R[q])}")]
                else:
                    it += [I(f"v_add_f32 {v(vSum)}, {v(vSum)}, {v(R[q])}"), I(f"v_fmac_f32 {v(vSq)}, {v(R[q])}, {v(R[q])}")]
    return it

def stats_publish(zero=False):
    g = T + 4
    it = []
    if not zero:
        it += cross_half("v_add_f32", vSum, T) + cross_half("v_add_f32", vSq, T + 1)
        it += [I(f"v_mov_b32 {v(g)}, {v(vSum)}"), I(f"v_mov_b32 {v(g + 2)}, {v(vSq)}")]
    else:
        it += [I(f"v_mov_b32 {v(g)}, 0"), I(f"v_mov_b32 {v(g + 2)}, 0")]
    it += [I(f"v_mov_b32 {v(g + 1)}, {s(sNonce)}"), I(f"v_mov_b32 {v(g + 3)}, {s(sNonce)}"),
           I(f"v_lshlrev_b32 {v(g + 4)}, 22, {v(vL16)}"), I(f"v_and_b32 {v(g + 4)}, 0x80000000, {v(g + 4)}"), I(f"v_or_b32 {v(g + 4)}, {v(g + 4)}, {v(vL16)}"),
           [I(f"s_lshl_b32 {s(sT1)}, {s(sTB)}, 4"), I(f"s_add_u32 {s(sT1)}, {s(sT1)}, {s(sCG)}"), I(f"s_lshl_b32 {s(sT1)}, {s(sT1)}, 9"),
            I(f"s_add_u32 {s(sT1)}, {s(sT1)}, {WS_STATS}"), gstore(v(g, 4), g + 4, sWs, s(sT1))]]
    return it

def rarr_write():
    return [I(f"v_and_b32 {v(T)}, 0x1f0, {v(vL16)}"), I(f"v_lshrrev_b32 {v(T)}, 2, {v(T)}"),
            [I(f"s_lshl_b32 {s(sT1)}, {s(sW)}, 7"), I(f"v_add_u32 {v(T)}, {s(sT1)}, {v(T)}")], dsw(T, v(vR), op="ds_write_b32")]

def kv_epilogue():
    it = []; st = []; kw = []
    RA = 24; va = 20; vg = 21
    it += [I(f"v_lshrrev_b32 {v(va)}, 9, {v(vL16)}"), I(f"v_lshlrev_b32 {v(va)}, 4, {v(va)}"),
           [I(f"s_lshl_b32 {s(sT1)}, {s(sW)}, 7"), I(f"v_add_u32 {v(va)}, {s(sT1)}, {v(va)}")]]
    rr = [dsr(v(RA + 4 * q, 4), va, 32 * q) for q in range(4)]
    it += rr
    it += [[I(f"s_lshl_b32 {s(sT1)}, {s(sW)}, 12"), I(f"s_add_u32 {s(sT1)}, {s(sT1)}, 32768"), I(f"v_add_u32 {v(vg)}, {s(sT1)}, {v(vL16)}")]]
    it += [I(f"v_mul_f32 {v(accB + e)}, {v(accB + e)}, {v(vR)}") for e in range(16)]
    it += [I(f"v_cvt_pk_bf16_f32 {v(accB + j)}, {v(accB + 2 * j)}, {v(accB + 2 * j + 1)}") for j in range(8)]
    it += [[I(f"s_lshl_b32 {s(sT2)}, {s(sCG)}, 6"), I(f"s_add_u32 {s(sT2)}, {s(sT2)}, {s(sTB)}"), I(f"s_lshl_b32 {s(sT2)}, {s(sT2)}, 12"),
            I(f"s_add_u32 {s(sKVo)}, {s(sT2)}, {WS_KV}")]]
    for i in range(2):
        g = gstore(v(accB + 4 * i, 4), vL16, sWs, s(sKVo), 1024 * i); st.append(g)
        kw.append([g]); kw.append([dsw(vg, v(accB + 4 * i, 4), 1024 * i)])
    it += [Wait(rr[3].tok)]
    V = accB + 16
    it += spread([I(f"v_mul_f32 {v(V + e)}, {v(V + e)}, {v(RA + e)}") for e in range(16)] +
                 [I(f"v_cvt_pk_bf16_f32 {v(V + j)}, {v(V + 2 * j)}, {v(V + 2 * j + 1)}") for j in range(8)], kw)
    for i in range(2):
        g = gstore(v(V + 4 * i, 4), vL16, sWs, s(sKVo), 2048 + 1024 * i); st.append(g)
        it += [g, dsw(vg, v(V + 4 * i, 4), 2048 + 1024 * i)]
    return it, st

def q_epilogue(_):
    t = 40
    it = [I(f"v_mul_f32 {v(t)}, {hx(fbits(0.25 * math.log2(math.e)))}, {v(vR)}")]
    it += [I(f"v_mul_f32 {v(accD + e)}, {v(accD + e)}, {v(t)}") for e in range(16)]
    it += [I(f"v_cvt_pk_bf16_f32 {v(accD + j)}, {v(accD + 2 * j)}, {v(accD + 2 * j + 1)}") for j in range(8)]
    return it

def kv_fetch():
    va, vf = vWd, vR
    pre = [[I(f"s_max_u32 {s(sT1)}, {s(sRB)}, 1"), I(f"s_sub_u32 {s(sT1)}, {s(sT1)}, 1"), I(f"s_max_u32 {s(sT2)}, {s(sRB)}, 2"), I(f"s_sub_u32 {s(sT2)}, {s(sT2)}, 2"),
            I(f"s_sub_u32 {s(sT1)}, {s(sT1)}, {s(sT2)}"), I(f"s_lshl_b32 {s(sT1)}, {s(sT1)}, 8"),
            I(f"s_lshl_b32 {s(sT2)}, {s(sT2)}, 4"), I(f"s_add_u32 {s(sT2)}, {s(sT2)}, {s(sCG)}"), I(f"s_lshl_b32 {s(sT2)}, {s(sT2)}, 8"),
            I(f"s_add_u32 {s(sT2)}, {s(sT2)}, {WS_FLAGS + F_KV * 65536}"),
            I(f"v_and_b32 {v(va)}, 16, {v(vL16)}"), I(f"v_mul_u32_u24 {v(va)}, {s(sT1)}, {v(va)}"), I(f"v_add_u32 {v(va)}, {s(sT2)}, {v(va)}")]]
    ld = poll_issue(vf, va)
    chk = poll_check(ld, vf, va)
    dm = []
    for b in range(2):
        grp = [[I(f"s_lshl_b32 {s(sT1)}, {s(sW)}, 1"), I(f"s_add_u32 {s(sT1)}, {s(sT1)}, {b}"), I(f"s_lshl_b32 m0, {s(sT1)}, 12"),
                I(f"s_lshl_b32 {s(sT2)}, {s(sRB)}, 2"), I(f"s_add_u32 {s(sT1)}, {s(sT1)}, {s(sT2)}"), I(f"s_max_u32 {s(sT1)}, {s(sT1)}, 8"),
                I(f"s_sub_u32 {s(sT1)}, {s(sT1)}, 8"), I(f"s_lshl_b32 {s(sT2)}, {s(sCG)}, 6"), I(f"s_add_u32 {s(sT1)}, {s(sT1)}, {s(sT2)}"),
                I(f"s_lshl_b32 {s(sT1)}, {s(sT1)}, 12"), I(f"s_add_u32 {s(sKVs)}, {s(sT1)}, {WS_KV}")]]
        grp += [dma(vL16, sWs, s(sKVs), 1024 * i, sc1=True) for i in range(4)]
        dm += grp
    return pre + [ld], chk, dm

def stats_recv():
    va = vSum
    pre = [I(f"v_and_b32 {v(va)}, 0x1f0, {v(vL16)}"), I(f"v_and_b32 {v(vSq)}, 0x200, {v(vL16)}"), I(f"v_lshl_add_u32 {v(va)}, {v(vSq)}, 3, {v(va)}"),
           [I(f"s_lshl_b32 {s(sT1)}, {s(sTB)}, 13"), I(f"s_add_u32 {s(sT1)}, {s(sT1)}, {WS_STATS}"), I(f"v_add_u32 {v(va)}, {s(sT1)}, {v(va)}")]]
    def loads(): return [gload(v(T + 4 * k, 4), va, sWs, "0", 512 * k, sc1=True) for k in range(8)]
    def chain():
        o = [I(f"v_xor_b32 {v(vSq)}, {s(sNonce)}, {v(T + 1)}")]
        for k in range(1, 16): o.append(I(f"v_bitop3_b32 {v(vSq)}, {v(vSq)}, {v(T + 2 * k + 1)}, {s(sNonce)} bitop3:0xf6"))
        return o
    ld = loads()
    ls, lb, ll = newlab("slow"), newlab("back"), newlab("loop")
    slow.extend([Label(ls), I(f"s_mov_b32 {s(sSpin)}, {OPT['spin']}"), Label(ll), I("s_sleep 1")] + loads() + [I("s_waitcnt vmcnt(0)")] + chain() + [
        I(f"v_cmp_ne_u32 {s(sMask, 2)}, 0, {v(vSq)}"), I("s_nop 1"), I(f"s_cmp_eq_u64 {s(sMask, 2)}, 0"), I(f"s_cbranch_scc1 {lb}"),
        I(f"s_sub_u32 {s(sSpin)}, {s(sSpin)}, 1"), I(f"s_cmp_lg_u32 {s(sSpin)}, 0"), I(f"s_cbranch_scc1 {ll}"), I(f"s_branch {lb}")])
    post = [Wait(ld[7].tok)] + stamp_n('sld') + chain() + [[I(f"v_cmp_ne_u32 {s(sMask, 2)}, 0, {v(vSq)}"), I(f"s_cmp_lg_u64 {s(sMask, 2)}, 0"), I(f"s_cbranch_scc1 {ls}"), Label(lb)]]
    post += stamp_n('schk')
    for step in (4, 8, 16):
        for k in range(0, 32, 2 * step):
            post += [I(f"v_add_f32 {v(T + k)}, {v(T + k)}, {v(T + k + step)}"), I(f"v_add_f32 {v(T + k + 2)}, {v(T + k + 2)}, {v(T + k + step + 2)}")]
    S, Q = T, T + 2
    post += cross_half("v_add_f32", S, T + 1) + cross_half("v_add_f32", Q, T + 3)
    post += [I(f"v_mul_f32 {v(S)}, {hx(fbits(1 / 896))}, {v(S)}"), I(f"v_mul_f32 {v(Q)}, {hx(fbits(1 / 896))}, {v(Q)}"),
             I(f"v_fma_f32 {v(Q)}, -{v(S)}, {v(S)}, {v(Q)}"), I(f"v_max_f32 {v(Q)}, 0, {v(Q)}")]
    post += rne_bf16(S, S) + rne_bf16(Q, Q) + [I(f"v_add_f32 {v(Q)}, {hx(fbits(1e-5))}, {v(Q)}")] + rne_bf16(Q, Q)
    post += [I(f"v_sqrt_f32 {v(Q)}, {v(Q)}")] + rne_bf16(Q, Q) + [I(f"v_rcp_f32 {v(vSum)}, {v(Q)}"), I(f"v_mul_f32 {v(vSq)}, {v(S)}, {v(vSum)}"),
                                                                   I(f"v_xor_b32 {v(vSq)}, 0x80000000, {v(vSq)}")]
    return pre + ld, post

def z2_addr():
    t0, t1, t2, t3 = ZA + 2, ZA + 3, ZA + 6, ZA + 7
    it = [I(f"v_lshrrev_b32 {v(t0)}, 3, {v(vL16)}"), I(f"v_and_b32 {v(t0)}, 64, {v(t0)}"), I(f"v_add_u32 {v(t0)}, {v(t0)}, {v(vL16)}"),
          I(f"v_and_b32 {v(t1)}, 0x200, {v(vL16)}"), I(f"v_or_b32 {v(t1)}, {s(sRingW)}, {v(t1)}"),
          I(f"v_and_b32 {v(ZA)}, 0x1f0, {v(t0)}"), I(f"v_or_b32 {v(ZA)}, {v(ZA)}, {v(t1)}"),
          I(f"v_add_u32 {v(t0)}, 128, {v(t0)}"), I(f"v_and_b32 {v(ZA + 1)}, 0x1f0, {v(t0)}"), I(f"v_or_b32 {v(ZA + 1)}, {v(ZA + 1)}, {v(t1)}")]
    it += [I(f"v_bfe_u32 {v(t0)}, {v(vL16)}, 8, 1"), I(f"v_bfe_u32 {v(t1)}, {v(vL16)}, 5, 1"),
           I(f"v_lshlrev_b32 {v(t2)}, 10, {v(t0)}"), I(f"v_lshl_add_u32 {v(t2)}, {v(t1)}, 9, {v(t2)}"),
           I(f"v_bfe_u32 {v(t3)}, {v(vL16)}, 4, 1"), I(f"v_lshl_add_u32 {v(t2)}, {v(t3)}, 3, {v(t2)}"),
           I(f"v_add_u32 {v(t2)}, {s(sRingW)}, {v(t2)}"),
           I(f"v_lshlrev_b32 {v(t3)}, 3, {v(t0)}"), I(f"v_lshl_add_u32 {v(t3)}, {v(t1)}, 2, {v(t3)}"),
           I(f"v_lshrrev_b32 {v(t1)}, 9, {v(vL16)}"), I(f"v_lshl_add_u32 {v(t3)}, {v(t1)}, 3, {v(t3)}"),
           I(f"v_bfe_u32 {v(t1)}, {v(vL16)}, 6, 2"), I(f"v_add_u32 {v(t3)}, {v(t3)}, {v(t1)}")]
    for u in range(2):
        for e in range(2):
            d = ZA + 2 + 2 * u + e
            it += [I(f"v_add_u32 {v(d)}, {16 * u + 4 * e}, {v(t3)}"), I(f"v_and_b32 {v(d)}, 31, {v(d)}"), I(f"v_lshl_add_u32 {v(d)}, {v(d)}, 4, {v(t2)}")]
    it += [[I(f"s_lshl_b32 {s(sT2)}, {s(sCG)}, 7"), I(f"s_add_u32 {s(sT2)}, {s(sT2)}, {s(sTB)}"), I(f"s_lshl_b32 {s(sT2)}, {s(sT2)}, 11"),
            I(f"s_add_u32 {s(sZo)}, {s(sT2)}, {WS_Z}")], I(f"v_add_u32 {v(ZA + 6)}, 131072, {v(vL16)}")]
    return it
ZA = 120
vTmpF = 13 if False else 2

def z2_publish():
    it = []; st = []; wr = {}
    norm = {}
    for ft in range(2):
        b = accA + 16 * ft
        o = [I(f"v_fma_f32 {v(b + e)}, {v(b + e)}, {v(vSum)}, {v(vSq)}") for e in range(16)]
        o += [I(f"v_cvt_pk_bf16_f32 {v(b + j)}, {v(b + 2 * j)}, {v(b + 2 * j + 1)}") for j in range(8)]
        o += [I(f"v_permlane32_swap_b32 {v(b + x)}, {v(b + x + 2)}") for x in (0, 1, 4, 5)]
        norm[ft] = o
        wr[ft] = [dsw(ZA + i, v(b + 4 * i, 4), ft * 2048 + i * 1024) for i in range(2)]
    def trd(ft):
        return [dstr(v(T + 8 * ft + 4 * u + 2 * e, 2), ZA + 2 + 2 * u + e, ft * 2048) for u in range(2) for e in range(2)]
    def sto(ft):
        o = [gstore(v(T + 8 * ft + 4 * u, 4), ZA + 6 if ft else vL16, sWs, s(sZo), u * 1024) for u in range(2)]
        st.extend(o); return o
    r0, r1 = trd(0), trd(1); s0_, s1_ = sto(0), sto(1)
    n1 = norm[1]
    it += norm[0] + [wr[0][0]] + n1[:6] + [wr[0][1]] + n1[6:14] + [Wait(*toks(wr[0]))] + r0 + n1[14:22] + [Wait(*toks(r0)), s0_[0]] + n1[22:]
    it += [wr[1][0], s0_[1], wr[1][1]]
    tail = [[Wait(*toks(wr[1]))] + r1, [Wait(*toks(r1)), s1_[0]], [s1_[1]]]
    return it, tail, st

def touch_out():
    if not OPT["touch2"]: return []
    c = [I(f"v_lshlrev_b32 {v(T)}, 3, {v(vL16)}"), I(f"s_and_b32 {s(sT1)}, {s(sRB)}, 3"), I(f"s_lshl_b32 {s(sT1)}, {s(sT1)}, 2"), I(f"s_add_u32 {s(sT1)}, {s(sT1)}, {s(sW)}"),
         I(f"s_mul_i32 {s(sT2)}, {s(sT1)}, 57344"), I(f"s_lshl_b32 {s(sT1)}, {s(sT1)}, 15")]
    for j in range(7):
        c += [VM(f"buffer_load_dword {v(T + 1)}, {v(T)}, {srd(sWout)}, {s(sT2)} offen"), I(f"s_add_u32 {s(sT2)}, {s(sT2)}, 8192")]
    if OPT["touch2"] > 1:
        for j in range(4):
            c += [VM(f"buffer_load_dword {v(T + 1)}, {v(T)}, {srd(sWo)}, {s(sT1)} offen"), I(f"s_add_u32 {s(sT1)}, {s(sT1)}, 8192")]
    return c

def p1_main(kinds, wd, full):
    nst = len(kinds); nstep = 8 * nst
    rd = {}
    def reads(n):
        st, ks = divmod(n, 8); f = AF + 8 * (n % 4)
        rd[n] = [dstr(a(f + 4 * u + 2 * e, 2), vTR, ((st + 2) % 4) * 16384 + ks * 2048 + u * 512 + e * 256) for u in range(2) for e in range(2)]
        return rd[n]
    pre_bar = {i: [] for i in range(nst + 1)}; post_bar = {i: [] for i in range(nst + 1)}
    def mm(n):
        st, ks = divmod(n, 8); k = kinds[st]; f = AF + 8 * (n % 4)
        st0 = kinds.index(k); ksg = (st - st0) * 8 + ks; first = ksg == 0
        W0, W1 = a(f, 4), a(f + 4, 4); x0 = v(X + 4 * ksg, 4)
        if k == "B": return mfma(accB, W0, x0, "0" if first else v(accB, 16)), mfma(accB + 16, x0, W1, "0" if first else v(accB + 16, 16))
        if k == "D": return mfma(accD, W0, x0, "0" if first else v(accD, 16)), mfma(accD, W1, v(X + 4 * (ksg + 16), 4), v(accD, 16))
        d = accA if k == "A" else accB
        return mfma(d, W0, x0, "0" if first else v(d, 16)), mfma(d + 16, W1, x0, "0" if first else v(d + 16, 16))
    spd = {}; spr = {}
    sp_first = OPT["sp0"]
    rd_st = dict(enumerate({0: [8, 9, 10, 11, 12, 13], 1: [9, 10, 11, 12, 13], 2: [7, 8, 9, 10, 11, 12, 13], 3: [11, 12, 13], 4: [6, 7, 8, 9, 10, 11, 12, 13],
                            5: [5, 6, 7, 8, 9, 10, 11, 12, 13], 6: [4, 5, 6, 7, 8, 9, 10, 11, 12, 13], 7: [1, 5, 6, 7, 8, 9, 10, 11, 12, 13],
                            8: [1, 2, 3, 4, 5, 6, 7, 8, 9, 10, 11, 12, 13], 9: [3, 6, 7, 8, 9, 10, 11, 11, 12, 12, 13, 13], 10: [7, 8, 9, 10, 11, 11, 12, 12, 13, 13]}[OPT["spm"]]))
    if full: OPT["sp1"] = len(rd_st)
    kvi, kvst = kv_epilogue()
    kpre, kchk, kdm = kv_fetch()
    bars = {1: [1, 2, 3, 4, 5, 6, 7, 8, 10, 12], 2: [1, 2, 3, 4, 6, 8, 10, 12], 3: [2, 4, 6, 8, 10, 12], 4: [1, 2, 4, 6, 8, 10, 12]}[OPT["skipbar"]] if full and OPT["skipbar"] else list(range(1, nst))
    fill = {i: [] for i in range(nst + 1)}
    issued = 3
    for st in range(1, nst):
        lastbar = max([0] + [b for b in bars if b <= st])
        while issued + 1 < nst and issued + 1 <= lastbar + 3:
            issued += 1; wd[issued] = w_dma(kinds, issued); fill[st] += wd[issued]
        if full:
            if OPT["sph"]: spd.update({w: SPH[w] for w in SPH if w not in spd})
            elif st in (sp_first, sp_first + 1, sp_first + 2):
                w = st - sp_first; spd[w] = sp_dma(w); fill[st] += spd[w]
            for w in [w for w in rd_st if rd_st[w] == st]:
                spr[w] = sp_read(w)
                if w and rd_st[w - 1] == st: fill[st] += [Wait(*toks(spd[w]))] + spr[w]
                else: fill[st] = [Wait(*toks(spd[w]))] + spr[w] + fill[st]
                if w + 3 < 16:
                    spd[w + 3] = sp_dma(w + 3); fill[st] += [Wait(*toks(spr[w]))] + spd[w + 3]
    assert issued == nst - 1
    if full:
        pre_bar[12] += toks(kvst); post_bar[12] += [flag_store(F_KV, vTmpF)]
        fill[13] = fill[13] + kpre
    main = [Wait(*[t for x in range(bars[0]) for t in toks(wd[x])]), BAR()] + stamp_n("b0") + reads(0) + reads(1) + reads(2) + reads(3)
    for n in range(nstep):
        m0, m1 = mm(n)
        main += [Wait(*(toks(rd[n]) + (toks(rd[n + 1]) if n % 2 == 0 else []))), m0]
        nx = n + 4
        if nx < nstep and nx % 8 == 0 and nx // 8 in bars:
            st = nx // 8
            nb_ = min([b for b in bars if b > st] + [nst])
            need = [t for x in range(st, nb_) for t in toks(wd[x])]
            main += [m1, [Wait(*(toks(rd[n + 3]) + need + pre_bar[st])), BAR()] + stamp_n(f"b{st}") + post_bar[st]] + reads(nx)
        elif nx < nstep:
            r = reads(nx); main += r[:2] + [m1] + (stamp_n(f"b{nx // 8}") if nx % 8 == 0 else []) + r[2:]
        else:
            main += [m1]
    for st in range(1, nst):
        lo = 2 * (8 * st - 4) + 2; hi = min(2 * (8 * (st + 1) - 4) + 1, 2 * nstep)
        main = weave(main, fill[st], lo, hi)
    if full:
        main = weave(main, rarr_write(), 4, 12)
        g2 = gelu(accA, 32, True); per = len(g2) // 8; cut = per * OPT["gs"]
        main = weave(main, g2[:cut], 64 + 3, 131)
        main = weave(main, kvi, 131, OPT["k1"])
        main = weave(main, g2[cut:] + stats_publish(), OPT["k1"], OPT["g1"])
        spre, spost = stats_recv()
        zi, ztail, zst = z2_publish()
        main = weave(main, q_epilogue(20) + z2_addr(), OPT["g1"], 216)
        main = weave(main, spre, 216, 224)
        ng = OPT["gp"]
        g = gelu(accB, 4 * ng, False, 128)
        r = att_masks()
        tail = stamp_at(4) + g + [kchk] + stamp_n("kchk") + spread(r[:40], kdm) + spost + zi
        tail += r[40:56] + ztail[0] + r[56:] + ztail[1] + ztail[2]
    else:
        main = weave(main, rarr_write() + stats_publish(zero=True), 4, 24)
        main = weave(main, kvi, 64 + 4, 96)
        zst = []
        tail = q_epilogue(20) + [Wait(*toks(kvst)), BAR(), flag_store(F_KV, 127)] + touch_out() + kpre + [kchk] + kdm + att_masks() + stamp_at(4)
    return spd, main + tail, kdm, zst

KF, S0, S1, Mc, Ma, P0, P1, Vf = 128, 144, 160, 176, 192, 208, 216, 224
OO = [240, 16]
Cz = 32
vKa, vTmp, vM, vPz, vPzA = 120, 121, 122, 123, 124
RO = [48, 52]
Q = accD
sBad = 86; sRet = 84

def att_masks():
    t0, t1, t2 = 132, 133, 134
    c = [I(f"v_bfe_u32 {v(t0)}, {v(vL16)}, 4, 5"), I(f"v_lshrrev_b32 {v(t1)}, 9, {v(vL16)}"), I(f"v_lshlrev_b32 {v(t1)}, 2, {v(t1)}"),
         I(f"v_sub_u32 {v(t0)}, {v(t0)}, {v(t1)}"), I(f"v_mov_b32 {v(t2)}, 0xff800000")]
    for r in range(16):
        k0 = (r & 3) + 8 * (r >> 2)
        c += [[I(f"v_cmp_gt_i32 vcc, {k0}, {v(t0)}"), I(f"v_mov_b32 {v(Vf + r)}, {s(sOnes)}"), I("s_nop 0"),
               I(f"v_cndmask_b32 {v(Mc + r)}, 0, {v(t2)}, vcc")] if False else
              [I(f"v_cmp_gt_i32 vcc, {k0}, {v(t0)}"), I(f"v_mov_b32 {v(Vf + r)}, {s(sOnes)}")] +
              ([I(f"v_xor_b32 {v(Ma + r - 1)}, {v(Mc + r - 1)}, {v(t2)}")] if r else []) + [I(f"v_cndmask_b32 {v(Mc + r)}, 0, {v(t2)}, vcc")]]
    c += [I(f"v_xor_b32 {v(Ma + 15)}, {v(Mc + 15)}, {v(t2)}")]
    c += [I(f"s_mov_b32 {s(sVm)}, 0xffff"), I(f"s_mov_b32 {s(sVm + 1)}, 0xffff"), I(f"s_min_u32 {s(sJmin)}, {s(sTB)}, 8"), I(f"s_sub_u32 {s(sJmin)}, 8, {s(sJmin)}")]
    out = []
    for e in c: out += e if isinstance(e, list) else [e]
    res = []; k = 0
    while k < len(out):
        if out[k].op == "v_cmp_gt_i32":
            e = k
            while out[e].op != "v_cndmask_b32": e += 1
            res.append(out[k:e + 1]); res += [None] * (e - k); k = e + 1
        else: res.append(out[k]); k += 1
    return res

def att_setup(kdm, zst):
    c = [I(f"s_lshl_b32 {s(sT1)}, {s(sW)}, 12"), I(f"v_add_u32 {v(vKa)}, {s(sT1)}, {v(vL16)}")]
    c += [Wait(*toks(kdm)), I("s_waitcnt lgkmcnt(0)"), BAR()] + stamp_at(6)
    return c

def maxops(S, first):
    o = []
    if first:
        o.append(I(f"v_max3_f32 {v(vM)}, {v(S)}, {v(S + 1)}, {v(S + 2)}"))
        for e in range(3, 15, 2): o.append(I(f"v_max3_f32 {v(vM)}, {v(vM)}, {v(S + e)}, {v(S + e + 1)}"))
        o.append(I(f"v_max_f32 {v(vM)}, {v(vM)}, {v(S + 15)}"))
    else:
        for e in range(0, 16, 2): o.append(I(f"v_max3_f32 {v(vM)}, {v(vM)}, {v(S + e)}, {v(S + e + 1)}"))
    return o
def att_scale(hd, check):
    O = OO[hd]; o = []
    if check:
        o += [I(f"v_max3_f32 {v(vM)}, |{v(O)}|, |{v(O + 1)}|, |{v(O + 2)}|"), I(f"v_max3_f32 {v(vM)}, {v(vM)}, |{v(O + 3)}|, |{v(O + 4)}|"),
              I(f"v_max3_f32 {v(vM)}, {v(vM)}, |{v(O + 5)}|, |{v(O + 6)}|"), I(f"v_max3_f32 {v(vM)}, {v(vM)}, |{v(O + 7)}|, |{v(O + 7)}|"),
              [I(f"v_cmp_nge_f32 vcc, {hx(fbits(2.0 ** 60))}, {v(O + 8)}"),
               I(f"s_mov_b64 {s(sBad, 2)}, vcc") if hd == 0 else I(f"s_or_b64 {s(sBad, 2)}, {s(sBad, 2)}, vcc")],
              [I(f"v_cmp_nle_f32 vcc, {hx(fbits(2.0 ** -60))}, {v(O + 8)}"), I(f"s_or_b64 {s(sBad, 2)}, {s(sBad, 2)}, vcc")],
              [I(f"v_cmp_nge_f32 vcc, {hx(fbits(2.0 ** 126))}, {v(vM)}"), I(f"s_or_b64 {s(sBad, 2)}, {s(sBad, 2)}, vcc")]]
    o += [I(f"v_rcp_f32 {v(vTmp)}, {v(O + 8)}")]
    o += [I(f"v_mul_f32 {v(O + e)}, {v(O + e)}, {v(vTmp)}") for e in range(8)]
    o += [I(f"v_cvt_pk_bf16_f32 {v(RO[hd] + j)}, {v(O + 2 * j)}, {v(O + 2 * j + 1)}") for j in range(4)]
    return o
def v_reads(j, hd, f):
    o = j * 4096 + 2048 + hd * 256
    return [I(f"s_mov_b64 exec, {s(sVm, 2)}"), dsr(v(f, 4), vKa, o), dsr(v(f + 4, 4), vKa, o + 1024), I("s_mov_b64 exec, -1")]

def attention(edge, hooks, otok):
    nb = 8 if edge else 9
    blocks = [(hd, j) for hd in range(2) for j in range(8, 8 - nb, -1)]
    N = len(blocks)
    hk = {k: [] for k in range(N)}
    for k in range(18): hk[(k * N) // 18] += hooks.get(k, [])
    kr = {}; vr = {}
    def kread(k):
        hd, j = blocks[k]; kr[k] = dsr(v(KF + 4 * (k % 4), 4), vKa, j * 4096 + hd * 1024); return [kr[k]]
    def vread(k):
        hd, j = blocks[k]; vr[k] = v_reads(j, hd, Vf + 8 * (k & 1)); return [vr[k]]
    def ms(k):
        hd, j = blocks[k]; o = []
        if j == 8: C = v(Mc, 16)
        elif edge:
            C = v(Cz, 16)
            if j == 7: o += [I(f"v_mov_b32 {v(Cz + r)}, 0") for r in range(16)]
            lo, lb = newlab("cz"), newlab("czb")
            slow.extend([Label(lo), I("s_nop 7")] + [I(f"v_mov_b32 {v(Cz + r)}, 0xff800000") for r in range(16)] + [I("s_nop 1"), I(f"s_branch {lb}")])
            o += [I(f"s_cmp_eq_u32 {s(sJmin)}, {j + 1}"), I(f"s_cbranch_scc1 {lo}"), Label(lb)]
        else: C = v(Ma, 16) if j == 0 else "0"
        return o + [Wait(kr[k].tok), mfma([S0, S1][k & 1], v(KF + 4 * (k % 4), 4), v(Q + 4 * hd, 4), C)]
    def pv(k, u):
        hd, j = blocks[k]; f = Vf + 8 * (k & 1) + 4 * u; P = [P0, P1][k & 1] + 4 * u; O = OO[hd]
        return ([Wait(vr[k][2].tok)] if u == 0 else []) + [mfma(O, v(f, 4), v(P, 4), "0" if (j == 8 and u == 0) else v(O, 16))]
    top = hooks.get("top", [])
    c = kread(0) + kread(1) + kread(2) + vread(0)
    if edge: c += top + hooks.get("norm", [])
    c += ms(0) + ms(1)
    if not edge: c += top
    for k in range(N):
        S = [S0, S1][k & 1]; P = [P0, P1][k & 1]
        ex = [I(f"v_exp_f32 {v(S + e)}, {v(S + e)}") for e in range(16)]
        cv = [I(f"v_cvt_pk_bf16_f32 {v(P + e)}, {v(S + 2 * e)}, {v(S + 2 * e + 1)}") for e in range(8)]
        if k == 0: c += vread(1) + kread(3) + ex
        else:
            c += ex[:2]
            if k + 1 < N: c += ms(k + 1)
            c += ex[2:7] + pv(k - 1, 0) + ex[7:12] + pv(k - 1, 1)
            if k + 1 < N: c += vread(k + 1)
            if k + 3 < N: c += kread(k + 3)
            c += ex[12:]
        c += cv + hk[k]
        if not edge and k == OPT["zn"]: c += hooks.get("norm", [])
        if k == nb + 1: c += att_scale(0, True)
        if k == nb - 1: c += stamp_n("a0p2")
    c += pv(N - 1, 0) + pv(N - 1, 1)
    c += [I(f"s_lshl_b32 {s(sT3)}, {s(sTB)}, 4"), I(f"s_add_u32 {s(sT3)}, {s(sT3)}, {s(sHP)}"), I(f"s_lshl_b32 {s(sT3)}, {s(sT3)}, 11"),
          I(f"s_add_u32 {s(sT3)}, {s(sT3)}, {WS_O}")]
    c += hooks.get("end", [])
    lb = newlab("ok")
    c += att_scale(1, True) + [I(f"s_cmp_eq_u64 {s(sBad, 2)}, 0"), I(f"s_cbranch_scc1 {lb}"), I(f"s_call_b64 {s(sRet, 2)}, L_attslow"), Label(lb)]
    c += [gstore(v(RO[hd], 4), vL16, sWs, s(sT3), 1024 * hd, tok=otok[hd]) for hd in range(2)]
    return c

def attention_slow():
    Cm, Cx = S1, 32
    c = [Label("L_attslow"), I("s_nop 7")]
    for hd in range(2):
        q = v(Q + 4 * hd, 4); O = OO[hd]
        l1, l2 = newlab("s1"), newlab("s2")
        for j in range(8, -1, -1):
            c += [dsr(v(KF, 4), vKa, j * 4096 + hd * 1024), I("s_waitcnt lgkmcnt(0)"),
                  mfma(S0, v(KF, 4), q, v(Mc, 16) if j == 8 else (v(Ma, 16) if j == 0 else "0"))] + maxops(S0, j == 8)
            if j > 0: c += [I(f"s_cmp_eq_u32 {s(sJmin)}, {j}"), I(f"s_cbranch_scc1 {l1}")]
        c += [Label(l1), I("s_nop 7")] + cross_half("v_max_f32", vM, vTmp)
        c += [I(f"v_sub_f32 {v(Cm + r)}, 0, {v(vM)}") for r in range(16)]
        for j in range(8, -1, -1):
            if j in (8, 0): c += [I(f"v_sub_f32 {v(Cx + r)}, {v((Mc if j == 8 else Ma) + r)}, {v(vM)}") for r in range(16)]
            c += [dsr(v(KF, 4), vKa, j * 4096 + hd * 1024)] + v_reads(j, hd, Vf) + [I("s_waitcnt lgkmcnt(0)"), mfma(S0, v(KF, 4), q, v(Cx if j in (8, 0) else Cm, 16))]
            c += [I(f"v_exp_f32 {v(S0 + e)}, {v(S0 + e)}") for e in range(16)]
            c += [I(f"v_cvt_pk_bf16_f32 {v(P0 + e)}, {v(S0 + 2 * e)}, {v(S0 + 2 * e + 1)}") for e in range(8)]
            c += [mfma(O, v(Vf, 4), v(P0, 4), "0" if j == 8 else v(O, 16)), mfma(O, v(Vf + 4, 4), v(P0 + 4, 4), v(O, 16)), I("s_nop 7")]
            if j > 0: c += [I(f"s_cmp_eq_u32 {s(sJmin)}, {j}"), I(f"s_cbranch_scc1 {l2}")]
        c += [Label(l2), I("s_nop 11")] + att_scale(hd, False)
    c += [I("s_nop 1"), I(f"s_setpc_b64 {s(sRet, 2)}")]
    return c

ZF, acc0, acc1, Cb, vZr, vBv = 128, 160, 192, 224, 240, 244
vTRp, vTRy, vWo, vWout, vRingV, vPoll, vPollA = 5, 6, 7, 8, 249, 250, 251
acc3 = 48; RES = 20; vOut = 28

def z_poll_addr(va):
    return [I(f"v_bfe_u32 {v(va)}, {v(vL16)}, 7, 1"), I(f"v_xor_b32 {v(va)}, {s(sCG)}, {v(va)}"), I(f"v_and_b32 {v(va + 1)}, 0x70, {v(vL16)}"),
            I(f"v_add_u32 {v(va)}, {v(va)}, {v(va + 1)}"), I(f"v_lshlrev_b32 {v(va)}, 8, {v(va)}"),
            [I(f"s_lshl_b32 {s(sT1)}, {s(sP)}, 15"), I(f"s_add_u32 {s(sT1)}, {s(sT1)}, {WS_FLAGS + F_Z * 65536}"), I(f"v_add_u32 {v(va)}, {s(sT1)}, {v(va)}")]]
def row_poll_addr(va, ftype, nmax):
    return [I(f"v_bfe_u32 {v(va)}, {v(vL16)}, 4, 4"), I(f"v_min_u32 {v(va)}, {nmax}, {v(va)}"), I(f"v_lshlrev_b32 {v(va)}, 8, {v(va)}"),
            [I(f"s_lshl_b32 {s(sT1)}, {s(sRB)}, 12"), I(f"s_add_u32 {s(sT1)}, {s(sT1)}, {WS_FLAGS + ftype * 65536}"), I(f"v_add_u32 {v(va)}, {s(sT1)}, {v(va)}")]]

def ring_setup_early():
    it = [I(f"s_lshl_b32 {s(sRingR)}, {s(sW)}, 12"), I(f"s_xor_b32 {s(sT1)}, {s(sCG)}, 1"), I(f"s_lshl_b32 {s(sT1)}, {s(sT1)}, 18"),
          I(f"s_lshl_b32 {s(sT2)}, {s(sP)}, 16"), I(f"s_add_u32 {s(sT1)}, {s(sT1)}, {s(sT2)}"), I(f"s_add_u32 {s(sT1)}, {s(sT1)}, {s(sRingR)}"),
          I(f"s_add_u32 {s(sZbase)}, {s(sT1)}, {WS_Z}"), I(f"s_xor_b32 {s(sZbase2)}, {s(sZbase)}, 262144"), I(f"v_add_u32 {v(vZ1)}, 131072, {v(vL16)}")]
    if OPT["rot"]:
        it += [I(f"s_and_b32 {s(sT1)}, {s(sRB)}, 3"), I(f"s_lshl_b32 {s(sZrot)}, {s(sT1)}, 14")]
    else: it += [I(f"s_mov_b32 {s(sZrot)}, 0")]
    return [it]

NQ = 27
if OPT["sched"] == 0:
    PREFILL = (0, 1, 2, 3)
    SCHED = {0: (4, 5, 16), 2: (6, 7, 17), 4: (8, 9, 18), 6: (10, 11, 19), 8: (12, 13), 10: (14, 15), 12: (20, 21), 14: (22, 23), 15: (24,), 16: (25,)}
else:
    PREFILL = (0, 4, 1, 2)
    SCHED = {0: (3, 5, 16), 2: (8, 6, 7), 4: (9, 10, 17), 6: (12, 11, 18), 8: (13, 19), 10: (14, 15), 12: (20, 21), 14: (22, 23), 15: (24,), 16: (25,)}
if OPT["sched"] == 2:
    SCHED = {0: (3, 5), 2: (8, 6, 7), 4: (9, 10, 16), 6: (12, 11, 17), 8: (13, 18, 19), 10: (14, 15), 12: (20, 21), 14: (22, 23), 15: (24,), 16: (25,)}
if OPT["sched"] == 3:
    PREFILL = (0, 1, 2, 3)
    SCHED = {0: (4, 5), 2: (6, 7, 8), 4: (9, 10, 16), 6: (11, 12, 17), 8: (13, 18, 19), 10: (14, 15), 12: (20, 21), 14: (22, 23), 15: (24,), 16: (25,)}
SLOT = {q: 6 + i for i, q in enumerate(PREFILL)}
_free = [0, 1, 2, 3, 4, 5]
WPRE = ()
if OPT["wpre"]:
    WPRE = (16, 17, 18)
    SLOT.update({16: 3, 17: 4, 18: 5}); _free = [0, 1, 2]
    SCHED = {0: (4, 5), 2: (6, 7, 19), 4: (8, 9), 6: (10, 11), 8: (12, 13), 10: (14, 15), 12: (20, 21), 14: (22, 23), 15: (24,), 16: (25,)}
for _q in sorted(SCHED):
    if _q: _free += [SLOT[_q - 2], SLOT[_q - 1]] if _q < 15 else [SLOT[_q - 1]]
    for _x in SCHED[_q]: SLOT[_x] = _free.pop(0)
SLOT[26] = SLOT[23]
def slot(q): return SLOT[q] * 16384
RED = sorted([slot(24), slot(25)])
assert RED[1] - RED[0] + 8192 < 65536
RT = {q: [Tok("vm", f"ring{q}_{i}") for i in range(4)] for q in range(NQ)}
def ring_dma(q):
    it = [I(f"s_add_u32 m0, {s(sRingR)}, {slot(q)}")]
    if q < 16:
        it += [I(f"s_add_u32 {s(sZoff)}, {s(sZrot)}, {(q & 3) * 16384}"), I(f"s_and_b32 {s(sZoff)}, {s(sZoff)}, 0xffff"),
               I(f"s_add_u32 {s(sZoff)}, {s(sZoff)}, {s(sZbase if q < 8 else sZbase2)}")]
        it += [dma(vZ1 if q & 4 else vL16, sWs, s(sZoff), 1024 * i, sc1=True, tok=RT[q][i]) for i in range(4)]
    else:
        va, r = (vWo, sWo) if q >= 23 else (vWout, sWout)
        if q >= 23:
            it.append([I(f"v_add_u32 {v(vTRy)}, {s(sR4)}, {v(va)}"), I(f"s_add_u32 {s(sR4)}, {s(sR4)}, 65536"), I(f"s_and_b32 {s(sR4)}, {s(sR4)}, 0x3ffff")])
        else:
            it.append([I(f"v_add_u32 {v(vTRy)}, {s(sR3)}, {v(va)}"), I(f"s_add_u32 {s(sR3)}, {s(sR3)}, 65536"), I(f"s_cmp_eq_u32 {s(sR3)}, {7 * 65536}"),
                       I(f"s_cselect_b32 {s(sR3)}, 0, {s(sR3)}")])
        it += [dma(vTRy, r, s(sOO + i) if i else "0", 1024 * i, tok=RT[q][i]) for i in range(4)]
    return it

def p3_setup(T=None):
    t0, t1, t2 = (16, 17, 18) if T is None else (56, 57, 58)
    it = [[I(f"s_add_u32 {s(sN0)}, {s(sC)}, {OPT['nrot']}"), I(f"s_and_b32 {s(sN0)}, {s(sN0)}, 7"), I(f"s_lshl_b32 {s(sN0)}, {s(sN0)}, 7"), I(f"s_lshr_b32 {s(sKH)}, {s(sW)}, 1"),
           I(f"s_and_b32 {s(sT1)}, {s(sW)}, 1"), I(f"s_lshl_b32 {s(sT2)}, {s(sP)}, 1"), I(f"s_add_u32 {s(sT1)}, {s(sT1)}, {s(sT2)}"),
           I(f"s_lshl_b32 {s(sT2)}, {s(sRB)}, 2"), I(f"s_add_u32 {s(sTok3)}, {s(sT1)}, {s(sT2)}")],
          ([I(f"s_add_u32 {s(sT1)}, {s(sRB)}, {s(sC)}"), I(f"s_and_b32 {s(sT1)}, {s(sT1)}, 3"), I(f"s_lshl_b32 {s(sR4)}, {s(sT1)}, 16"), I(f"s_lshl_b32 {s(sR4o)}, {s(sT1)}, 12"),
            I(f"s_and_b32 {s(sT1)}, {s(sRB)}, 3"), I(f"s_lshl_b32 {s(sT1)}, {s(sT1)}, 1"), I(f"s_add_u32 {s(sT1)}, {s(sT1)}, {s(sC)}"),
            I(f"s_sub_u32 {s(sT2)}, {s(sT1)}, 7"), I(f"s_cmp_ge_u32 {s(sT1)}, 7"), I(f"s_cselect_b32 {s(sT1)}, {s(sT2)}, {s(sT1)}"),
            I(f"s_lshl_b32 {s(sR3)}, {s(sT1)}, 16"), I(f"s_lshl_b32 {s(sR3y)}, {s(sT1)}, 12")] if OPT["rot"] else
           [I(f"s_mov_b32 {s(r)}, 0") for r in (sR4, sR4o, sR3, sR3y)]),
          I(f"v_bfe_u32 {v(t0)}, {v(vL16)}, 6, 3"), I(f"v_lshlrev_b32 {v(t0)}, 10, {v(t0)}"), I(f"v_and_b32 {v(t1)}, 48, {v(vL16)}"),
          I(f"v_or_b32 {v(t0)}, {v(t0)}, {v(t1)}"), I(f"v_lshrrev_b32 {v(t1)}, 9, {v(vL16)}"), I(f"v_lshl_add_u32 {v(t0)}, {v(t1)}, 6, {v(t0)}"),
          [I(f"s_and_b32 {s(sT1)}, {s(sW)}, 1"), I(f"s_lshl_b32 {s(sT1)}, {s(sT1)}, 15"), I(f"s_add_u32 {s(sT1)}, {s(sT1)}, {s(sN0)}"),
           I(f"v_add_u32 {v(t0)}, {s(sT1)}, {v(t0)}")],
          [I(f"s_mul_i32 {s(sT1)}, {s(sKH)}, {448 * 1024}"), I(f"v_add_u32 {v(vWout)}, {s(sT1)}, {v(t0)}")],
          [I(f"s_lshl_b32 {s(sT1)}, {s(sKH)}, 18"), I(f"v_add_u32 {v(vWo)}, {s(sT1)}, {v(t0)}")],
          I(f"v_bfe_u32 {v(t0)}, {v(vL16)}, 6, 2"), I(f"v_lshl_add_u32 {v(t0)}, {v(t1)}, 2, {v(t0)}"), I(f"v_lshlrev_b32 {v(t0)}, 6, {v(t0)}"),
          I(f"v_bfe_u32 {v(t2)}, {v(vL16)}, 8, 1"), I(f"v_lshl_add_u32 {v(t0)}, {v(t2)}, 5, {v(t0)}"),
          I(f"v_bfe_u32 {v(t2)}, {v(vL16)}, 4, 2"), I(f"v_lshl_add_u32 {v(t0)}, {v(t2)}, 3, {v(t0)}"),
          [I(f"s_lshl_b32 {s(sT1)}, {s(sKH)}, 13"), I(f"v_add_u32 {v(vTRp)}, {s(sT1)}, {v(t0)}")]]
    return it

OT = [Tok("vm", f"o{i}") for i in range(16)]
def o_loads():
    it = [[I(f"s_lshl_b32 {s(sT2)}, {s(sTok3)}, 15"), I(f"s_lshl_b32 {s(sT1)}, {s(sKH)}, 14"), I(f"s_add_u32 {s(sT2)}, {s(sT2)}, {s(sT1)}"),
           I(f"s_add_u32 {s(84)}, {s(sT2)}, {WS_O}")]]
    for i in range(16):
        if i % 4 == 0: it.append([I(f"s_add_u32 {s(sT3)}, {s(84)}, {s(sR4o)}"), I(f"s_add_u32 {s(sR4o)}, {s(sR4o)}, 4096"), I(f"s_and_b32 {s(sR4o)}, {s(sR4o)}, 0x3fff")])
        it.append(gload(a(4 * i, 4), vL16, sWs, s(sT3), 1024 * (i % 4), sc1=True, tok=OT[i]))
    return it
RSD = [Tok("vm", "res0"), Tok("vm", "res1")]
def res_loads():
    return [I(f"v_lshrrev_b32 {v(vOut)}, 7, {v(vL16)}"), I(f"v_lshlrev_b32 {v(vOut)}, 10, {v(vOut)}"), I(f"v_and_b32 {v(vOut + 1)}, 0x70, {v(vL16)}"),
            I(f"v_or_b32 {v(vOut)}, {v(vOut)}, {v(vOut + 1)}"),
            [I(f"s_lshl_b32 {s(sT1)}, {s(sRB)}, 17"), I(f"s_lshl_b32 {s(sT2)}, {s(sP)}, 16"), I(f"s_add_u32 {s(sT1)}, {s(sT1)}, {s(sT2)}"),
             I(f"s_lshl_b32 {s(sT2)}, {s(sW)}, 13"), I(f"s_add_u32 {s(sT1)}, {s(sT1)}, {s(sT2)}"), I(f"s_add_u32 {s(sT1)}, {s(sT1)}, {s(sN0)}"),
             I(f"v_add_u32 {v(vOut)}, {s(sT1)}, {v(vOut)}")],
            I(f"v_add_u32 {v(vOut + 1)}, 32768, {v(vOut)}"),
            gload(v(RES, 4), vOut, sX, "0", tok=RSD[0]), gload(v(RES + 4, 4), vOut + 1, sX, "0", tok=RSD[1])]

def p2_setup():
    t0 = T
    it = [I(f"v_add_u32 {v(vZr)}, {slot(0) & ~0xffff}, {v(vL16)}")]
    bl = gload(v(vBv), t0, sB, s(sT1), op="ushort")
    it += [I(f"v_bfe_u32 {v(t0)}, {v(vL16)}, 4, 5"), I(f"v_lshlrev_b32 {v(t0)}, 1, {v(t0)}"), [I(f"s_lshl_b32 {s(sT1)}, {s(sTB)}, 6"), bl]]
    return it, bl

def win(q): return slot(q) & ~0xffff
def rewin(regs_, q, prev=None):
    d = win(q) - (win(q - 1) if prev is None else prev)
    return [I(f"v_add_u32 {v(r)}, {hx(d)}, {v(r)}") for r in regs_] if d else []

F_Y0 = F_PART
sYo = 86
def y_epilogue(ft):
    b = acc1 + 16 * ft; it = []; st = []
    for i in range(2):
        it += [I(f"v_fma_f32 {v(b + e)}, {v(b + e)}, {v(accB + 16 * ft + e)}, {v(acc0 + 16 * ft + e)}") for e in range(8 * i, 8 * i + 8)]
        it += [I(f"v_cvt_pk_bf16_f32 {v(b + 8 * i + j)}, {v(b + 8 * i + 2 * j)}, {v(b + 8 * i + 2 * j + 1)}") for j in range(4)]
        g = gstore(v(b + 8 * i, 4), vL16, sWs, s(sYo), 1024 * (2 * ft + i)); st.append(g); it.append(g)
    return it, st

def phase2(otok):
    rd = {}; LEAD = 8
    def reads(n):
        q = n // 16
        rd[n] = dsr(v(ZF + 4 * (n % 8), 4), vZr, slot(q) - win(q) + (n % 16) * 1024)
        return (rewin([vZr], q) if n % 16 == 0 and q else []) + [rd[n]]
    setup, bl = p2_setup()
    bars = sorted(SCHED)
    pre = {q: [] for q in bars}; post = {q: [] for q in bars}; fill = {q: [] for q in bars}
    pre[4] += otok; post[4] += [flag_store(F_O, 29)]
    PK = 64; PK0 = 64; CK = 30; CA = 19; sPc, sPd = 72, 87
    x3 = lambda d, a_, b_, c_: I(f"v_bitop3_b32 {v(d)}, {a_}, {v(b_)}, {v(c_)} bitop3:0x96")
    def cksum(d, ft): return [x3(d, s(sNonce) if k == 0 else v(d), PK + 8 * ft + 2 * k, PK + 8 * ft + 2 * k + 1) for k in range(4)]
    def psend(ft):
        it = []
        for k in range(2):
            it += [I(f"v_cvt_pk_bf16_f32 {v(PK + 8 * ft + 4 * k + j)}, {v(acc0 + 16 * ft + 8 * k + 2 * j)}, {v(acc0 + 16 * ft + 8 * k + 2 * j + 1)}") for j in range(4)]
            it += [gstore(v(PK0 + 8 * ft + 4 * k, 4), vL16, sWs, s(sPa), 2048 * ft + 1024 * k)] + cksum(CK + ft, ft)[2 * k:2 * k + 2]
        it += [gstore(v(CK + ft), CA, sWs, s(sPb), 256 * ft, op="dword")]
        return it
    paddr = [[I(f"s_lshl_b32 {s(sT2)}, {s(sRB)}, 4"), I(f"s_add_u32 {s(sT2)}, {s(sT2)}, {s(sCG)}"), I(f"s_lshl_b32 {s(sT2)}, {s(sT2)}, 2"),
              I(f"s_add_u32 {s(sT2)}, {s(sT2)}, {s(sW)}")], [I(f"s_lshl_b32 {s(sPa)}, {s(sT2)}, 13"), I(f"s_add_u32 {s(sPa)}, {s(sPa)}, {WS_PART}"),
              I(f"s_add_u32 {s(sPb)}, {s(sPa)}, 4096")], I(f"s_xor_b32 {s(sPc)}, {s(sPa)}, 32768"), I(f"s_xor_b32 {s(sPd)}, {s(sPb)}, 32768"),
             I(f"v_lshrrev_b32 {v(CA)}, 2, {v(vL16)}"),
             [I(f"s_mul_i32 {s(sT2)}, {s(sTB)}, 56"), I(f"s_lshl_b32 {s(sT1)}, {s(sCG)}, 2"), I(f"s_add_u32 {s(sT2)}, {s(sT2)}, {s(sT1)}"),
              I(f"s_lshl_b32 {s(sT2)}, {s(sT2)}, 10"), I(f"s_add_u32 {s(sYo)}, {s(sT2)}, {WS_Y}")]]
    def precv(ft):
        def loads(): return [gload(v(CK + ft), CA, sWs, s(sPd), 256 * ft, sc1=True, op="dword")] + [
            gload(v(PK + 8 * ft + 4 * k, 4), vL16, sWs, s(sPc), 2048 * ft + 1024 * k, sc1=True) for k in range(2)]
        ld = loads(); cr = T + ft
        ls, lb, ll = newlab("slow"), newlab("back"), newlab("loop")
        slow.extend([Label(ls), I(f"s_mov_b32 {s(sSpin)}, {OPT['spin']}"), Label(ll), I("s_sleep 1")] + loads() + [I("s_waitcnt vmcnt(0)")] + cksum(cr, ft) + [
            I(f"v_cmp_ne_u32 {s(sMask, 2)}, {v(CK + ft)}, {v(cr)}"), I("s_nop 1"), I(f"s_cmp_eq_u64 {s(sMask, 2)}, 0"), I(f"s_cbranch_scc1 {lb}"),
            I(f"s_sub_u32 {s(sSpin)}, {s(sSpin)}, 1"), I(f"s_cmp_lg_u32 {s(sSpin)}, 0"), I(f"s_cbranch_scc1 {ll}"), I(f"s_branch {lb}")])
        chk = [Wait(ld[2].tok)] + cksum(cr, ft) + [[I(f"v_cmp_ne_u32 {s(sMask, 2)}, {v(CK + ft)}, {v(cr)}"), I(f"s_cmp_lg_u64 {s(sMask, 2)}, 0"),
                                                    I(f"s_cbranch_scc1 {ls}"), Label(lb)]] + (stamp_n("pchk") if ft else [])
        for j in range(8):
            g = acc0 + 16 * ft + 2 * j; z = accB + 16 * ft + 2 * j
            chk += [I(f"v_and_b32 {v(g + 1)}, 0xffff0000, {v(PK + 8 * ft + j)}"), I(f"v_lshlrev_b32 {v(g)}, 16, {v(PK + 8 * ft + j)}"),
                    I(f"v_mul_f32 {v(g + 1)}, {v(g + 1)}, {v(z + 1)}"), I(f"v_mul_f32 {v(g)}, {v(g)}, {v(z)}")]
        return ld, chk
    ld0, chk0 = precv(0); ld1, chk1 = precv(1)
    chk0 += [[I(f"s_or_b32 {s(sT1)}, {s(sRB)}, {s(sCG)}"), I(f"s_cmp_eq_u32 {s(sT1)}, 0"), I(f"s_cselect_b32 {s(sT1)}, 0, 0x80000000"),
              I(f"v_or_b32 {v(T)}, {s(sT1)}, {v(vFL)}"), I(f"v_mov_b32 {v(T + 2)}, {s(sNonce)}"), gstore(v(T + 2), T, sWs, "0", WS_EPOCH, op="dword")]]
    ol = poll_issue(vPoll, vPollA)
    if OPT["sched"] < 2 and not WPRE: fill[0] += p3_setup()
    for q in bars:
        for x in SCHED[q]: fill[q] += ring_dma(x)
    if OPT["sched"] >= 2: fill[0] += p3_setup()
    y0, y0st = y_epilogue(0)
    pre[OPT["y0b"]] += toks(y0st); post[OPT["y0b"]] += [flag_store(F_Y0, T + 2)]
    main = setup + [Wait(*(RT[0] + RT[1])), I("s_waitcnt lgkmcnt(0)"), BAR()] + stamp_n("q0")
    for n in range(LEAD): main += reads(n)
    for n in range(256):
        sp, ks = divmod(n, 64); d = acc0 + 16 * sp if sp < 2 else acc1 + 16 * (sp - 2)
        C = v(d, 16) if ks else ("0" if sp < 2 else v(Cb, 16))
        if n % 4 == 0: main += [Wait(*[rd[n + k].tok for k in range(4)])]
        main += [mfma(d, v(ZF + 4 * (n % 8), 4), a(4 * ks, 4), C)]
        nx = n + LEAD; q = nx // 16
        if q in bars and q and nx % 16 < 2: continue
        if q in bars and q and nx % 16 == 2:
            need = RT[q] + RT[q + 1] if q < 15 else []
            main += [[Wait(*([rd[16 * q - 1].tok] + need + pre[q])), BAR()] + stamp_n(f"q{q}") + post[q]]
            if nx < 256: main += reads(nx - 2) + reads(nx - 1)
        if nx < 256: main += reads(nx)
    for i, q in enumerate(bars):
        lo = 16 * q - LEAD + 3 if q else 0; hi = 16 * bars[i + 1] - LEAD + 2 if i + 1 < len(bars) else 256
        if q and hi - lo > 20: hi = min(hi, lo + OPT["fw"])
        main = weave(main, fill[q], lo, hi)
    main = weave(main, row_poll_addr(vPollA, F_O, 15) + [ol], 108, 118)
    main = weave(main, res_loads() + [poll_check(ol, vPoll, vPollA)], 156, 170)
    cb = [Wait(bl.tok), I(f"v_lshlrev_b32 {v(vBv)}, 16, {v(vBv)}")] + [I(f"v_mov_b32 {v(Cb + r)}, {v(vBv)}") for r in range(16)]
    if OPT["gp"] < 8: main = weave(main, gelu(accB + 4 * OPT["gp"], 32 - 4 * OPT["gp"], False, 32), OPT["gz0"], OPT["gz1"])
    main = weave(main, paddr, 40, 60)
    main = weave(main, psend(0), 74, 90)
    main = weave(main, cb, 95, 124)
    main = weave(main, ld0 + psend(1), 135, 152)
    main = weave(main, chk0, 170, 192)
    main = weave(main, y0, 197, 208)
    main = weave(main, ld1, OPT["pl0"], OPT["pl0"] + 3)
    oi = o_loads()
    cut = [k for k, e in enumerate(oi) if isinstance(e, Ins) and e.tok is OT[OPT["on"] - 1]][0] + 1
    main = weave(main, oi[:cut], 210, 236)
    main = weave(main, chk1, OPT["pl1"], 256)
    y1, yst = y_epilogue(1)
    return main + stamp_at(7) + y1 + stamp_n("ep") + oi[cut:], yst
sPa, sPb = 61, 62

def flat1(x):
    out = []
    for e in x:
        if isinstance(e, list) and e and all(isinstance(y, Ins) and (y.kind == "ds" or y.op == "v_add_u32") for y in e): out.extend(e)
        else: out.append(e)
    return out

YT = [Tok("vm", f"yst{i}") for i in range(2)]
def light2(otok):
    c = ring_setup_early() + p3_setup() + [Wait(*otok), BAR(), flag_store(F_O, 30)]
    for q in range(16, 26): c += ring_dma(q)
    c += res_loads()
    ol = poll_issue(vPoll, vPollA)
    c += row_poll_addr(vPollA, F_O, 15) + [ol, poll_check(ol, vPoll, vPollA, sleep=8)] + o_loads()
    return c

def phase3():
    c = []
    rd = {}
    F3 = ZF
    def where(n):
        if n < 16: return 23 + n // 4, n % 4
        k = (n - 16) % 14; return 16 + k // 2, (k & 1) + (2 if n >= 30 else 0)
    cur = [0]
    def reads(n):
        q, j = where(n); f = F3 + 8 * (n % 4)
        rd[n] = [dstr(v(f + 4 * u + 2 * e, 2), vTRp, slot(q) - win(q) + j * 2048 + e * 1024 + u * 512) for u in range(2) for e in range(2)]
        adj = rewin([vTRp], q, cur[0]); cur[0] = win(q)
        return adj + rd[n]
    yld = {}
    def yload(n):
        k = (n - 16) % 14; part = n >= 30
        o = [I(f"s_add_u32 {s(sPb)}, {s(sPa)}, {s(sR3y)}"), I(f"s_add_u32 {s(sR3y)}, {s(sR3y)}, 4096"), I(f"s_cmp_eq_u32 {s(sR3y)}, {7 * 4096}"),
             I(f"s_cselect_b32 {s(sR3y)}, 0, {s(sR3y)}")] if k % 2 == 0 else []
        yld[n] = gload(a(4 * n, 4), vL16, sWs, s(sPb), 1024 * ((k & 1) + 2 * part), sc1=True)
        return o + [yld[n]]
    def step(n, mid=(), end=()):
        f = F3 + 8 * (n % 4); B = a(4 * n, 4)
        o = [Wait(*(toks(rd[n]) + [OT[n] if n < 16 else yld[n].tok])), mfma(acc3, v(f, 4), B, "0" if n == 0 else v(acc3, 16))]
        m1 = mfma(acc3 + 16, v(f + 4, 4), B, "0" if n == 0 else v(acc3 + 16, 16))
        r = reads(n + 4) if n + 4 < 44 else []
        if mid: o += [m1] + list(mid) + r
        else: o += r[:-2] + [m1] + r[-2:]
        return o + list(end)
    y0l = poll_issue(vPoll, vPollA)
    c += row_poll_addr(vPollA, F_Y0, 13) + [y0l]
    c += [I(f"s_mul_i32 {s(sT2)}, {s(sTok3)}, 56"), I(f"s_mul_i32 {s(sT1)}, {s(sKH)}, 28"), I(f"s_add_u32 {s(sT2)}, {s(sT2)}, {s(sT1)}"),
          I(f"s_lshl_b32 {s(sT2)}, {s(sT2)}, 10"), I(f"s_add_u32 {s(sPa)}, {s(sT2)}, {WS_Y}")]
    c += [Wait(*(RT[22] + RT[23] + RT[24])), BAR()]
    c += reads(0) + reads(1) + reads(2) + reads(3)
    y1l = poll_issue(vPoll, vPollA)
    yc, yf = OPT["yc"], OPT["yf"]
    todo = list(range(16, 30))
    for n in range(30):
        mid = []; end = []
        if n == 1: mid = [Wait(*toks(rd[3])), BAR()] + ring_dma(26)
        if n == 4: mid = [Wait(*RT[25]), BAR()]
        if n == 8: mid = [Wait(*RT[26]), BAR()]
        if n == yf: mid += [Wait(*YT), BAR(), flag_store(F_Y, T + 14)] + stamp_n("ybar")
        if n == yc: end += poll_check(y0l, vPoll, vPollA, sleep=OPT['ys0']) + stamp_n("y0flag") + [I(f"v_add_u32 {v(vPollA)}, {(F_Y - F_Y0) * 65536}, {v(vPollA)}")]
        if n >= yc:
            for _ in range(2 if n < 15 else 14):
                if todo: end += yload(todo.pop(0))
        if n == OPT["yp"]: end += [y1l]
        if n == 13 and yf < 12: mid += [BAR()]
        if n == 15: end += stamp_at(8)
        c += step(n, mid, end)
    wa, ra = 32, 40
    c += [I(f"v_bfe_u32 {v(T)}, {v(vL16)}, 4, 4"), I(f"v_lshrrev_b32 {v(T + 1)}, 9, {v(vL16)}"), I(f"v_xor_b32 {v(T)}, {v(T)}, {v(T + 1)}"),
          I(f"v_lshlrev_b32 {v(T)}, 4, {v(T)}"), I(f"v_and_b32 {v(T + 1)}, 0x1f0, {v(vL16)}"), I(f"v_lshl_add_u32 {v(T)}, {v(T + 1)}, 4, {v(T)}"),
          I(f"s_and_b32 {s(sT1)}, {s(sW)}, 1"), I(f"s_lshl_b32 {s(sT1)}, {s(sT1)}, 13"), I(f"s_mul_i32 {s(sT3)}, {s(sKH)}, {RED[1] - RED[0]}"),
          I(f"s_add_u32 {s(sT1)}, {s(sT1)}, {s(sT3)}"), I(f"s_add_u32 {s(sT1)}, {s(sT1)}, {RED[0]}"), I(f"v_add_u32 {v(wa)}, {s(sT1)}, {v(T)}")]
    for i in range(1, 8): c.append(I(f"v_xor_b32 {v(wa + i)}, {32 * i}, {v(wa)}"))
    c += [I(f"v_lshrrev_b32 {v(T)}, 7, {v(vL16)}"), I(f"s_lshl_b32 {s(sT1)}, {s(sW)}, 3"), I(f"v_add_u32 {v(T)}, {s(sT1)}, {v(T)}"),
          I(f"v_and_b32 {v(T + 1)}, 15, {v(T)}"), I(f"v_bfe_u32 {v(T + 2)}, {v(vL16)}, 4, 3"), I(f"v_lshlrev_b32 {v(T + 2)}, 1, {v(T + 2)}"),
          I(f"v_xor_b32 {v(T + 1)}, {v(T + 1)}, {v(T + 2)}"), I(f"v_lshlrev_b32 {v(T + 1)}, 4, {v(T + 1)}"), I(f"v_lshl_add_u32 {v(T)}, {v(T)}, 8, {v(T + 1)}"),
          I(f"v_add_u32 {v(ra)}, {RED[0]}, {v(T)}"), I(f"v_xor_b32 {v(ra + 1)}, 16, {v(ra)}")]
    c += poll_check(y1l, vPoll, vPollA, sleep=OPT['ys1'])
    c += stamp_at(9)
    LA = OPT["yla"]
    for n in range(30, 30 + LA): c += yload(n)
    for n in range(30, 44):
        c += step(n, end=yload(n + LA) if n + LA < 44 else [])
    ws = [dsw(wa + 4 * u + q, v(acc3 + 16 * u + 4 * q, 4)) for u in range(2) for q in range(4)]
    c += stamp_n("y28") + ws + [Wait(*toks(ws)), BAR()] + stamp_n("red")
    D = 128
    rr = [[dsr(v(D + 16 * k + 8 * hf + 4 * j, 4), ra + j, k * 8192 + hf * (RED[1] - RED[0])) for hf in range(2) for j in range(2)] for k in range(2)]
    c += rr[0] + rr[1]
    for k in range(2):
        b = D + 16 * k; x = RES + 4 * k
        c += [Wait(*(toks(rr[k]) + [RSD[k]]))]
        c += [I(f"v_add_f32 {v(b + e)}, {v(b + e)}, {v(b + 8 + e)}") for e in range(8)]
        for j in range(4):
            c += [I(f"v_lshlrev_b32 {v(b + 8 + 2 * j)}, 16, {v(x + j)}"), I(f"v_and_b32 {v(b + 9 + 2 * j)}, 0xffff0000, {v(x + j)}")]
        c += [I(f"v_add_f32 {v(b + e)}, {v(b + e)}, {v(b + 8 + e)}") for e in range(8)]
        c += [I(f"v_cvt_pk_bf16_f32 {v(b + j)}, {v(b + 2 * j)}, {v(b + 2 * j + 1)}") for j in range(4)]
        c += [VM(f"buffer_store_dwordx4 {v(b, 4)}, {v(vOut + k)}, {srd(sOut)}, 0 offen" + ["", " sc1", " nt", " sc0 sc1", " sc1 nt", " sc0 sc1 nt"][OPT["ost"]])]
    c += stamp_at(10)
    if OPT["probe"]:
        c += [I("s_waitcnt lgkmcnt(0)"), I(f"s_sub_u32 {s(sT1)}, {s(sStamp + 2)}, {s(sStamp)}"), I(f"s_mul_i32 {s(sT1)}, {s(sT1)}, {0 if OPT['probe'] == 'end' else 4}"),
              I(f"s_cmp_eq_u32 {s(sC)}, 7"), I(f"s_cselect_b32 {s(sT1)}, 0, {s(sT1)}"), I(f"s_add_u32 {s(sT1)}, {s(sT1)}, 6000"), I(f"s_min_u32 {s(sT1)}, {s(sT1)}, 50000"), Label("L_probe"), I(f"s_memrealtime {s(sStamp + 4, 2)}"), I("s_waitcnt lgkmcnt(0)"),
              I(f"s_sub_u32 {s(sT2)}, {s(sStamp + 4)}, {s(sStamp)}"), I(f"s_cmp_lt_u32 {s(sT2)}, {s(sT1)}"), I("s_cbranch_scc1 L_probe")]
    if OPT["stamps"]:
        c += [I("s_waitcnt lgkmcnt(0)")]
        for i in range(7): c.append(I(f"v_mov_b32 {v(128 + i)}, {s(sStamp + 2 * i)}"))
        c += [I(f"s_lshl_b32 {s(sT1)}, s2, 8"), I(f"s_lshl_b32 {s(sT2)}, {s(sW)}, 6"), I(f"s_add_u32 {s(sT1)}, {s(sT1)}, {s(sT2)}"),
              I(f"s_add_u32 {s(sT1)}, {s(sT1)}, {WS_DBG}"), I(f"v_mov_b32 {v(140)}, 0")]
        for i in range(2): c.append(gstore(v(128 + 4 * i, 4), 140, sWs, s(sT1), 16 * i, sc1=False))
    return c

def build():
    fr, rest = front()
    lnf, wdF = rest(KFULL); lnl, wdL = rest(KLIGHT)
    spd, p1F, kdmF, zst = p1_main(KFULL, wdF, True)
    _, p1L, kdmL, _ = p1_main(KLIGHT, wdL, False)
    otok = [Tok("vm", "ost0"), Tok("vm", "ost1")]
    def hooks_full():
        zl = poll_issue(vPz, vPzA)
        h = {k: [] for k in range(18)}
        h[OPT["zf"]] = [Wait(*toks(zst)), BAR(), flag_store(F_Z, 126)]
        np_ = OPT['npl']
        left = list(range(OPT["sp1"], 16)); d = dict(spd)
        for i, w in enumerate(left):
            pl = (i * np_) // len(left)
            r = sp_read(w)
            h[pl] += [Wait(*toks(d[w]))] + r
            if w + 3 < 16:
                d[w + 3] = sp_dma(w + 3)
                h[pl + 1] = [Wait(*toks(r))] + d[w + 3] + h[pl + 1]
        if WPRE:
            k0 = ((len(left) - 1) * np_) // len(left) + 1
            h[k0] += [I("s_waitcnt lgkmcnt(0)"), BAR()] + ring_setup_early() + p3_setup(132)
            for i, x in enumerate(WPRE): h[k0 + 1 + i] += ring_dma(x)
        zp = OPT["zp"]
        h[zp] += ([] if WPRE else ring_setup_early()) + z_poll_addr(vPzA) + [zl]
        rest = [[poll_check(zl, vPz, vPzA)] + stamp_n("zchk") + ring_dma(PREFILL[0])] + [ring_dma(x) for x in PREFILL[1:]]
        h["end"] = []
        for i, x in enumerate(rest):
            k = zp + 3 + i
            h[k if k < 18 else "end"] += x
        return h
    segs = {}
    segs["front"] = flat(fr + [I(f"s_cmp_ge_u32 {s(sCG)}, 14"), I("s_cbranch_scc1 L_light")])
    segs["fullP1"] = flat(lnf + stamp_at(3) + p1F + att_setup(kdmF, zst) + [I(f"s_cmp_lt_u32 {s(sRB)}, 2"), I("s_cbranch_scc1 L_fedge")])
    segs["fullAtt"] = flat(attention(False, hooks_full(), otok))
    p2, yst = phase2(otok)
    for g, t in zip(yst, YT): g.tok = t
    segs["P2"] = flat([Label("L_p2")] + stamp_at(5) + p2)
    segs["P3"] = flat([Label("L_p3")] + phase3() + [Label("L_end"), I("s_endpgm")])
    segs["fullEdge"] = flat([Label("L_fedge")] + attention(True, hooks_full(), otok) + [I("s_branch L_p2")])
    segs["lightP1"] = flat([Label("L_light")] + lnl + stamp_at(3) + p1L + att_setup(kdmL, []) + [I(f"s_cmp_lt_u32 {s(sRB)}, 2"), I("s_cbranch_scc1 L_ledge")])
    segs["lightAtt"] = flat(attention(False, {}, otok))
    l2 = light2(otok)
    fake = [VM(f"buffer_load_dword {v(T + 15)}, {v(vFL)}, {srd(sB)}, 0 offen", tok=t) for t in YT]
    segs["light2"] = flat([Label("L_l2")] + stamp_at(5) + fake + l2 + stamp_at(7) + [I("s_branch L_p3")])
    segs["lightEdge"] = flat([Label("L_ledge")] + attention(True, {}, otok) + [I("s_branch L_l2")])
    segs["attSlow"] = flat(attention_slow())
    def ablate(name, bits):
        out = []
        for x in segs[name]:
            isdma = x.kind == "vmem" and x.text.endswith("lds")
            if bits & 1 and isdma: continue
            if bits & 2 and x.kind == "vmem" and not isdma: continue
            if bits & 2 and x.op == "s_cbranch_scc1" and "slow" in x.text: continue
            if bits & 4 and x.kind == "barrier": continue
            if bits & 8 and x.kind in ("valu", "trans") : continue
            if bits & 16 and x.kind == "ds": continue
            out.append(x)
        segs[name] = out
    import asmlib
    for nm, key in (("P2", "abl2"), ("fullP1", "abl1"), ("fullAtt", "abl3")):
        if OPT[key]: ablate(nm, OPT[key]); asmlib.LENIENT = True
    paths = [["front", "fullP1", "fullAtt", "P2", "P3"], ["front", "fullP1", "fullEdge", "P2", "P3"],
             ["front", "lightP1", "lightAtt", "light2", "P3"], ["front", "lightP1", "lightEdge", "light2", "P3"]]
    finalize([flat([segs[n] for n in p]) for p in paths] + [flat(slow), segs["attSlow"]])
    order = ["front", "fullP1", "fullAtt", "P2", "P3", "fullEdge", "lightP1", "lightAtt", "light2", "lightEdge", "attSlow"]
    body = "\n".join(render(segs[n]) for n in order) + "\n" + render(flat(slow)) + "\nL_codeend:\n  s_endpgm"
    hdr = open(__file__.rsplit("/", 1)[0] + "/../cdna_kernels/parallel_sum__sliding_block__mixer_gmlp__prompt.s.ref").read().split("; Override launch")[0]
    out = hdr + "; @launch grid=(256,1,1) block=(256,1,1) lds=163840\n" + f'''.amdgcn_target "amdgcn-amd-amdhsa--gfx950"
.text
.globl {KNAME}
.p2align 8
.type {KNAME},@function
{KNAME}:
{body}
.section .rodata,"a"
.p2align 6
.amdhsa_kernel {KNAME}
  .amdhsa_next_free_vgpr 512
  .amdhsa_next_free_sgpr 102
  .amdhsa_accum_offset 256
  .amdhsa_group_segment_fixed_size 0
  .amdhsa_kernarg_size 88
  .amdhsa_user_sgpr_count 2
  .amdhsa_user_sgpr_kernarg_segment_ptr 1
  .amdhsa_system_sgpr_workgroup_id_x 1
  .amdhsa_float_denorm_mode_32 3
.end_amdhsa_kernel
'''
    if OPT["stamps"]: out = out.replace("; @launch", "; stamps: " + " ".join(PROFS[OPT["stamps"]]) + "\n; @launch")
    open(sys.argv[1], "w").write(out)
    n = {k: len(x) for k, x in segs.items()}
    pads = {k: sum(i.pad for i in x) for k, x in segs.items()}
    print("instr counts", n, "pads", pads, file=sys.stderr)

build()
```

```python
import re

def v(i, n=1):
    return f"v{i}" if n == 1 else f"v[{i}:{i+n-1}]"
def a(i, n=1):
    return f"a{i}" if n == 1 else f"a[{i}:{i+n-1}]"
def s(i, n=1):
    return f"s{i}" if n == 1 else f"s[{i}:{i+n-1}]"

TRANS = ("v_exp_f32", "v_log_f32", "v_rcp_f32", "v_rsq_f32", "v_sqrt_f32", "v_sin_f32", "v_cos_f32")

VMCOST = 1
class Tok:
    __slots__ = ("cls", "name")
    def __init__(self, cls, name=""):
        self.cls = cls; self.name = name

class Ins:
    __slots__ = ("text", "kind", "tok", "waits", "W", "R", "mf", "pad", "nvm", "nlg", "op", "cost")
    def __init__(self, text, kind=None, tok=None, waits=None):
        self.text = text; self.tok = tok; self.waits = waits; self.pad = 0
        self.nvm = None; self.nlg = None
        self.op = text.split()[0] if text else ""
        self.kind = kind or classify(self.op, text)
        self.W, self.R, self.mf = rw_sets(self)
        self.cost = 2 if self.kind in ("trans", "mfma") else (0 if self.kind == "label" else 1)
        if self.kind == "vmem": self.cost = max(VMCOST, 6 if "store_dwordx4" in self.op else (4 if "store" in self.op else 3)) if VMCOST > 1 else 1
        if self.op == "ds_write_b128" and VMCOST > 1: self.cost = 5

def classify(op, text):
    if op.endswith(":"): return "label"
    if op.startswith("v_mfma"): return "mfma"
    if op in TRANS: return "trans"
    if op.startswith("v_dot2"): return "dot"
    if op.startswith("v_"): return "valu"
    if op.startswith("ds_"): return "ds"
    if op.startswith("buffer_") or op.startswith("global_"): return "vmem"
    if op.startswith("s_load") or op.startswith("s_memtime") or op.startswith("s_memrealtime"): return "smem"
    if op == "s_waitcnt": return "rawwait"
    if op == "s_barrier": return "barrier"
    if op == "s_nop": return "nop"
    if op.startswith("s_cbranch") or op in ("s_branch", "s_endpgm", "s_call_b64", "s_setpc_b64"): return "branch"
    if op.startswith("s_"): return "salu"
    return "other"

_reg = re.compile(r"^-?\|?(?:abs\()?([vas])(?:(\d+)|\[(\d+):(\d+)\])\)?\|?$")
def regs(opnd):
    opnd = opnd.strip()
    if opnd == "vcc": return {("s", 106), ("s", 107)}
    if opnd == "exec": return {("s", 126), ("s", 127)}
    if opnd == "m0": return {("s", 124)}
    m = _reg.match(opnd)
    if not m: return set()
    c = m.group(1)
    if m.group(2) is not None: return {(c, int(m.group(2)))}
    return {(c, i) for i in range(int(m.group(3)), int(m.group(4)) + 1)}

def operands(text):
    parts = text.split(None, 1)
    if len(parts) < 2: return []
    out = []
    for p in parts[1].split(","):
        out.append(p.strip().split()[0] if p.strip() else "")
    return out

def rw_sets(ins):
    k = ins.kind; op = ins.op; o = operands(ins.text); W = set(); R = set(); mf = None
    if k == "mfma":
        D, A, B, C = regs(o[0]), regs(o[1]), regs(o[2]), regs(o[3])
        W = D; R = A | B | C; mf = (D, A | B, C, 8 if "32x32" in op else 4)
    elif k in ("valu", "trans", "dot"):
        if op.startswith("v_permlane") and "swap" in op:
            W = regs(o[0]) | regs(o[1]); R = set(W)
        elif op.startswith("v_nop"):
            pass
        else:
            W = regs(o[0])
            for x in o[1:]: R |= regs(x)
            if op.startswith("v_fmac") or op.startswith("v_dot2c") or op.startswith("v_writelane"): R |= W
            if op.startswith("v_cndmask") and len(o) == 3: R |= regs("vcc")
    elif k == "ds":
        if op.startswith("ds_read"):
            W = regs(o[0]); R = regs(o[1])
        else:
            for x in o: R |= regs(x)
    elif k == "vmem":
        lds = ins.text.rstrip().endswith("lds")
        if op.startswith("buffer_load") and not lds:
            W = regs(o[0])
            for x in o[1:]: R |= regs(x)
        elif op.startswith("global_load"):
            W = regs(o[0])
            for x in o[1:]: R |= regs(x)
        else:
            for x in o: R |= regs(x)
            if lds: R |= regs("m0")
    elif k == "smem":
        W = regs(o[0])
        for x in o[1:]: R |= regs(x)
    elif k == "salu":
        if op.startswith("s_cmp") or op.startswith("s_bitcmp") or op in ("s_sleep", "s_setprio"):
            for x in o: R |= regs(x)
        else:
            W = regs(o[0])
            for x in o[1:]: R |= regs(x)
            if "saveexec" in op: W |= regs("exec")
    return W, R, mf

def I(text, tok=None):
    return Ins(text, tok=tok)
def Wait(*toks):
    toks = [t for t in toks if t is not None]
    return Ins("s_waitcnt", kind="wait", waits=toks)
def VM(text, name="", tok=None):
    return Ins(text, tok=tok or Tok("vm", name or text))
def DS(text, name="", tok=None):
    return Ins(text, tok=tok or Tok("lg", name or text))
def Label(name):
    return Ins(name + ":", kind="label")

def flat(x):
    out = []
    for e in x:
        if isinstance(e, (list, tuple)): out.extend(flat(e))
        elif e is not None: out.append(e)
    return out

def weave(main, filler, m0=0, m1=None):
    pos = [i for i, e in enumerate(main) if any(x.kind == "mfma" for x in flat([e]))]
    if m1 is None: m1 = len(pos)
    m1 = min(m1, len(pos))
    sel = pos[m0:m1]
    if not filler: return list(main)
    assert sel, "no MFMA to weave into"
    cost = [sum(x.cost for x in flat([e])) for e in filler]
    load = []
    for j, p in enumerate(sel):
        nxt = pos[pos.index(p) + 1] if pos.index(p) + 1 < len(pos) else len(main)
        load.append(sum(x.cost for e in main[p + 1:nxt] for x in flat([e])))
    total = sum(cost) + sum(load)
    per = total / len(sel)
    ins_at = {p: [] for p in sel}
    acc = 0.0; fi = 0
    for j, p in enumerate(sel):
        acc += load[j]
        target = per * (j + 1)
        while fi < len(filler) and (acc + cost[fi] / 2.0 <= target or j == len(sel) - 1):
            ins_at[p].append(filler[fi]); acc += cost[fi]; fi += 1
    out = []
    for i, e in enumerate(main):
        out.append(e)
        if i in ins_at: out.extend(ins_at[i])
    return out

LENIENT = False
def resolve_waits(path):
    vm = {}; lg = {}; nvm = 0; nlg = 0; vm_done = 0; lg_done = 0
    for x in path:
        if x.kind == "vmem":
            nvm += 1
            if x.tok: vm[id(x.tok)] = nvm
        elif x.kind == "ds":
            nlg += 1
            if x.tok: lg[id(x.tok)] = nlg
        elif x.kind == "rawwait":
            m = re.search(r"vmcnt\((\d+)\)", x.text)
            if m: vm_done = max(vm_done, nvm - int(m.group(1)))
            m = re.search(r"lgkmcnt\((\d+)\)", x.text)
            if m: lg_done = max(lg_done, nlg - int(m.group(1)))
        elif x.kind == "wait":
            needv = max([vm[id(t)] for t in x.waits if t.cls == "vm" and id(t) in vm], default=0)
            needl = max([lg[id(t)] for t in x.waits if t.cls == "lg" and id(t) in lg], default=0)
            for t in x.waits:
                if id(t) not in vm and id(t) not in lg and not LENIENT:
                    raise RuntimeError("wait on token never issued on this path: " + t.name)
            if needv > vm_done:
                n = min(nvm - needv, 63)
                x.nvm = n if x.nvm is None else min(x.nvm, n)
            if needl > lg_done:
                n = min(nlg - needl, 15)
                x.nlg = n if x.nlg is None else min(x.nlg, n)
            if x.nvm is not None: vm_done = max(vm_done, nvm - x.nvm)
            if x.nlg is not None: lg_done = max(lg_done, nlg - x.nlg)

def states(x):
    if x.kind == "label": return 0
    if x.kind == "wait" and x.nvm is None and x.nlg is None: return 0
    if x.kind == "nop": return int(x.text.split()[1]) + 1
    return 1

VALUK = ("valu", "trans", "dot")
def need_states(p, c):
    n = 0
    pv = p.kind in VALUK; cv = c.kind in VALUK
    if pv:
        vw = {r for r in p.W if r[0] in "va"}; sw = {r for r in p.W if r[0] == "s"}
        if c.kind == "mfma" and vw & c.R: n = max(n, 2)
        if p.kind == "trans" and cv and c.kind != "trans" and vw & c.R: n = max(n, 1)
        if p.kind == "trans" and c.kind == "trans" and vw & c.R: n = max(n, 1)
        if c.op.startswith("v_permlane") and vw & c.R: n = max(n, 2)
        if c.op.startswith("v_readfirstlane") or c.op.startswith("v_readlane"):
            if vw & c.R: n = max(n, 1)
        if "dpp" in c.text or "row_" in c.text or "quad_perm" in c.text:
            if vw & c.R: n = max(n, 2)
        if sw:
            if cv and sw & c.R: n = max(n, 2)
            if c.kind == "vmem" and sw & c.R: n = max(n, 5)
            if c.kind in ("salu", "branch", "smem") and (sw & c.R or c.op.startswith("s_cbranch_vcc")): n = max(n, 2)
        if p.kind == "dot":
            if c.kind == "dot" and c.op == p.op:
                o = operands(c.text)
                if vw & (regs(o[1]) | regs(o[2])): n = max(n, 3)
            elif vw & (c.R | c.W): n = max(n, 3)
    if p.kind == "mfma":
        D, AB, C, passes = p.mf
        big = 12 if passes == 8 else 8
        if c.kind == "mfma":
            D2, AB2, C2, p2 = c.mf
            if D & AB2: n = max(n, big)
            if D & C2 and not (D == C2 and p2 == passes): n = max(n, big - 2)
            if D & D2 and not (D == C2 and p2 == passes): n = max(n, big - 2)
        else:
            if D & (c.R | c.W): n = max(n, big)
            if cv and C & c.W: n = max(n, 7 if passes == 8 else 3)
    if p.kind == "salu" and ("s", 124) in p.W and c.kind == "vmem" and ("s", 124) in c.R: n = max(n, 1)
    if p.kind == "vmem" and ("store_dwordx4" in p.op or "store_dwordx3" in p.op):
        data = regs(operands(p.text)[0] if p.op.startswith("buffer") else operands(p.text)[1])
        if data & c.W: n = max(n, 2)
    return n

def pad_hazards(path):
    live = [x for x in path]
    for i, c in enumerate(live):
        if c.kind in ("label", "wait", "rawwait", "nop", "barrier"): continue
        dist = c.pad; j = i - 1; need = 0
        while j >= 0 and dist < 20:
            p = live[j]
            r = need_states(p, c)
            if r > dist: need = max(need, r - dist)
            dist += states(p) + p.pad
            j -= 1
        if need: c.pad += need

def render(seq):
    out = []
    for x in seq:
        p = x.pad
        while p > 0:
            k = min(p, 16); out.append(f"  s_nop {k-1}"); p -= k
        if x.kind == "wait":
            t = []
            if x.nvm is not None: t.append(f"vmcnt({x.nvm})")
            if x.nlg is not None: t.append(f"lgkmcnt({x.nlg})")
            if t: out.append("  s_waitcnt " + " ".join(t))
        elif x.kind == "label": out.append(x.text)
        else: out.append("  " + x.text)
    return "\n".join(out)

def finalize(paths):
    for _ in range(2):
        for p in paths: resolve_waits(p)
    for p in paths: pad_hazards(p)


def _fence(x):
    return x.kind in ("barrier", "branch", "label", "rawwait", "nop", "smem", "other") or (x.kind == "salu" and ("s", 126) in x.W)
_SCC = ("c", 0)
def _rw(x):
    W, R = set(x.W), set(x.R)
    if x.kind == "salu":
        if not x.op.startswith("s_mov") and not x.op.startswith("s_cselect") and not x.op.startswith("s_mul"): W.add(_SCC)
        if x.op.startswith("s_cselect") or x.op.startswith("s_addc") or x.op.startswith("s_subb"): R.add(_SCC)
    return W, R
def _dep(p, c, tokW):
    if p.kind == "wait":
        if c.kind in ("vmem", "wait", "valu", "trans", "dot", "mfma"): return True
        if c.kind == "ds":
            if any(t.cls == "vm" for t in p.waits) or not c.op.startswith("ds_read"): return True
            return any(tokW.get(id(t), None) is None or not tokW[id(t)] or tokW[id(t)] & (c.R | c.W) for t in p.waits)
        return False
    if c.kind == "wait":
        return p.tok is not None and any(t is p.tok for t in c.waits)
    if p.kind == c.kind and p.kind in ("vmem", "ds"): return True
    pW, pR = _rw(p); cW, cR = _rw(c)
    return bool(pW & (cW | cR) or pR & cW)

def reorder_gaps(seq):
    tokW = {id(x.tok): x.W for x in seq if x.tok is not None}
    out = []; i = 0; n = len(seq); carry = []
    while i < n:
        x = seq[i]
        if x.kind != "mfma":
            out += carry; carry = []
            out.append(x); i += 1; continue
        out.append(x); i += 1
        j = i
        while j < n and seq[j].kind != "mfma" and not _fence(seq[j]): j += 1
        gap = carry + seq[i:j]; carry = []
        nxt = seq[j] if j < n else None
        m = len(gap)
        pred = [[a_ for a_ in range(b_) if _dep(gap[a_], gap[b_], tokW)] for b_ in range(m)]
        anc = []
        for b_ in range(m):
            s_ = set(pred[b_])
            for a_ in pred[b_]: s_ |= anc[a_]
            anc.append(s_)
        ismem = [g.kind in ("vmem", "ds") for g in gap]
        late = [ismem[b_] and any(gap[a_].kind in VALUK for a_ in anc[b_]) for b_ in range(m)]
        defer = set()
        if nxt is not None and nxt.kind == "mfma":
            for b_ in range(m - 1, -1, -1):
                users = [c_ for c_ in range(b_ + 1, m) if b_ in pred[c_] and c_ not in defer]
                follows = ismem[b_] and any(a_ in anc[b_] for a_ in range(m) if late[a_])
                if (late[b_] or follows) and not users and not _dep(gap[b_], nxt, tokW): defer.add(b_)
        prio = [0 if gap[b_].kind == "vmem" else (1 if gap[b_].kind == "ds" and gap[b_].op.startswith("ds_read") else (2 if gap[b_].kind == "ds" else 3)) for b_ in range(m)]
        for b_ in range(m - 1, -1, -1):
            if late[b_]: prio[b_] = 4
        for b_ in range(m - 1, -1, -1):
            if b_ in defer: continue
            for a_ in pred[b_]:
                if prio[b_] < prio[a_]: prio[a_] = prio[b_]
        done = set(); order = []
        todo = [b_ for b_ in range(m) if b_ not in defer]
        while todo:
            ready = [b_ for b_ in todo if all(a_ in done for a_ in pred[b_])]
            b_ = min(ready, key=lambda k: (prio[k], k))
            done.add(b_); order.append(b_); todo.remove(b_)
        out += [gap[b_] for b_ in order]
        carry = [gap[b_] for b_ in sorted(defer)]
        i = j
    return out + carry
```

```python
import sys, math, struct, os
sys.path.insert(0, __file__.rsplit("/", 1)[0])
from asmlib import *

KNAME = "parallel_sum__sliding_block__mixer_gmlp__prompt_kernel"
OPT = dict(stamps=0, spin=20000, nt_x=0, nt_w=0, ost=0, vmc=5, sph=0, wpre=0, npl=14, abl1=0, abl2=0, abl3=0, probe=None, rt=0, cpf=1, nt_sp=0, nt_o=0, nt_t=0, rot=1, sp0=5, sp1=10, spm=0, touch=1, touch_o=0, pl0=194, pl1=230, fw=32, y0b=15, ys0=8, ys1=2, on=4, sched=0, nrot=4, crot=7, touch2=0, yc=6, yf=5, zn=3, yp=20, hpos=1, clump=1, wof=1, yck=0, y1c=24, y0t=252, reord=1, hot=0, tn=8, tz=0, tw=0, yla=4, gp=0, gz0=2, gz1=165, gs=5, k1=146, g1=182, zf=4, skipbar=1, zp=10, nosp=0)
for arg in sys.argv[2:]:
    k, val = arg.split("="); OPT[k] = val if k == "probe" else int(val)

import asmlib
asmlib.VMCOST = OPT["vmc"]
def fbits(x): return struct.unpack("<I", struct.pack("<f", x))[0]
def hx(x): return hex(x & 0xffffffff)

WS_EPOCH = 0
WS_FLAGS = 0x1000
WS_STATS = 0x100000
WS_KV = 0x200000
WS_Z = 0x600000
WS_PART = 0xA00000
WS_O = 0x1200000
WS_Y = 0x1400000
WS_DBG = 0x1800000
WS_YTAG = 0x1900000
WS_YCK = 0x1A00000
F_KV, F_Z, F_PART, F_O, F_Y = range(5)
L_STG = 48 * 1024; L_RING = 96 * 1024; L_RED = 48 * 1024
sX, sWq, sWi, sWsp, sWo, sWout, sB, sOut, sWs = 4, 8, 12, 16, 20, 24, 28, 32, 36
sRB, sCG, sP, sW, sNonce, sHP, sTB, sT0 = 40, 41, 42, 43, 44, 45, 46, 47
sOI, sOQ, sOO = 48, 52, 56
sMyFlag = 48
sJmin = 52
sN0 = 56
sSpA, sSpB, sRingW, sStg, sZoff, sRingR = 61, 62, 63, 64, 65, 66
sTok3 = 67
sKH = 68
sC10, sC01, sOnes = 70, 71, 72
sKVo, sKVs, sZo = 60, 69, 73
sMask = 74; sSpin = 76; sT1, sT2, sT3 = 77, 78, 79
sRotI, sRotQ = 80, 84
sR4, sR4o, sR3, sR3y = 80, 81, 82, 83
sStamp = 88
sC = 3; sSpBase = 0; sSpRot = 1; sVm = 70; sZbase = 60; sZrot = 69; sZbase2 = 73
vZ1 = 2
vL16, vTR, vWd, vSpA, vSpB, vSpR, vFL, vR, vGA, vGB, vD, vSum, vSq = 0, 1, 2, 3, 4, 5, 9, 10, 11, 12, 13, 14, 15
T = 16
accA, accB, accD, X = 48, 80, 112, 128
vStD, vStA, vStB, vStC = 43, 45, 46, 47
AF = 224

slow = []
slow2 = []
_lab = [0]
def newlab(n):
    _lab[0] += 1; return f"L_{n}_{_lab[0]}"

_st = [0]
def stamp():
    if not OPT["stamps"]: return []
    i = _st[0]; _st[0] += 1
    assert sStamp + 2 * i + 1 <= 101
    return [I(f"s_memtime {s(sStamp + 2 * i, 2)}")]
PROFS = {1: ["start", "center", "P1", "att", "P2", "yflag", "end"],
         2: ["start", "b0", "b4", "b8", "b10", "b12", "P1"],
         4: ["start", "P1", "kchk", "sld", "schk", "attbar", "a0p2"],
         6: ["start", "b3", "b4", "b5", "b6", "b7", "b8"],
         10: ["start", "b8", "b9", "b10", "b11", "b12", "b13"],
         3: ["start", "q0", "q4", "q8", "q12", "pchk", "P2"],
         5: ["start", "dma0", "x0", "x3", "xbar", "stats", "lnpre"],
         7: ["start", "P2", "y0flag", "opart", "yflag", "y28", "end"],
         8: ["start", "P1", "kchk", "attbar", "a0p2", "zchk", "att"],
         9: ["start", "rt:start", "P1", "rt:P1", "P2", "end", "rt:end"]}
OLD = ["start", "x0", "stats", "center", "P1", "att", "attbar", "P2", "opart", "yflag", "end"]
def stamp_n(name):
    if OPT["probe"]:
        if name == "start": return [I(f"s_memrealtime {s(sStamp, 2)}")]
        if name == OPT["probe"]: return [I(f"s_memrealtime {s(sStamp + 2, 2)}")]
        return []
    if not OPT["stamps"]: return []
    L = PROFS[OPT["stamps"]]
    if name not in L: return []
    o = [I(f"{'s_memrealtime' if OPT['rt'] else 's_memtime'} {s(sStamp + 2 * L.index(name), 2)}")]
    if "rt:" + name in L: o.append(I(f"s_memrealtime {s(sStamp + 2 * L.index('rt:' + name), 2)}"))
    return o
def stamp_at(i): return stamp_n(OLD[i])

def srd(r): return s(r, 4)
def dma(vaddr, r, soff, imm, sc1=False, tok=None):
    o = f" offset:{imm}" if imm else ""
    nt = {sX: OPT["nt_x"], sWq: OPT["nt_w"], sWi: OPT["nt_w"], sWsp: OPT["nt_sp"], sWo: OPT["nt_o"], sWout: OPT["nt_o"]}.get(r, 0)
    return VM(f"buffer_load_dwordx4 {v(vaddr)}, {srd(r)}, {soff} offen{o}{' sc1' if sc1 else ''}{' nt' if nt else ''} lds", tok=tok)
def gload(dst, vaddr, r, soff, imm=0, sc1=False, tok=None, op="dwordx4"):
    o = f" offset:{imm}" if imm else ""
    return VM(f"buffer_load_{op} {dst}, {v(vaddr)}, {srd(r)}, {soff} offen{o}{' sc1' if sc1 else ''}", tok=tok)
def gstore(src, vaddr, r, soff, imm=0, sc1=True, op="dwordx4", tok=None):
    o = f" offset:{imm}" if imm else ""
    return VM(f"buffer_store_{op} {src}, {v(vaddr)}, {srd(r)}, {soff} offen{o}{' sc1' if sc1 else ''}", tok=tok)
def dsr(dst, vaddr, imm=0, op="ds_read_b128"):
    o = f" offset:{imm}" if imm else ""
    return DS(f"{op} {dst}, {v(vaddr)}{o}")
def dstr(dst, vaddr, imm=0): return dsr(dst, vaddr, imm, "ds_read_b64_tr_b16")
def dsw(vaddr, src, imm=0, op="ds_write_b128"):
    o = f" offset:{imm}" if imm else ""
    return DS(f"{op} {v(vaddr)}, {src}{o}")
def mfma(d, A, B, C):
    return I(f"v_mfma_f32_32x32x16_bf16 {v(d, 16)}, {A}, {B}, {C}")
def toks(items): return [x.tok for x in flat(items) if x.tok is not None]
def vmtoks(items): return [x.tok for x in flat(items) if x.tok is not None and x.kind == "vmem"]
def lgtoks(items): return [x.tok for x in flat(items) if x.tok is not None and x.kind == "ds"]
BAR = lambda: I("s_barrier")

def rne_bf16(dst, src):
    return [I(f"v_cvt_pk_bf16_f32 {v(dst)}, {v(src)}, {v(src)}"), I(f"v_and_b32 {v(dst)}, 0xffff0000, {v(dst)}")]
def cross_half(op, r, tmp):
    return [I(f"v_mov_b32 {v(tmp)}, {v(r)}"), I(f"v_permlane32_swap_b32 {v(r)}, {v(tmp)}"), I(f"{op} {v(r)}, {v(r)}, {v(tmp)}")]

def flag_store(ftype, vtmp):
    return [I(f"s_add_u32 {s(sT1)}, {s(sMyFlag)}, {ftype * 65536}"), I(f"v_mov_b32 {v(vtmp)}, {s(sNonce)}"),
            gstore(v(vtmp), vFL, sWs, s(sT1), op="dword")]
def poll_issue(vdst, vaddr):
    return gload(v(vdst), vaddr, sWs, "0", sc1=True, op="dword")
def poll_check(ld, vdst, vaddr, sleep=1):
    ls, lb, ll = newlab("slow"), newlab("back"), newlab("loop")
    slow.extend([Label(ls), I(f"s_mov_b32 {s(sSpin)}, {OPT['spin']}"), Label(ll)] + ([I(f"s_sleep {sleep}")] if sleep else []) + [
        gload(v(vdst), vaddr, sWs, "0", sc1=True, op="dword"), I("s_waitcnt vmcnt(0)"),
        I(f"v_cmp_ne_u32 {s(sMask, 2)}, {s(sNonce)}, {v(vdst)}"), I("s_nop 1"), I(f"s_cmp_eq_u64 {s(sMask, 2)}, 0"), I(f"s_cbranch_scc1 {lb}"),
        I(f"s_sub_u32 {s(sSpin)}, {s(sSpin)}, 1"), I(f"s_cmp_lg_u32 {s(sSpin)}, 0"), I(f"s_cbranch_scc1 {ll}"), I(f"s_branch {lb}")])
    return [Wait(ld.tok), I(f"v_cmp_ne_u32 {s(sMask, 2)}, {s(sNonce)}, {v(vdst)}"), I(f"s_cmp_lg_u64 {s(sMask, 2)}, 0"),
            I(f"s_cbranch_scc1 {ls}"), Label(lb)]

def prologue():
    c = [I(f"s_load_dwordx2 {s(sX, 2)}, s[0:1], 0"), I("s_cmp_ge_u32 s2, 256"), I("s_cbranch_scc1 L_end")]
    c += stamp_at(0)
    for r, off in ((sWq, 8), (sWs, 80), (sWi, 32), (sWsp, 40), (sWo, 16), (sB, 48), (sWout, 56), (sOut, 64)):
        c.append(I(f"s_load_dwordx2 {s(r, 2)}, s[0:1], {off}"))
    l = 17
    c += [I(f"v_lshrrev_b32 {v(16)}, 6, v0"), I(f"v_and_b32 {v(l)}, 63, v0"), I(f"v_readfirstlane_b32 {s(sW)}, {v(16)}"),
          I(f"s_lshr_b32 {s(sC)}, s2, 5"), I(f"s_add_u32 {s(sC)}, {s(sC)}, {OPT['crot']}"), I(f"s_and_b32 {s(sC)}, {s(sC)}, 7")]
    if OPT["cpf"]:
        c += [I(f"s_cmp_lt_u32 s2, {32 * OPT['cpf']}"), I("s_cbranch_scc1 L_cpf"), Label("L_nocpf")]
        slow.extend([Label("L_cpf"), I("s_getpc_b64 s[80:81]"), Label("L_pc"),
                     I(f"s_sub_u32 s80, s80, L_pc-{KNAME}"), I("s_subb_u32 s81, s81, 0"), I(f"s_mov_b32 s82, L_codeend-{KNAME}"), I("s_mov_b32 s83, 0x20000"),
                     I("s_bfe_u32 s84, s2, 0x20003"), I("s_lshl_b32 s84, s84, 14"), I("v_and_b32 v18, 31, v0"),
                     I("v_lshlrev_b32 v18, 7, v18"), I("v_lshl_add_u32 v18, v16, 12, v18"),
                     VM("buffer_load_dword v42, v18, s[80:83], s84 offen"), I("s_branch L_nocpf")])
    c += [I(f"s_bfe_u32 {s(sRB)}, s2, {1 | (2 << 16)}"), I(f"s_lshl_b32 {s(sRB)}, {s(sRB)}, 2"),
          I(f"s_bfe_u32 {s(sT0)}, s2, {3 | (2 << 16)}"), I(f"s_add_u32 {s(sRB)}, {s(sRB)}, {s(sT0)}"),
          I(f"s_lshl_b32 {s(sTB)}, {s(sRB)}, 2"), I(f"s_add_u32 {s(sTB)}, {s(sTB)}, {s(sW)}"),
          I(f"s_mov_b32 {s(sX + 2)}, 2097152"), I(f"s_mov_b32 {s(sX + 3)}, 0x20000")]
    c += [I(f"v_lshrrev_b32 {v(18)}, 4, {v(l)}"), I(f"v_and_b32 {v(19)}, 15, {v(l)}"), I(f"v_xor_b32 {v(19)}, {v(18)}, {v(19)}"),
          I(f"v_lshlrev_b32 {v(19)}, 4, {v(19)}"), I(f"v_lshl_add_u32 {v(20)}, {v(18)}, 10, {v(19)}")]
    for i in range(1, 4):
        c += [I(f"v_xor_b32 {v(20 + i)}, {64 * i}, {v(20)}"), I(f"v_add_u32 {v(20 + i)}, {3072 * i}, {v(20 + i)}")]
    if OPT["rot"]:
        c += [I(f"s_add_u32 {s(sT0)}, {s(sT0)}, {s(sC)}"), I(f"s_lshr_b32 {s(sT1)}, {s(sC)}, 2")]
    else:
        c += [I(f"s_mov_b32 {s(sT0)}, 0"), I(f"s_mov_b32 {s(sT1)}, 0")]
    c += [I(f"s_lshl_b32 {s(sXg)}, {s(sTB)}, 1"), I(f"s_add_u32 {s(sXg)}, {s(sXg)}, {s(sT1)}"), I(f"s_lshl_b32 {s(sXg)}, {s(sXg)}, 14"),
          I(f"s_lshl_b32 {s(sXl)}, {s(sW)}, 3"), I(f"s_add_u32 {s(sXl)}, {s(sXl)}, {s(sT1)}"), I(f"s_lshl_b32 {s(sXl)}, {s(sXl)}, 12"),
          I(f"s_and_b32 {s(sRotQ)}, {s(sT0)}, 3"), I(f"s_and_b32 {s(sP)}, s2, 1"), I("s_waitcnt lgkmcnt(0)")]
    if OPT["touch"]:
        nt = " nt" if OPT["nt_t"] else ""
        c += [I(f"s_cmp_eq_u32 {s(sC)}, 7"), I("s_cbranch_scc1 L_touch"), Label("L_notouch")]
        t = [Label("L_touch"), I(f"s_mov_b32 {s(sWsp + 2)}, 8388608"), I(f"s_mov_b32 {s(sWsp + 3)}, 0x20000"),
             I(f"v_lshlrev_b32 {v(24)}, 12, {v(l)}"), I(f"s_lshl_b32 {s(sT1)}, {s(sRB)}, 1"), I(f"s_and_b32 {s(sT2)}, {s(sW)}, 1"), I(f"s_add_u32 {s(sT1)}, {s(sT1)}, {s(sT2)}"),
             I(f"s_lshl_b32 {s(sT1)}, {s(sT1)}, 18"), I(f"s_lshl_b32 {s(sT2)}, {s(sP)}, 11"), I(f"s_add_u32 {s(sT1)}, {s(sT1)}, {s(sT2)}"),
             I(f"v_add_u32 {v(24)}, {s(sT1)}, {v(24)}"),
             I(f"s_and_b32 {s(sT1)}, {s(sRB)}, 3"), I(f"s_lshl_b32 {s(sT1)}, {s(sT1)}, 9"), I(f"s_lshr_b32 {s(sT2)}, {s(sW)}, 1"), I(f"s_lshl_b32 {s(sT2)}, {s(sT2)}, 7"),
             I(f"s_add_u32 {s(sT1)}, {s(sT1)}, {s(sT2)}")]
        for j in range(OPT["tn"]):
            t += [VM(f"buffer_load_dword {v(42)}, {v(24)}, {srd(sWsp)}, {s(sT1)} offen{nt}"),
                  I(f"s_add_u32 {s(sT1)}, {s(sT1)}, 256"), I(f"s_and_b32 {s(sT1)}, {s(sT1)}, 2047")]
        slow.extend(t + [I("s_branch L_notouch")])
    late = [I(f"s_load_dword {s(sNonce)}, {s(sWs, 2)}, {WS_EPOCH}"),
            I("v_cmp_ne_u32 vcc, 0, v0"), I(f"v_bfrev_b32 {v(18)}, 1"), I(f"v_lshlrev_b32 {v(vL16)}, 4, {v(l)}"), I(f"v_cndmask_b32 {v(vFL)}, 0, {v(18)}, vcc")]
    for g in range(1, 4):
        late += [I(f"s_add_u32 {s(sT1)}, {s(sT0)}, {g}"), I(f"s_and_b32 {s(sRotQ + g)}, {s(sT1)}, 3")]
    for r, n in ((sWq, 1572864), (sWi, 1835008), (sWsp, 8388608), (sWo, 524288), (sWout, 917504), (sB, 4096), (sOut, 2097152), (sWs, 0x10000000)):
        late += [I(f"s_mov_b32 {s(r + 2)}, {n}"), I(f"s_mov_b32 {s(r + 3)}, 0x20000")]
    late += [I(f"s_lshl_b32 {s(sCG)}, {s(sC)}, 1"), I(f"s_or_b32 {s(sCG)}, {s(sCG)}, {s(sP)}"),
             I(f"s_lshl_b32 {s(sHP)}, {s(sP)}, 3"), I(f"s_add_u32 {s(sHP)}, {s(sHP)}, {s(sC)}")]
    return c, late, l

sXg, sXl, sXo = 61, 62, 65
def x_dma(g):
    it = []
    for hh in range(2):
        if hh == 0:
            it.append([I(f"s_lshl_b32 {s(sT1)}, {s(sRotQ + g)}, 8"), I(f"s_add_u32 {s(sXo)}, {s(sXg)}, {s(sT1)}"), I(f"s_add_u32 m0, {s(sXl)}, {g * 8192}")])
        else:
            it.append([I(f"s_xor_b32 {s(sXo)}, {s(sXo)}, 16384"), I(f"s_xor_b32 m0, m0, 4096")])
        it += [dma(20 + i, sX, s(sXo), 1024 * i) for i in range(4)]
    return it

def w_addr(l):
    c = []
    for base, rs in ((sOI, 3584), (sOQ, 3072), (sOO, 1024)):
        for i in range(1, 4): c.append(I(f"s_mov_b32 {s(base + i)}, {i * (8 * rs - 1024)}"))
    c += [I(f"s_lshl_b32 {s(sRingW)}, {s(sW)}, 12"), I(f"s_add_u32 {s(sRingW)}, {s(sRingW)}, {L_RING}")]
    kr, u, cc = 32, 33, 34
    c += [I(f"v_bfe_u32 {v(kr)}, {v(l)}, 2, 3"), I(f"s_lshl_b32 {s(sT1)}, {s(sW)}, 5"), I(f"v_add_u32 {v(kr)}, {s(sT1)}, {v(kr)}"),
          I(f"v_lshrrev_b32 {v(u)}, 5, {v(l)}"), I(f"v_and_b32 {v(cc)}, 3, {v(l)}"), I(f"v_lshlrev_b32 {v(cc)}, 4, {v(cc)}"),
          I(f"v_mul_u32_u24 {v(35)}, 3072, {v(kr)}"), I(f"v_add_u32 {v(35)}, {v(35)}, {v(cc)}"),
          I(f"s_lshl_b32 {s(sT1)}, {s(sHP)}, 6"), I(f"v_add_u32 {v(vStD)}, {s(sT1)}, {v(35)}"),
          I(f"v_lshl_add_u32 {v(vStB)}, {v(u)}, 10, {v(vStD)}"), I(f"v_add_u32 {v(vStB)}, 1024, {v(vStB)}"),
          I(f"v_mul_u32_u24 {v(35)}, 3584, {v(kr)}"), I(f"v_add_u32 {v(35)}, {v(35)}, {v(cc)}"),
          I(f"v_lshl_add_u32 {v(35)}, {v(u)}, 6, {v(35)}"), I(f"s_lshl_b32 {s(sT1)}, {s(sCG)}, 7"),
          I(f"v_add_u32 {v(vStC)}, {s(sT1)}, {v(35)}"), I(f"v_add_u32 {v(vStA)}, 1792, {v(vStC)}")]
    return c
def w_addr2():
    c = []
    for g in range(4):
        c += [I(f"s_mul_i32 {s(sRotI + g)}, {s(sRotQ + g)}, {128 * 3584}"), I(f"s_mul_i32 {s(sRotQ + g)}, {s(sRotQ + g)}, {128 * 3072}")]
    c += [I(f"v_cmp_lt_u32 vcc, 511, {v(vL16)}"), I(f"v_mov_b32 {v(32)}, {s(sRotQ + 1)}"), I(f"v_mov_b32 {v(33)}, {s(sRotQ + 3)}"),
          I(f"v_cndmask_b32 {v(32)}, {v(32)}, {v(33)}, vcc"), I(f"v_add_u32 {v(vStD + 1)}, {v(32)}, {v(vStD)}"),
          I(f"v_mov_b32 {v(32)}, {s(sRotQ)}"), I(f"v_mov_b32 {v(33)}, {s(sRotQ + 2)}"),
          I(f"v_cndmask_b32 {v(32)}, {v(32)}, {v(33)}, vcc"), I(f"v_add_u32 {v(vStD)}, {v(32)}, {v(vStD)}")]
    return c

def w_dma(kinds, st):
    k = kinds[st]; sg = st - kinds.index(k)
    r, so = (sWi, sOI) if k in "AC" else (sWq, sOQ)
    it = [I(f"s_add_u32 m0, {s(sRingW)}, {((st + 2) % 4) * 16384}")]
    if k == "D": va = vStD + sg
    else:
        va = vWd
        it.append(I(f"v_add_u32 {v(vWd)}, {s((sRotQ if k == 'B' else sRotI) + sg)}, {v(dict(A=vStA, B=vStB, C=vStC)[k])}"))
    for i in range(4): it.append(dma(va, r, s(so + i) if i else "0", 1024 * i))
    return it

def sp_dma(w):
    if OPT["nosp"]: return []
    it = [I(f"s_add_u32 {s(sSpA)}, {s(sSpBase)}, {s(sSpRot)}"), I(f"s_add_u32 {s(sSpB)}, {s(sSpA)}, 63488"),
          I(f"s_add_u32 m0, {s(sStg)}, {(w % 3) * 4096}"), I(f"s_add_u32 {s(sSpRot)}, {s(sSpRot)}, 128"), I(f"s_and_b32 {s(sSpRot)}, {s(sSpRot)}, 2047")]
    it += [dma(vSpA, sWsp, s(sSpA), 0), dma(vSpB, sWsp, s(sSpA), 1024), dma(vSpA, sWsp, s(sSpB), 2048), dma(vSpB, sWsp, s(sSpB), 3072)]
    return it
def sp_read(w):
    if OPT["nosp"]: return []
    return [dsr(a(16 * w + 4 * j, 4), vSpR + j, (w % 3) * 4096) for j in range(4)]

KFULL = list("AAAABBBBDDCCCC"); KLIGHT = list("BBBBDD")

def clump(items, n):
    out = []; cur = []; k = 0
    for e in items:
        cur.append(e)
        if isinstance(e, Ins) and e.kind == "vmem":
            k += 1
            if k == n: out.append(cur); cur = []; k = 0
    return out + ([cur] if cur else [])

def spread(main, filler):
    if OPT["clump"] > 1 and any(x.kind == "vmem" and x.text.endswith("lds") for x in flat(filler)): filler = clump(filler, OPT["clump"])
    out = []; n = len(main); k = 0
    for i, e in enumerate(main):
        while k < len(filler) and k * n <= i * len(filler): out.append(filler[k]); k += 1
        out.append(e)
    return out + filler[k:]

def front():
    c, late, l = prologue()
    c += stamp_n("dma0")
    xg = [x_dma(g) for g in range(4)]
    c += xg[0]
    c += late + w_addr(l)
    t, h = 18, 19
    XR = 24
    c += [I(f"v_and_b32 {v(t)}, 31, {v(l)}"), I(f"v_lshrrev_b32 {v(h)}, 5, {v(l)}"), I(f"s_lshl_b32 {s(sT3)}, {s(sW)}, 15")]
    c += [I(f"v_and_b32 {v(36)}, 15, {v(l)}"), I(f"v_xor_b32 {v(36)}, {v(36)}, {v(h)}"), I(f"v_lshlrev_b32 {v(36)}, 4, {v(36)}"),
          I(f"v_lshl_add_u32 {v(36)}, {v(t)}, 8, {v(36)}"), I(f"v_add_u32 {v(XR)}, {s(sT3)}, {v(36)}")]
    for j in range(1, 8): c.append(I(f"v_xor_b32 {v(XR + j)}, {32 * j}, {v(XR)}"))
    c += [I(f"v_bfe_u32 {v(36)}, {v(l)}, 2, 2"), I(f"v_lshlrev_b32 {v(36)}, 6, {v(36)}"), I(f"v_lshl_add_u32 {v(36)}, {v(h)}, 10, {v(36)}"),
          I(f"v_bfe_u32 {v(37)}, {v(l)}, 4, 1"), I(f"v_lshl_add_u32 {v(36)}, {v(37)}, 5, {v(36)}"),
          I(f"v_and_b32 {v(37)}, 3, {v(l)}"), I(f"v_lshl_add_u32 {v(36)}, {v(37)}, 3, {v(36)}"), I(f"v_add_u32 {v(vTR)}, {L_RING}, {v(36)}")]
    c += [I(f"s_mul_i32 {s(sStg)}, {s(sW)}, 12288"), I(f"s_add_u32 {s(sStg)}, {s(sStg)}, {L_STG}"),
          I(f"s_lshl_b32 {s(sSpBase)}, {s(sTB)}, 17"), I(f"s_lshl_b32 {s(sT1)}, {s(sP)}, 11"), I(f"s_add_u32 {s(sSpBase)}, {s(sSpBase)}, {s(sT1)}")]
    if OPT["rot"]:
        c += [I(f"s_and_b32 {s(sT1)}, {s(sRB)}, 3"), I(f"s_lshl_b32 {s(sSpRot)}, {s(sT1)}, 9")]
    else: c += [I(f"s_mov_b32 {s(sSpRot)}, 0")]
    c += [I(f"v_lshrrev_b32 {v(36)}, 4, {v(l)}"), I(f"v_and_b32 {v(37)}, 7, {v(l)}"), I(f"v_lshrrev_b32 {v(38)}, 3, {v(l)}"),
          I(f"v_xor_b32 {v(36)}, {v(36)}, {v(37)}"), I(f"v_lshlrev_b32 {v(36)}, 4, {v(36)}"), I(f"v_lshl_add_u32 {v(vSpA)}, {v(38)}, 12, {v(36)}"),
          I(f"v_xor_b32 {v(vSpB)}, 64, {v(vSpA)}"), I(f"v_add_u32 {v(vSpB)}, 31744, {v(vSpB)}"),
          I(f"v_bfe_u32 {v(36)}, {v(l)}, 1, 3"), I(f"v_xor_b32 {v(36)}, {v(36)}, {v(h)}"), I(f"v_lshlrev_b32 {v(36)}, 4, {v(36)}"),
          I(f"v_lshl_add_u32 {v(36)}, {v(t)}, 7, {v(36)}"), I(f"v_add_u32 {v(vSpR)}, {s(sStg)}, {v(36)}")]
    for j in range(1, 4): c.append(I(f"v_xor_b32 {v(vSpR + j)}, {32 * j}, {v(vSpR)}"))
    c += [I(f"s_mov_b32 {s(sC10)}, 0x3f80"), I(f"s_mov_b32 {s(sC01)}, 0x3f800000"), I(f"s_mov_b32 {s(sOnes)}, 0x3f803f80"),
          I(f"s_lshl_b32 {s(sT1)}, {s(sRB)}, 4"), I(f"s_add_u32 {s(sT1)}, {s(sT1)}, {s(sCG)}"), I(f"s_lshl_b32 {s(sT1)}, {s(sT1)}, 8"),
          I(f"s_add_u32 {s(sMyFlag)}, {s(sT1)}, {WS_FLAGS}"),
          I("s_waitcnt lgkmcnt(0)"), I(f"s_add_u32 {s(sNonce)}, {s(sNonce)}, 1")]
    for i in range(4): c.append(I(f"v_mov_b32 {v(DA + i)}, 0"))
    c += xg[1]
    rd = [[dsr(v(X + 32 * g + 4 * j, 4), XR + j, g * 8192) for j in range(8)] for g in range(4)]
    def dots(g):
        o = []
        for j in range(8):
            o.append(Wait(rd[g][j].tok))
            for q in range(4):
                reg = X + 32 * g + 4 * j + q
                o += [I(f"v_dot2c_f32_bf16 {v(DA + (q & 1))}, {s(sOnes)}, {v(reg)}"),
                      I(f"v_dot2c_f32_bf16 {v(DA + 2 + (q & 1))}, {v(reg)}, {v(reg)}")]
        return o
    for g in range(2):
        c += [Wait(*toks(xg[g]))] + rd[g] + stamp_n(f"x{g}")
        c += spread(dots(g), xg[g + 2])
    def rest(kinds):
        o = []
        wd = {st: w_dma(kinds, st) for st in range(4)}
        for g in (2, 3):
            rd[g] = [dsr(v(X + 32 * g + 4 * j, 4), XR + j, g * 8192) for j in range(8)]
            o += [Wait(*toks(xg[g]))] + rd[g] + stamp_n(f"x{g}")
            o += spread(dots(g), w_addr2() + wd[0] if g == 2 else wd[1])
        o += [BAR()] + stamp_n("xbar") + stamp_at(2)
        hd = []
        if OPT["sph"] and kinds[0] == "A":
            for w in range(3): SPH[w] = sp_dma(w); hd += SPH[w]
        return o + ln_finish(wd[2] + wd[3] + hd), wd
    return c, rest
DA = 36
SPH = {}

def ln_finish(extra):
    c = []
    c += [I(f"v_add_f32 {v(DA + 0)}, {v(DA + 0)}, {v(DA + 1)}"), I(f"v_add_f32 {v(DA + 2)}, {v(DA + 2)}, {v(DA + 3)}")]
    c += cross_half("v_add_f32", DA, DA + 1) + cross_half("v_add_f32", DA + 2, DA + 3)
    c += [I(f"v_mul_f32 {v(DA + 0)}, {hx(fbits(1 / 512))}, {v(DA + 0)}"), I(f"v_mul_f32 {v(DA + 2)}, {hx(fbits(1 / 512))}, {v(DA + 2)}"),
          I(f"v_fma_f32 {v(DA + 2)}, -{v(DA + 0)}, {v(DA + 0)}, {v(DA + 2)}"), I(f"v_max_f32 {v(DA + 2)}, 0, {v(DA + 2)}")]
    c += rne_bf16(DA, DA) + rne_bf16(DA + 2, DA + 2)
    c += [I(f"v_add_f32 {v(DA + 2)}, {hx(fbits(1e-5))}, {v(DA + 2)}")] + rne_bf16(DA + 2, DA + 2)
    c += [I(f"v_sqrt_f32 {v(DA + 2)}, {v(DA + 2)}"), I(f"v_xor_b32 {v(DA + 0)}, 0x80000000, {v(DA + 0)}")] + rne_bf16(vD, DA + 2)
    c += [I(f"v_rcp_f32 {v(vR)}, {v(vD)}")]
    k0 = -2.0 * math.log2(math.e) * math.sqrt(2.0 / math.pi)
    c += [I(f"v_mul_f32 {v(vGB)}, {hx(fbits(k0))}, {v(vR)}"), I(f"v_mul_f32 {v(DA + 1)}, {v(vR)}, {v(vR)}"),
          I(f"v_mul_f32 {v(DA + 1)}, {hx(fbits(0.044715))}, {v(DA + 1)}"), I(f"v_mul_f32 {v(vGA)}, {v(DA + 1)}, {v(vGB)}")]
    c += stamp_n("lnpre")
    pre = c; c = []
    for b in range(0, 128, 4):
        for q in range(4):
            c += [I(f"v_dot2_f32_bf16 {v(16 + 2 * q)}, {v(X + b + q)}, {s(sC10)}, {v(DA + 0)}"),
                  I(f"v_dot2_f32_bf16 {v(17 + 2 * q)}, {v(X + b + q)}, {s(sC01)}, {v(DA + 0)}")]
        for q in range(4):
            c.append(I(f"v_cvt_pk_bf16_f32 {v(X + b + q)}, {v(16 + 2 * q)}, {v(17 + 2 * q)}"))
    return pre + spread(c, extra)

def gelu(base, n, stats, T=T):
    it = []
    for g in range(0, n, 4):
        R = [base + g + q for q in range(4)]; t = [T + q for q in range(4)]
        it += [I(f"v_mul_f32 {v(t[q])}, {v(R[q])}, {v(R[q])}") for q in range(4)]
        it += [I(f"v_fma_f32 {v(t[q])}, {v(t[q])}, {v(vGA)}, {v(vGB)}") for q in range(4)]
        it += [I(f"v_mul_f32 {v(t[q])}, {v(t[q])}, {v(R[q])}") for q in range(4)]
        it += [I(f"v_exp_f32 {v(t[q])}, {v(t[q])}") for q in range(4)]
        it += [I(f"v_fma_f32 {v(t[q])}, {v(t[q])}, {v(vD)}, {v(vD)}") for q in range(4)]
        it += [I(f"v_rcp_f32 {v(t[q])}, {v(t[q])}") for q in range(4)]
        it += [I(f"v_mul_f32 {v(R[q])}, {v(R[q])}, {v(t[q])}") for q in range(4)]
        if stats:
            for q in range(4):
                if g == 0 and q == 0:
                    it += [I(f"v_mov_b32 {v(vSum)}, {v(R[q])}"), I(f"v_mul_f32 {v(vSq)}, {v(R[q])}, {v(R[q])}")]
                else:
                    it += [I(f"v_add_f32 {v(vSum)}, {v(vSum)}, {v(R[q])}"), I(f"v_fmac_f32 {v(vSq)}, {v(R[q])}, {v(R[q])}")]
    return it

def stats_publish(zero=False):
    g = T + 4
    it = []
    if not zero:
        it += cross_half("v_add_f32", vSum, T) + cross_half("v_add_f32", vSq, T + 1)
        it += [I(f"v_mov_b32 {v(g)}, {v(vSum)}"), I(f"v_mov_b32 {v(g + 2)}, {v(vSq)}")]
    else:
        it += [I(f"v_mov_b32 {v(g)}, 0"), I(f"v_mov_b32 {v(g + 2)}, 0")]
    it += [I(f"v_mov_b32 {v(g + 1)}, {s(sNonce)}"), I(f"v_mov_b32 {v(g + 3)}, {s(sNonce)}"),
           I(f"v_lshlrev_b32 {v(g + 4)}, 22, {v(vL16)}"), I(f"v_and_b32 {v(g + 4)}, 0x80000000, {v(g + 4)}"), I(f"v_or_b32 {v(g + 4)}, {v(g + 4)}, {v(vL16)}"),
           [I(f"s_lshl_b32 {s(sT1)}, {s(sTB)}, 4"), I(f"s_add_u32 {s(sT1)}, {s(sT1)}, {s(sCG)}"), I(f"s_lshl_b32 {s(sT1)}, {s(sT1)}, 9"),
            I(f"s_add_u32 {s(sT1)}, {s(sT1)}, {WS_STATS}"), gstore(v(g, 4), g + 4, sWs, s(sT1))]]
    return it

def rarr_write():
    return [I(f"v_and_b32 {v(T)}, 0x1f0, {v(vL16)}"), I(f"v_lshrrev_b32 {v(T)}, 2, {v(T)}"),
            [I(f"s_lshl_b32 {s(sT1)}, {s(sW)}, 7"), I(f"v_add_u32 {v(T)}, {s(sT1)}, {v(T)}")], dsw(T, v(vR), op="ds_write_b32")]

def kv_epilogue():
    it = []; st = []; kw = []
    RA = 24; va = 20; vg = 21
    it += [I(f"v_lshrrev_b32 {v(va)}, 9, {v(vL16)}"), I(f"v_lshlrev_b32 {v(va)}, 4, {v(va)}"),
           [I(f"s_lshl_b32 {s(sT1)}, {s(sW)}, 7"), I(f"v_add_u32 {v(va)}, {s(sT1)}, {v(va)}")]]
    rr = [dsr(v(RA + 4 * q, 4), va, 32 * q) for q in range(4)]
    it += rr
    it += [[I(f"s_lshl_b32 {s(sT1)}, {s(sW)}, 12"), I(f"s_add_u32 {s(sT1)}, {s(sT1)}, 32768"), I(f"v_add_u32 {v(vg)}, {s(sT1)}, {v(vL16)}")]]
    it += [I(f"v_mul_f32 {v(accB + e)}, {v(accB + e)}, {v(vR)}") for e in range(16)]
    it += [I(f"v_cvt_pk_bf16_f32 {v(accB + j)}, {v(accB + 2 * j)}, {v(accB + 2 * j + 1)}") for j in range(8)]
    it += [[I(f"s_lshl_b32 {s(sT2)}, {s(sCG)}, 6"), I(f"s_add_u32 {s(sT2)}, {s(sT2)}, {s(sTB)}"), I(f"s_lshl_b32 {s(sT2)}, {s(sT2)}, 12"),
            I(f"s_add_u32 {s(sKVo)}, {s(sT2)}, {WS_KV}")]]
    for i in range(2):
        g = gstore(v(accB + 4 * i, 4), vL16, sWs, s(sKVo), 1024 * i); st.append(g)
        kw.append([g]); kw.append([dsw(vg, v(accB + 4 * i, 4), 1024 * i)])
    it += [Wait(rr[3].tok)]
    V = accB + 16
    it += spread([I(f"v_mul_f32 {v(V + e)}, {v(V + e)}, {v(RA + e)}") for e in range(16)] +
                 [I(f"v_cvt_pk_bf16_f32 {v(V + j)}, {v(V + 2 * j)}, {v(V + 2 * j + 1)}") for j in range(8)], kw)
    for i in range(2):
        g = gstore(v(V + 4 * i, 4), vL16, sWs, s(sKVo), 2048 + 1024 * i); st.append(g)
        it += [g, dsw(vg, v(V + 4 * i, 4), 2048 + 1024 * i)]
    return it, st

def q_epilogue(_):
    t = 40
    it = [I(f"v_mul_f32 {v(t)}, {hx(fbits(0.25 * math.log2(math.e)))}, {v(vR)}")]
    it += [I(f"v_mul_f32 {v(accD + e)}, {v(accD + e)}, {v(t)}") for e in range(16)]
    it += [I(f"v_cvt_pk_bf16_f32 {v(accD + j)}, {v(accD + 2 * j)}, {v(accD + 2 * j + 1)}") for j in range(8)]
    return it

def kv_fetch():
    va, vf = vWd, vR
    pre = [[I(f"s_max_u32 {s(sT1)}, {s(sRB)}, 1"), I(f"s_sub_u32 {s(sT1)}, {s(sT1)}, 1"), I(f"s_max_u32 {s(sT2)}, {s(sRB)}, 2"), I(f"s_sub_u32 {s(sT2)}, {s(sT2)}, 2"),
            I(f"s_sub_u32 {s(sT1)}, {s(sT1)}, {s(sT2)}"), I(f"s_lshl_b32 {s(sT1)}, {s(sT1)}, 8"),
            I(f"s_lshl_b32 {s(sT2)}, {s(sT2)}, 4"), I(f"s_add_u32 {s(sT2)}, {s(sT2)}, {s(sCG)}"), I(f"s_lshl_b32 {s(sT2)}, {s(sT2)}, 8"),
            I(f"s_add_u32 {s(sT2)}, {s(sT2)}, {WS_FLAGS + F_KV * 65536}"),
            I(f"v_and_b32 {v(va)}, 16, {v(vL16)}"), I(f"v_mul_u32_u24 {v(va)}, {s(sT1)}, {v(va)}"), I(f"v_add_u32 {v(va)}, {s(sT2)}, {v(va)}")]]
    ld = poll_issue(vf, va)
    chk = poll_check(ld, vf, va)
    dm = []
    for b in range(2):
        grp = [[I(f"s_lshl_b32 {s(sT1)}, {s(sW)}, 1"), I(f"s_add_u32 {s(sT1)}, {s(sT1)}, {b}"), I(f"s_lshl_b32 m0, {s(sT1)}, 12"),
                I(f"s_lshl_b32 {s(sT2)}, {s(sRB)}, 2"), I(f"s_add_u32 {s(sT1)}, {s(sT1)}, {s(sT2)}"), I(f"s_max_u32 {s(sT1)}, {s(sT1)}, 8"),
                I(f"s_sub_u32 {s(sT1)}, {s(sT1)}, 8"), I(f"s_lshl_b32 {s(sT2)}, {s(sCG)}, 6"), I(f"s_add_u32 {s(sT1)}, {s(sT1)}, {s(sT2)}"),
                I(f"s_lshl_b32 {s(sT1)}, {s(sT1)}, 12"), I(f"s_add_u32 {s(sKVs)}, {s(sT1)}, {WS_KV}")]]
        grp += [dma(vL16, sWs, s(sKVs), 1024 * i, sc1=True) for i in range(4)]
        dm += grp
    return pre + [ld], chk, dm

def stats_recv():
    va = vSum
    pre = [I(f"v_and_b32 {v(va)}, 0x1f0, {v(vL16)}"), I(f"v_and_b32 {v(vSq)}, 0x200, {v(vL16)}"), I(f"v_lshl_add_u32 {v(va)}, {v(vSq)}, 3, {v(va)}"),
           [I(f"s_lshl_b32 {s(sT1)}, {s(sTB)}, 13"), I(f"s_add_u32 {s(sT1)}, {s(sT1)}, {WS_STATS}"), I(f"v_add_u32 {v(va)}, {s(sT1)}, {v(va)}")]]
    def loads(): return [gload(v(T + 4 * k, 4), va, sWs, "0", 512 * k, sc1=True) for k in range(8)]
    def chain():
        o = [I(f"v_xor_b32 {v(vSq)}, {s(sNonce)}, {v(T + 1)}")]
        for k in range(1, 16): o.append(I(f"v_bitop3_b32 {v(vSq)}, {v(vSq)}, {v(T + 2 * k + 1)}, {s(sNonce)} bitop3:0xf6"))
        return o
    ld = loads()
    ls, lb, ll = newlab("slow"), newlab("back"), newlab("loop")
    slow.extend([Label(ls), I(f"s_mov_b32 {s(sSpin)}, {OPT['spin']}"), Label(ll), I("s_sleep 1")] + loads() + [I("s_waitcnt vmcnt(0)")] + chain() + [
        I(f"v_cmp_ne_u32 {s(sMask, 2)}, 0, {v(vSq)}"), I("s_nop 1"), I(f"s_cmp_eq_u64 {s(sMask, 2)}, 0"), I(f"s_cbranch_scc1 {lb}"),
        I(f"s_sub_u32 {s(sSpin)}, {s(sSpin)}, 1"), I(f"s_cmp_lg_u32 {s(sSpin)}, 0"), I(f"s_cbranch_scc1 {ll}"), I(f"s_branch {lb}")])
    post = [Wait(ld[7].tok)] + stamp_n('sld') + chain() + [[I(f"v_cmp_ne_u32 {s(sMask, 2)}, 0, {v(vSq)}"), I(f"s_cmp_lg_u64 {s(sMask, 2)}, 0"), I(f"s_cbranch_scc1 {ls}"), Label(lb)]]
    post += stamp_n('schk')
    for step in (4, 8, 16):
        for k in range(0, 32, 2 * step):
            post += [I(f"v_add_f32 {v(T + k)}, {v(T + k)}, {v(T + k + step)}"), I(f"v_add_f32 {v(T + k + 2)}, {v(T + k + 2)}, {v(T + k + step + 2)}")]
    S, Q = T, T + 2
    post += cross_half("v_add_f32", S, T + 1) + cross_half("v_add_f32", Q, T + 3)
    post += [I(f"v_mul_f32 {v(S)}, {hx(fbits(1 / 896))}, {v(S)}"), I(f"v_mul_f32 {v(Q)}, {hx(fbits(1 / 896))}, {v(Q)}"),
             I(f"v_fma_f32 {v(Q)}, -{v(S)}, {v(S)}, {v(Q)}"), I(f"v_max_f32 {v(Q)}, 0, {v(Q)}")]
    post += rne_bf16(S, S) + rne_bf16(Q, Q) + [I(f"v_add_f32 {v(Q)}, {hx(fbits(1e-5))}, {v(Q)}")] + rne_bf16(Q, Q)
    post += [I(f"v_sqrt_f32 {v(Q)}, {v(Q)}")] + rne_bf16(Q, Q) + [I(f"v_rcp_f32 {v(vSum)}, {v(Q)}"), I(f"v_mul_f32 {v(vSq)}, {v(S)}, {v(vSum)}"),
                                                                   I(f"v_xor_b32 {v(vSq)}, 0x80000000, {v(vSq)}")]
    return pre + ld, post

def z2_addr():
    t0, t1, t2, t3 = ZA + 2, ZA + 3, ZA + 6, ZA + 7
    it = [I(f"v_lshrrev_b32 {v(t0)}, 3, {v(vL16)}"), I(f"v_and_b32 {v(t0)}, 64, {v(t0)}"), I(f"v_add_u32 {v(t0)}, {v(t0)}, {v(vL16)}"),
          I(f"v_and_b32 {v(t1)}, 0x200, {v(vL16)}"), I(f"v_or_b32 {v(t1)}, {s(sRingW)}, {v(t1)}"),
          I(f"v_and_b32 {v(ZA)}, 0x1f0, {v(t0)}"), I(f"v_or_b32 {v(ZA)}, {v(ZA)}, {v(t1)}"),
          I(f"v_add_u32 {v(t0)}, 128, {v(t0)}"), I(f"v_and_b32 {v(ZA + 1)}, 0x1f0, {v(t0)}"), I(f"v_or_b32 {v(ZA + 1)}, {v(ZA + 1)}, {v(t1)}")]
    it += [I(f"v_bfe_u32 {v(t0)}, {v(vL16)}, 8, 1"), I(f"v_bfe_u32 {v(t1)}, {v(vL16)}, 5, 1"),
           I(f"v_lshlrev_b32 {v(t2)}, 10, {v(t0)}"), I(f"v_lshl_add_u32 {v(t2)}, {v(t1)}, 9, {v(t2)}"),
           I(f"v_bfe_u32 {v(t3)}, {v(vL16)}, 4, 1"), I(f"v_lshl_add_u32 {v(t2)}, {v(t3)}, 3, {v(t2)}"),
           I(f"v_add_u32 {v(t2)}, {s(sRingW)}, {v(t2)}"),
           I(f"v_lshlrev_b32 {v(t3)}, 3, {v(t0)}"), I(f"v_lshl_add_u32 {v(t3)}, {v(t1)}, 2, {v(t3)}"),
           I(f"v_lshrrev_b32 {v(t1)}, 9, {v(vL16)}"), I(f"v_lshl_add_u32 {v(t3)}, {v(t1)}, 3, {v(t3)}"),
           I(f"v_bfe_u32 {v(t1)}, {v(vL16)}, 6, 2"), I(f"v_add_u32 {v(t3)}, {v(t3)}, {v(t1)}")]
    for u in range(2):
        for e in range(2):
            d = ZA + 2 + 2 * u + e
            it += [I(f"v_add_u32 {v(d)}, {16 * u + 4 * e}, {v(t3)}"), I(f"v_and_b32 {v(d)}, 31, {v(d)}"), I(f"v_lshl_add_u32 {v(d)}, {v(d)}, 4, {v(t2)}")]
    it += [[I(f"s_lshl_b32 {s(sT2)}, {s(sCG)}, 7"), I(f"s_add_u32 {s(sT2)}, {s(sT2)}, {s(sTB)}"), I(f"s_lshl_b32 {s(sT2)}, {s(sT2)}, 11"),
            I(f"s_add_u32 {s(sZo)}, {s(sT2)}, {WS_Z}")], I(f"v_add_u32 {v(ZA + 6)}, 131072, {v(vL16)}")]
    return it
ZA = 120
vTmpF = 13 if False else 2

def z2_publish():
    it = []; st = []; wr = {}
    norm = {}
    for ft in range(2):
        b = accA + 16 * ft
        o = [I(f"v_fma_f32 {v(b + e)}, {v(b + e)}, {v(vSum)}, {v(vSq)}") for e in range(16)]
        o += [I(f"v_cvt_pk_bf16_f32 {v(b + j)}, {v(b + 2 * j)}, {v(b + 2 * j + 1)}") for j in range(8)]
        o += [I(f"v_permlane32_swap_b32 {v(b + x)}, {v(b + x + 2)}") for x in (0, 1, 4, 5)]
        norm[ft] = o
        wr[ft] = [dsw(ZA + i, v(b + 4 * i, 4), ft * 2048 + i * 1024) for i in range(2)]
    def trd(ft):
        return [dstr(v(T + 8 * ft + 4 * u + 2 * e, 2), ZA + 2 + 2 * u + e, ft * 2048) for u in range(2) for e in range(2)]
    def sto(ft):
        o = [gstore(v(T + 8 * ft + 4 * u, 4), ZA + 6 if ft else vL16, sWs, s(sZo), u * 1024) for u in range(2)]
        st.extend(o); return o
    r0, r1 = trd(0), trd(1); s0_, s1_ = sto(0), sto(1)
    n1 = norm[1]
    it += norm[0] + [wr[0][0]] + n1[:6] + [wr[0][1]] + n1[6:14] + [Wait(*toks(wr[0]))] + r0 + n1[14:22] + [Wait(*toks(r0)), s0_[0]] + n1[22:]
    it += [wr[1][0], s0_[1], wr[1][1]]
    tail = [[Wait(*toks(wr[1]))] + r1, [Wait(*toks(r1)), s1_[0]], [s1_[1]]]
    return it, tail, st

def touch_out(force=False):
    if not OPT["touch2"] and not force: return []
    c = [I(f"v_lshlrev_b32 {v(T)}, 3, {v(vL16)}"), I(f"s_and_b32 {s(sT1)}, {s(sRB)}, 3"), I(f"s_lshl_b32 {s(sT1)}, {s(sT1)}, 2"), I(f"s_add_u32 {s(sT1)}, {s(sT1)}, {s(sW)}"),
         I(f"s_mul_i32 {s(sT2)}, {s(sT1)}, 57344"), I(f"s_lshl_b32 {s(sT1)}, {s(sT1)}, 15")]
    for j in range(7):
        c += [VM(f"buffer_load_dword {v(T + 1)}, {v(T)}, {srd(sWout)}, {s(sT2)} offen"), I(f"s_add_u32 {s(sT2)}, {s(sT2)}, 8192")]
    if OPT["touch2"] > 1:
        for j in range(4):
            c += [VM(f"buffer_load_dword {v(T + 1)}, {v(T)}, {srd(sWo)}, {s(sT1)} offen"), I(f"s_add_u32 {s(sT1)}, {s(sT1)}, 8192")]
    return c

def p1_main(kinds, wd, full):
    nst = len(kinds); nstep = 8 * nst
    rd = {}
    def reads(n):
        st, ks = divmod(n, 8); f = AF + 8 * (n % 4)
        rd[n] = [dstr(a(f + 4 * u + 2 * e, 2), vTR, ((st + 2) % 4) * 16384 + ks * 2048 + u * 512 + e * 256) for u in range(2) for e in range(2)]
        return rd[n]
    pre_bar = {i: [] for i in range(nst + 1)}; post_bar = {i: [] for i in range(nst + 1)}
    def mm(n):
        st, ks = divmod(n, 8); k = kinds[st]; f = AF + 8 * (n % 4)
        st0 = kinds.index(k); ksg = (st - st0) * 8 + ks; first = ksg == 0
        W0, W1 = a(f, 4), a(f + 4, 4); x0 = v(X + 4 * ksg, 4)
        if k == "B": return mfma(accB, W0, x0, "0" if first else v(accB, 16)), mfma(accB + 16, x0, W1, "0" if first else v(accB + 16, 16))
        if k == "D": return mfma(accD, W0, x0, "0" if first else v(accD, 16)), mfma(accD, W1, v(X + 4 * (ksg + 16), 4), v(accD, 16))
        d = accA if k == "A" else accB
        return mfma(d, W0, x0, "0" if first else v(d, 16)), mfma(d + 16, W1, x0, "0" if first else v(d + 16, 16))
    spd = {}; spr = {}
    sp_first = OPT["sp0"]
    rd_st = dict(enumerate({0: [8, 9, 10, 11, 12, 13], 1: [9, 10, 11, 12, 13], 2: [7, 8, 9, 10, 11, 12, 13], 3: [11, 12, 13], 4: [6, 7, 8, 9, 10, 11, 12, 13],
                            5: [5, 6, 7, 8, 9, 10, 11, 12, 13], 6: [4, 5, 6, 7, 8, 9, 10, 11, 12, 13], 7: [1, 5, 6, 7, 8, 9, 10, 11, 12, 13],
                            8: [1, 2, 3, 4, 5, 6, 7, 8, 9, 10, 11, 12, 13], 9: [3, 6, 7, 8, 9, 10, 11, 11, 12, 12, 13, 13], 10: [7, 8, 9, 10, 11, 11, 12, 12, 13, 13]}[OPT["spm"]]))
    if full: OPT["sp1"] = len(rd_st)
    kvi, kvst = kv_epilogue()
    kpre, kchk, kdm = kv_fetch()
    bars = {1: [1, 2, 3, 4, 5, 6, 7, 8, 10, 12], 2: [1, 2, 3, 4, 6, 8, 10, 12], 3: [2, 4, 6, 8, 10, 12], 4: [1, 2, 4, 6, 8, 10, 12]}[OPT["skipbar"]] if full and OPT["skipbar"] else list(range(1, nst))
    fill = {i: [] for i in range(nst + 1)}
    issued = 3
    for st in range(1, nst):
        lastbar = max([0] + [b for b in bars if b <= st])
        while issued + 1 < nst and issued + 1 <= lastbar + 3:
            issued += 1; wd[issued] = w_dma(kinds, issued); fill[st] += wd[issued]
        if full:
            if OPT["sph"]: spd.update({w: SPH[w] for w in SPH if w not in spd})
            elif st in (sp_first, sp_first + 1, sp_first + 2):
                w = st - sp_first; spd[w] = sp_dma(w); fill[st] += spd[w]
            for w in [w for w in rd_st if rd_st[w] == st]:
                spr[w] = sp_read(w)
                if w and rd_st[w - 1] == st: fill[st] += [Wait(*toks(spd[w]))] + spr[w]
                else: fill[st] = [Wait(*toks(spd[w]))] + spr[w] + fill[st]
                if w + 3 < 16:
                    spd[w + 3] = sp_dma(w + 3); fill[st] += [Wait(*toks(spr[w]))] + spd[w + 3]
    assert issued == nst - 1
    if full:
        pre_bar[12] += toks(kvst); post_bar[12] += [flag_store(F_KV, vTmpF)]
        fill[13] = fill[13] + kpre
    main = [Wait(*[t for x in range(bars[0]) for t in toks(wd[x])]), BAR()] + stamp_n("b0") + reads(0) + reads(1) + reads(2) + reads(3)
    for n in range(nstep):
        m0, m1 = mm(n)
        main += [Wait(*(toks(rd[n]) + (toks(rd[n + 1]) if n % 2 == 0 else []))), m0]
        nx = n + 4
        if nx < nstep and nx % 8 == 0 and nx // 8 in bars:
            st = nx // 8
            nb_ = min([b for b in bars if b > st] + [nst])
            need = [t for x in range(st, nb_) for t in toks(wd[x])]
            main += [m1, [Wait(*(toks(rd[n + 3]) + need + pre_bar[st])), BAR()] + stamp_n(f"b{st}") + post_bar[st]] + reads(nx)
        elif nx < nstep:
            r = reads(nx); main += r[:2] + [m1] + (stamp_n(f"b{nx // 8}") if nx % 8 == 0 else []) + r[2:]
        else:
            main += [m1]
    for st in range(1, nst):
        lo = 2 * (8 * st - 4) + 2; hi = min(2 * (8 * (st + 1) - 4) + 1, 2 * nstep)
        main = weave(main, fill[st], lo, hi)
    if full:
        main = weave(main, rarr_write(), 4, 12)
        g2 = gelu(accA, 32, True); per = len(g2) // 8; cut = per * OPT["gs"]
        main = weave(main, g2[:cut], 64 + 3, 131)
        main = weave(main, kvi, 131, OPT["k1"])
        main = weave(main, g2[cut:] + stats_publish(), OPT["k1"], OPT["g1"])
        spre, spost = stats_recv()
        zi, ztail, zst = z2_publish()
        main = weave(main, q_epilogue(20) + z2_addr(), OPT["g1"], 216)
        main = weave(main, spre, 216, 224)
        ng = OPT["gp"]
        g = gelu(accB, 4 * ng, False, 128)
        r = att_masks()
        tail = stamp_at(4) + g + [kchk] + stamp_n("kchk") + spread(r[:40], kdm) + spost + zi
        tail += r[40:56] + ztail[0] + r[56:] + ztail[1] + ztail[2]
    else:
        main = weave(main, rarr_write() + stats_publish(zero=True), 4, 24)
        main = weave(main, kvi, 64 + 4, 96)
        zst = []
        tail = q_epilogue(20) + [Wait(*toks(kvst)), BAR(), flag_store(F_KV, 127)] + touch_out() + kpre + [kchk] + kdm + att_masks() + stamp_at(4)
    return spd, main + tail, kdm, zst

KF, S0, S1, Mc, Ma, P0, P1, Vf = 128, 144, 160, 176, 192, 208, 216, 224
OO = [240, 16]
Cz = 32
vKa, vTmp, vM, vPz, vPzA = 120, 121, 122, 123, 124
RO = [48, 52]
Q = accD
sBad = 86; sRet = 84

def att_masks():
    t0, t1, t2 = 132, 133, 134
    c = [I(f"v_bfe_u32 {v(t0)}, {v(vL16)}, 4, 5"), I(f"v_lshrrev_b32 {v(t1)}, 9, {v(vL16)}"), I(f"v_lshlrev_b32 {v(t1)}, 2, {v(t1)}"),
         I(f"v_sub_u32 {v(t0)}, {v(t0)}, {v(t1)}"), I(f"v_mov_b32 {v(t2)}, 0xff800000")]
    for r in range(16):
        k0 = (r & 3) + 8 * (r >> 2)
        c += [[I(f"v_cmp_gt_i32 vcc, {k0}, {v(t0)}"), I(f"v_mov_b32 {v(Vf + r)}, {s(sOnes)}"), I("s_nop 0"),
               I(f"v_cndmask_b32 {v(Mc + r)}, 0, {v(t2)}, vcc")] if False else
              [I(f"v_cmp_gt_i32 vcc, {k0}, {v(t0)}"), I(f"v_mov_b32 {v(Vf + r)}, {s(sOnes)}")] +
              ([I(f"v_xor_b32 {v(Ma + r - 1)}, {v(Mc + r - 1)}, {v(t2)}")] if r else []) + [I(f"v_cndmask_b32 {v(Mc + r)}, 0, {v(t2)}, vcc")]]
    c += [I(f"v_xor_b32 {v(Ma + 15)}, {v(Mc + 15)}, {v(t2)}")]
    c += [I(f"s_mov_b32 {s(sVm)}, 0xffff"), I(f"s_mov_b32 {s(sVm + 1)}, 0xffff"), I(f"s_min_u32 {s(sJmin)}, {s(sTB)}, 8"), I(f"s_sub_u32 {s(sJmin)}, 8, {s(sJmin)}")]
    out = []
    for e in c: out += e if isinstance(e, list) else [e]
    res = []; k = 0
    while k < len(out):
        if out[k].op == "v_cmp_gt_i32":
            e = k
            while out[e].op != "v_cndmask_b32": e += 1
            res.append(out[k:e + 1]); res += [None] * (e - k); k = e + 1
        else: res.append(out[k]); k += 1
    return res

def att_setup(kdm, zst):
    c = [I(f"s_lshl_b32 {s(sT1)}, {s(sW)}, 12"), I(f"v_add_u32 {v(vKa)}, {s(sT1)}, {v(vL16)}")]
    c += [Wait(*toks(kdm)), I("s_waitcnt lgkmcnt(0)"), BAR()] + stamp_at(6)
    return c

def maxops(S, first):
    o = []
    if first:
        o.append(I(f"v_max3_f32 {v(vM)}, {v(S)}, {v(S + 1)}, {v(S + 2)}"))
        for e in range(3, 15, 2): o.append(I(f"v_max3_f32 {v(vM)}, {v(vM)}, {v(S + e)}, {v(S + e + 1)}"))
        o.append(I(f"v_max_f32 {v(vM)}, {v(vM)}, {v(S + 15)}"))
    else:
        for e in range(0, 16, 2): o.append(I(f"v_max3_f32 {v(vM)}, {v(vM)}, {v(S + e)}, {v(S + e + 1)}"))
    return o
def att_scale(hd, check):
    O = OO[hd]; o = []
    if check:
        o += [I(f"v_max3_f32 {v(vM)}, |{v(O)}|, |{v(O + 1)}|, |{v(O + 2)}|"), I(f"v_max3_f32 {v(vM)}, {v(vM)}, |{v(O + 3)}|, |{v(O + 4)}|"),
              I(f"v_max3_f32 {v(vM)}, {v(vM)}, |{v(O + 5)}|, |{v(O + 6)}|"), I(f"v_max3_f32 {v(vM)}, {v(vM)}, |{v(O + 7)}|, |{v(O + 7)}|"),
              [I(f"v_cmp_nge_f32 vcc, {hx(fbits(2.0 ** 60))}, {v(O + 8)}"),
               I(f"s_mov_b64 {s(sBad, 2)}, vcc") if hd == 0 else I(f"s_or_b64 {s(sBad, 2)}, {s(sBad, 2)}, vcc")],
              [I(f"v_cmp_nle_f32 vcc, {hx(fbits(2.0 ** -60))}, {v(O + 8)}"), I(f"s_or_b64 {s(sBad, 2)}, {s(sBad, 2)}, vcc")],
              [I(f"v_cmp_nge_f32 vcc, {hx(fbits(2.0 ** 126))}, {v(vM)}"), I(f"s_or_b64 {s(sBad, 2)}, {s(sBad, 2)}, vcc")]]
    o += [I(f"v_rcp_f32 {v(vTmp)}, {v(O + 8)}")]
    o += [I(f"v_mul_f32 {v(O + e)}, {v(O + e)}, {v(vTmp)}") for e in range(8)]
    o += [I(f"v_cvt_pk_bf16_f32 {v(RO[hd] + j)}, {v(O + 2 * j)}, {v(O + 2 * j + 1)}") for j in range(4)]
    return o
def v_reads(j, hd, f):
    o = j * 4096 + 2048 + hd * 256
    return [I(f"s_mov_b64 exec, {s(sVm, 2)}"), dsr(v(f, 4), vKa, o), dsr(v(f + 4, 4), vKa, o + 1024), I("s_mov_b64 exec, -1")]

def attention(edge, hooks, otok):
    nb = 8 if edge else 9
    blocks = [(hd, j) for hd in range(2) for j in range(8, 8 - nb, -1)]
    N = len(blocks)
    hk = {k: [] for k in range(N)}
    for k in range(18): hk[(k * N) // 18] += hooks.get(k, [])
    kr = {}; vr = {}
    def kread(k):
        hd, j = blocks[k]; kr[k] = dsr(v(KF + 4 * (k % 4), 4), vKa, j * 4096 + hd * 1024); return [kr[k]]
    def vread(k):
        hd, j = blocks[k]; vr[k] = v_reads(j, hd, Vf + 8 * (k & 1)); return [vr[k]]
    def ms(k):
        hd, j = blocks[k]; o = []
        if j == 8: C = v(Mc, 16)
        elif edge:
            C = v(Cz, 16)
            if j == 7: o += [I(f"v_mov_b32 {v(Cz + r)}, 0") for r in range(16)]
            lo, lb = newlab("cz"), newlab("czb")
            slow.extend([Label(lo), I("s_nop 7")] + [I(f"v_mov_b32 {v(Cz + r)}, 0xff800000") for r in range(16)] + [I("s_nop 1"), I(f"s_branch {lb}")])
            o += [I(f"s_cmp_eq_u32 {s(sJmin)}, {j + 1}"), I(f"s_cbranch_scc1 {lo}"), Label(lb)]
        else: C = v(Ma, 16) if j == 0 else "0"
        return o + [Wait(kr[k].tok), mfma([S0, S1][k & 1], v(KF + 4 * (k % 4), 4), v(Q + 4 * hd, 4), C)]
    def pv(k, u):
        hd, j = blocks[k]; f = Vf + 8 * (k & 1) + 4 * u; P = [P0, P1][k & 1] + 4 * u; O = OO[hd]
        return ([Wait(vr[k][2].tok)] if u == 0 else []) + [mfma(O, v(f, 4), v(P, 4), "0" if (j == 8 and u == 0) else v(O, 16))]
    top = hooks.get("top", [])
    c = kread(0) + kread(1) + kread(2) + vread(0)
    if edge: c += top + hooks.get("norm", [])
    c += ms(0) + ms(1)
    if not edge: c += top
    for k in range(N):
        S = [S0, S1][k & 1]; P = [P0, P1][k & 1]
        ex = [I(f"v_exp_f32 {v(S + e)}, {v(S + e)}") for e in range(16)]
        cv = [I(f"v_cvt_pk_bf16_f32 {v(P + e)}, {v(S + 2 * e)}, {v(S + 2 * e + 1)}") for e in range(8)]
        if k == 0: c += vread(1) + kread(3) + ex
        else:
            c += ex[:2]
            if k + 1 < N: c += ms(k + 1)
            hh = hk[k] if OPT["hpos"] else []
            cutp = len(hh) // 2 if k + 1 < N else 0
            c += hh[:cutp] + ex[2:7] + pv(k - 1, 0) + hh[cutp:] + ex[7:12] + pv(k - 1, 1)
            if k + 1 < N: c += vread(k + 1)
            if k + 3 < N: c += kread(k + 3)
            c += ex[12:]
        c += cv + (hk[k] if k == 0 or not OPT["hpos"] else [])
        if not edge and k == OPT["zn"]: c += hooks.get("norm", [])
        if k == nb + 1: c += att_scale(0, True)
        if k == nb - 1: c += stamp_n("a0p2")
    c += pv(N - 1, 0) + pv(N - 1, 1)
    c += [I(f"s_lshl_b32 {s(sT3)}, {s(sTB)}, 4"), I(f"s_add_u32 {s(sT3)}, {s(sT3)}, {s(sHP)}"), I(f"s_lshl_b32 {s(sT3)}, {s(sT3)}, 11"),
          I(f"s_add_u32 {s(sT3)}, {s(sT3)}, {WS_O}")]
    c += hooks.get("end", [])
    lb = newlab("ok")
    c += att_scale(1, True) + [I(f"s_cmp_eq_u64 {s(sBad, 2)}, 0"), I(f"s_cbranch_scc1 {lb}"), I(f"s_call_b64 {s(sRet, 2)}, L_attslow"), Label(lb)]
    c += [gstore(v(RO[hd], 4), vL16, sWs, s(sT3), 1024 * hd, tok=otok[hd]) for hd in range(2)]
    return c

def attention_slow():
    Cm, Cx = S1, 32
    c = [Label("L_attslow"), I("s_nop 7")]
    for hd in range(2):
        q = v(Q + 4 * hd, 4); O = OO[hd]
        l1, l2 = newlab("s1"), newlab("s2")
        for j in range(8, -1, -1):
            c += [dsr(v(KF, 4), vKa, j * 4096 + hd * 1024), I("s_waitcnt lgkmcnt(0)"),
                  mfma(S0, v(KF, 4), q, v(Mc, 16) if j == 8 else (v(Ma, 16) if j == 0 else "0"))] + maxops(S0, j == 8)
            if j > 0: c += [I(f"s_cmp_eq_u32 {s(sJmin)}, {j}"), I(f"s_cbranch_scc1 {l1}")]
        c += [Label(l1), I("s_nop 7")] + cross_half("v_max_f32", vM, vTmp)
        c += [I(f"v_sub_f32 {v(Cm + r)}, 0, {v(vM)}") for r in range(16)]
        for j in range(8, -1, -1):
            if j in (8, 0): c += [I(f"v_sub_f32 {v(Cx + r)}, {v((Mc if j == 8 else Ma) + r)}, {v(vM)}") for r in range(16)]
            c += [dsr(v(KF, 4), vKa, j * 4096 + hd * 1024)] + v_reads(j, hd, Vf) + [I("s_waitcnt lgkmcnt(0)"), mfma(S0, v(KF, 4), q, v(Cx if j in (8, 0) else Cm, 16))]
            c += [I(f"v_exp_f32 {v(S0 + e)}, {v(S0 + e)}") for e in range(16)]
            c += [I(f"v_cvt_pk_bf16_f32 {v(P0 + e)}, {v(S0 + 2 * e)}, {v(S0 + 2 * e + 1)}") for e in range(8)]
            c += [mfma(O, v(Vf, 4), v(P0, 4), "0" if j == 8 else v(O, 16)), mfma(O, v(Vf + 4, 4), v(P0 + 4, 4), v(O, 16)), I("s_nop 7")]
            if j > 0: c += [I(f"s_cmp_eq_u32 {s(sJmin)}, {j}"), I(f"s_cbranch_scc1 {l2}")]
        c += [Label(l2), I("s_nop 11")] + att_scale(hd, False)
    c += [I("s_nop 1"), I(f"s_setpc_b64 {s(sRet, 2)}")]
    return c

ZF, acc0, acc1, Cb, vZr, vBv = 128, 160, 192, 224, 240, 244
vTRp, vTRy, vWo, vWout, vRingV, vPoll, vPollA = 5, 6, 7, 8, 249, 250, 251
acc3 = 48; RES = 20; vOut = 28

def z_poll_addr(va):
    return [I(f"v_bfe_u32 {v(va)}, {v(vL16)}, 7, 1"), I(f"v_xor_b32 {v(va)}, {s(sCG)}, {v(va)}"), I(f"v_and_b32 {v(va + 1)}, 0x70, {v(vL16)}"),
            I(f"v_add_u32 {v(va)}, {v(va)}, {v(va + 1)}"), I(f"v_lshlrev_b32 {v(va)}, 8, {v(va)}"),
            [I(f"s_lshl_b32 {s(sT1)}, {s(sP)}, 15"), I(f"s_add_u32 {s(sT1)}, {s(sT1)}, {WS_FLAGS + F_Z * 65536}"), I(f"v_add_u32 {v(va)}, {s(sT1)}, {v(va)}")]]
def row_poll_addr(va, ftype, nmax):
    return [I(f"v_bfe_u32 {v(va)}, {v(vL16)}, 4, 4"), I(f"v_min_u32 {v(va)}, {nmax}, {v(va)}"), I(f"v_lshlrev_b32 {v(va)}, 8, {v(va)}"),
            [I(f"s_lshl_b32 {s(sT1)}, {s(sRB)}, 12"), I(f"s_add_u32 {s(sT1)}, {s(sT1)}, {WS_FLAGS + ftype * 65536}"), I(f"v_add_u32 {v(va)}, {s(sT1)}, {v(va)}")]]

def ring_setup_early():
    it = [I(f"s_lshl_b32 {s(sRingR)}, {s(sW)}, 12"), I(f"s_xor_b32 {s(sT1)}, {s(sCG)}, 1"), I(f"s_lshl_b32 {s(sT1)}, {s(sT1)}, 18"),
          I(f"s_lshl_b32 {s(sT2)}, {s(sP)}, 16"), I(f"s_add_u32 {s(sT1)}, {s(sT1)}, {s(sT2)}"), I(f"s_add_u32 {s(sT1)}, {s(sT1)}, {s(sRingR)}"),
          I(f"s_add_u32 {s(sZbase)}, {s(sT1)}, {WS_Z}"), I(f"s_xor_b32 {s(sZbase2)}, {s(sZbase)}, 262144"), I(f"v_add_u32 {v(vZ1)}, 131072, {v(vL16)}")]
    if OPT["rot"]:
        it += [I(f"s_and_b32 {s(sT1)}, {s(sRB)}, 3"), I(f"s_lshl_b32 {s(sZrot)}, {s(sT1)}, 14")]
    else: it += [I(f"s_mov_b32 {s(sZrot)}, 0")]
    return [it]

NQ = 27
if OPT["sched"] == 0:
    PREFILL = (0, 1, 2, 3)
    SCHED = {0: (4, 5, 16), 2: (6, 7, 17), 4: (8, 9, 18), 6: (10, 11, 19), 8: (12, 13), 10: (14, 15), 12: (20, 21), 14: (22, 23), 15: (24,), 16: (25,)}
else:
    PREFILL = (0, 4, 1, 2)
    SCHED = {0: (3, 5, 16), 2: (8, 6, 7), 4: (9, 10, 17), 6: (12, 11, 18), 8: (13, 19), 10: (14, 15), 12: (20, 21), 14: (22, 23), 15: (24,), 16: (25,)}
if OPT["sched"] == 2:
    SCHED = {0: (3, 5), 2: (8, 6, 7), 4: (9, 10, 16), 6: (12, 11, 17), 8: (13, 18, 19), 10: (14, 15), 12: (20, 21), 14: (22, 23), 15: (24,), 16: (25,)}
if OPT["sched"] == 3:
    PREFILL = (0, 1, 2, 3)
    SCHED = {0: (4, 5), 2: (6, 7, 8), 4: (9, 10, 16), 6: (11, 12, 17), 8: (13, 18, 19), 10: (14, 15), 12: (20, 21), 14: (22, 23), 15: (24,), 16: (25,)}
SLOT = {q: 6 + i for i, q in enumerate(PREFILL)}
_free = [0, 1, 2, 3, 4, 5]
WPRE = ()
if OPT["wpre"]:
    WPRE = (16, 17, 18)
    SLOT.update({16: 3, 17: 4, 18: 5}); _free = [0, 1, 2]
    SCHED = {0: (4, 5), 2: (6, 7, 19), 4: (8, 9), 6: (10, 11), 8: (12, 13), 10: (14, 15), 12: (20, 21), 14: (22, 23), 15: (24,), 16: (25,)}
WOF = OPT["wof"]
if WOF: SCHED.update({12: (23, 24), 14: (25, 26), 15: (20,), 16: (21,)})
for _q in sorted(SCHED):
    if _q: _free += [SLOT[_q - 2], SLOT[_q - 1]] if _q < 15 else [SLOT[_q - 1]]
    for _x in SCHED[_q]: SLOT[_x] = _free.pop(0)
SLOT[22 if WOF else 26] = SLOT[23]
def slot(q): return SLOT[q] * 16384
RED = sorted([slot(24), slot(25)])
assert RED[1] - RED[0] + 8192 < 65536
RT = {q: [Tok("vm", f"ring{q}_{i}") for i in range(4)] for q in range(NQ)}
def ring_dma(q):
    it = [I(f"s_add_u32 m0, {s(sRingR)}, {slot(q)}")]
    if q < 16:
        it += [I(f"s_add_u32 {s(sZoff)}, {s(sZrot)}, {(q & 3) * 16384}"), I(f"s_and_b32 {s(sZoff)}, {s(sZoff)}, 0xffff"),
               I(f"s_add_u32 {s(sZoff)}, {s(sZoff)}, {s(sZbase if q < 8 else sZbase2)}")]
        hz = OPT["hot"] & 1
        it += [dma(vZ1 if q & 4 and not hz else vL16, sWs, s(sZbase if hz else sZoff), 1024 * i, sc1=not (OPT["hot"] & 4), tok=RT[q][i]) for i in range(4)]
    else:
        va, r = (vWo, sWo) if q >= 23 else (vWout, sWout)
        if q >= 23:
            it.append([I(f"v_add_u32 {v(vTRy)}, {s(sR4)}, {v(va)}"), I(f"s_add_u32 {s(sR4)}, {s(sR4)}, 65536"), I(f"s_and_b32 {s(sR4)}, {s(sR4)}, 0x3ffff")])
        else:
            it.append([I(f"v_add_u32 {v(vTRy)}, {s(sR3)}, {v(va)}"), I(f"s_add_u32 {s(sR3)}, {s(sR3)}, 65536"), I(f"s_cmp_eq_u32 {s(sR3)}, {7 * 65536}"),
                       I(f"s_cselect_b32 {s(sR3)}, 0, {s(sR3)}")])
        it += [dma(va if OPT["hot"] & 2 else vTRy, r, s(sOO + i) if i else "0", 1024 * i, tok=RT[q][i]) for i in range(4)]
    return it

def p3_setup(T=None):
    t0, t1, t2 = (16, 17, 18) if T is None else (56, 57, 58)
    it = [[I(f"s_add_u32 {s(sN0)}, {s(sC)}, {OPT['nrot']}"), I(f"s_and_b32 {s(sN0)}, {s(sN0)}, 7"), I(f"s_lshl_b32 {s(sN0)}, {s(sN0)}, 7"), I(f"s_lshr_b32 {s(sKH)}, {s(sW)}, 1"),
           I(f"s_and_b32 {s(sT1)}, {s(sW)}, 1"), I(f"s_lshl_b32 {s(sT2)}, {s(sP)}, 1"), I(f"s_add_u32 {s(sT1)}, {s(sT1)}, {s(sT2)}"),
           I(f"s_lshl_b32 {s(sT2)}, {s(sRB)}, 2"), I(f"s_add_u32 {s(sTok3)}, {s(sT1)}, {s(sT2)}")],
          ([I(f"s_add_u32 {s(sT1)}, {s(sRB)}, {s(sC)}"), I(f"s_and_b32 {s(sT1)}, {s(sT1)}, 3"), I(f"s_lshl_b32 {s(sR4)}, {s(sT1)}, 16"), I(f"s_lshl_b32 {s(sR4o)}, {s(sT1)}, 12"),
            I(f"s_and_b32 {s(sT1)}, {s(sRB)}, 3"), I(f"s_lshl_b32 {s(sT1)}, {s(sT1)}, 1"), I(f"s_add_u32 {s(sT1)}, {s(sT1)}, {s(sC)}"),
            I(f"s_sub_u32 {s(sT2)}, {s(sT1)}, 7"), I(f"s_cmp_ge_u32 {s(sT1)}, 7"), I(f"s_cselect_b32 {s(sT1)}, {s(sT2)}, {s(sT1)}"),
            I(f"s_lshl_b32 {s(sR3)}, {s(sT1)}, 16"), I(f"s_lshl_b32 {s(sR3y)}, {s(sT1)}, 12")] if OPT["rot"] else
           [I(f"s_mov_b32 {s(r)}, 0") for r in (sR4, sR4o, sR3, sR3y)]),
          I(f"v_bfe_u32 {v(t0)}, {v(vL16)}, 6, 3"), I(f"v_lshlrev_b32 {v(t0)}, 10, {v(t0)}"), I(f"v_and_b32 {v(t1)}, 48, {v(vL16)}"),
          I(f"v_or_b32 {v(t0)}, {v(t0)}, {v(t1)}"), I(f"v_lshrrev_b32 {v(t1)}, 9, {v(vL16)}"), I(f"v_lshl_add_u32 {v(t0)}, {v(t1)}, 6, {v(t0)}"),
          [I(f"s_and_b32 {s(sT1)}, {s(sW)}, 1"), I(f"s_lshl_b32 {s(sT1)}, {s(sT1)}, 15"), I(f"s_add_u32 {s(sT1)}, {s(sT1)}, {s(sN0)}"),
           I(f"v_add_u32 {v(t0)}, {s(sT1)}, {v(t0)}")],
          [I(f"s_mul_i32 {s(sT1)}, {s(sKH)}, {448 * 1024}"), I(f"v_add_u32 {v(vWout)}, {s(sT1)}, {v(t0)}")],
          [I(f"s_lshl_b32 {s(sT1)}, {s(sKH)}, 18"), I(f"v_add_u32 {v(vWo)}, {s(sT1)}, {v(t0)}")],
          I(f"v_bfe_u32 {v(t0)}, {v(vL16)}, 6, 2"), I(f"v_lshl_add_u32 {v(t0)}, {v(t1)}, 2, {v(t0)}"), I(f"v_lshlrev_b32 {v(t0)}, 6, {v(t0)}"),
          I(f"v_bfe_u32 {v(t2)}, {v(vL16)}, 8, 1"), I(f"v_lshl_add_u32 {v(t0)}, {v(t2)}, 5, {v(t0)}"),
          I(f"v_bfe_u32 {v(t2)}, {v(vL16)}, 4, 2"), I(f"v_lshl_add_u32 {v(t0)}, {v(t2)}, 3, {v(t0)}"),
          [I(f"s_lshl_b32 {s(sT1)}, {s(sKH)}, 13"), I(f"v_add_u32 {v(vTRp)}, {s(sT1)}, {v(t0)}")]]
    return it

OT = [Tok("vm", f"o{i}") for i in range(16)]
def o_loads():
    it = [[I(f"s_lshl_b32 {s(sT2)}, {s(sTok3)}, 15"), I(f"s_lshl_b32 {s(sT1)}, {s(sKH)}, 14"), I(f"s_add_u32 {s(sT2)}, {s(sT2)}, {s(sT1)}"),
           I(f"s_add_u32 {s(84)}, {s(sT2)}, {WS_O}")]]
    for i in range(16):
        if i % 4 == 0: it.append([I(f"s_add_u32 {s(sT3)}, {s(84)}, {s(sR4o)}"), I(f"s_add_u32 {s(sR4o)}, {s(sR4o)}, 4096"), I(f"s_and_b32 {s(sR4o)}, {s(sR4o)}, 0x3fff")])
        it.append(gload(a(4 * i, 4), vL16, sWs, s(sT3), 1024 * (i % 4), sc1=True, tok=OT[i]))
    return it
RSD = [Tok("vm", "res0"), Tok("vm", "res1")]
def res_loads():
    return [I(f"v_lshrrev_b32 {v(vOut)}, 7, {v(vL16)}"), I(f"v_lshlrev_b32 {v(vOut)}, 10, {v(vOut)}"), I(f"v_and_b32 {v(vOut + 1)}, 0x70, {v(vL16)}"),
            I(f"v_or_b32 {v(vOut)}, {v(vOut)}, {v(vOut + 1)}"),
            [I(f"s_lshl_b32 {s(sT1)}, {s(sRB)}, 17"), I(f"s_lshl_b32 {s(sT2)}, {s(sP)}, 16"), I(f"s_add_u32 {s(sT1)}, {s(sT1)}, {s(sT2)}"),
             I(f"s_lshl_b32 {s(sT2)}, {s(sW)}, 13"), I(f"s_add_u32 {s(sT1)}, {s(sT1)}, {s(sT2)}"), I(f"s_add_u32 {s(sT1)}, {s(sT1)}, {s(sN0)}"),
             I(f"v_add_u32 {v(vOut)}, {s(sT1)}, {v(vOut)}")],
            I(f"v_add_u32 {v(vOut + 1)}, 32768, {v(vOut)}"),
            gload(v(RES, 4), vOut, sX, "0", tok=RSD[0]), gload(v(RES + 4, 4), vOut + 1, sX, "0", tok=RSD[1])]

def p2_setup():
    t0 = T
    it = [I(f"v_add_u32 {v(vZr)}, {slot(0) & ~0xffff}, {v(vL16)}")]
    bl = gload(v(vBv), t0, sB, s(sT1), op="ushort")
    it += [I(f"v_bfe_u32 {v(t0)}, {v(vL16)}, 4, 5"), I(f"v_lshlrev_b32 {v(t0)}, 1, {v(t0)}"), [I(f"s_lshl_b32 {s(sT1)}, {s(sTB)}, 6"), bl]]
    return it, bl

def win(q): return slot(q) & ~0xffff
def rewin(regs_, q, prev=None):
    d = win(q) - (win(q - 1) if prev is None else prev)
    return [I(f"v_add_u32 {v(r)}, {hx(d)}, {v(r)}") for r in regs_] if d else []

F_Y0 = F_PART
sYo = 86
sYc = 85; vWL = 249; vCA = 19
def xor3(d, a_, b_, c_): return I(f"v_bitop3_b32 {v(d)}, {a_}, {v(b_)}, {v(c_)} bitop3:0x96")
def y_epilogue(ft):
    b = acc1 + 16 * ft; it = []; ck = b + 4
    for i in range(2):
        it += [I(f"v_fma_f32 {v(b + e)}, {v(b + e)}, {v(accB + 16 * ft + e)}, {v(acc0 + 16 * ft + e)}") for e in range(8 * i, 8 * i + 8)]
        it += [I(f"v_cvt_pk_bf16_f32 {v(b + 8 * i + j)}, {v(b + 8 * i + 2 * j)}, {v(b + 8 * i + 2 * j + 1)}") for j in range(4)]
        it += [gstore(v(b + 8 * i, 4), vL16, sWs, s(sYo), 1024 * (2 * ft + i), tok=YT[2 * ft + i])]
        if OPT["yck"]: it += [xor3(ck, s(sNonce) if i == 0 else v(ck), b + 8 * i, b + 8 * i + 1), xor3(ck, v(ck), b + 8 * i + 2, b + 8 * i + 3)]
    if not OPT["yck"]: return it
    it += [gstore(v(ck), vCA, sWs, s(sYc), op="dword"),
           [I(f"s_sub_u32 {s(sT1)}, {s(sYc)}, {WS_YCK - WS_YTAG}"), I(f"v_mov_b32 {v(ck + 1)}, {s(sNonce)}"), gstore(v(ck + 1), vWL, sWs, s(sT1), op="dword")]]
    if ft == 0: it += [I(f"s_add_u32 {s(sYc)}, {s(sYc)}, {1024 * 256}")]
    return it

YT = [Tok("vm", f"yst{i}") for i in range(4)]
def y_tag(ft):
    return [[Wait(*YT[2 * ft:2 * ft + 2]), I(f"s_sub_u32 {s(sT1)}, {s(sYc)}, {WS_YCK - WS_YTAG - ft * 1024 * 256}"), I(f"v_mov_b32 {v(T + 2)}, {s(sNonce)}"),
             gstore(v(T + 2), vWL, sWs, s(sT1), op="dword")]]
def y_addr():
    return [[I(f"s_lshl_b32 {s(sT2)}, {s(sTB)}, 4"), I(f"s_add_u32 {s(sT2)}, {s(sT2)}, {s(sCG)}"), I(f"s_lshl_b32 {s(sT2)}, {s(sT2)}, 8"),
             I(f"s_add_u32 {s(sYc)}, {s(sT2)}, {WS_YCK}")],
            [I(f"v_cmp_ne_u32 vcc, 0, {v(vL16)}"), I(f"v_bfrev_b32 {v(vWL)}, 1"), I("s_nop 0"), I(f"v_cndmask_b32 {v(vWL)}, 0, {v(vWL)}, vcc")]]

def phase2(otok):
    rd = {}; LEAD = 8
    def reads(n):
        q = n // 16
        rd[n] = dsr(v(ZF + 4 * (n % 8), 4), vZr, slot(q) - win(q) + (n % 16) * 1024)
        return (rewin([vZr], q) if n % 16 == 0 and q else []) + [rd[n]]
    setup, bl = p2_setup()
    bars = sorted(SCHED)
    pre = {q: [] for q in bars}; post = {q: [] for q in bars}; fill = {q: [] for q in bars}
    pre[4] += otok; post[4] += [flag_store(F_O, 29)]
    PK = 64; PK0 = 64; CK = 30; CA = 19; sPc, sPd = 72, 87
    x3 = lambda d, a_, b_, c_: I(f"v_bitop3_b32 {v(d)}, {a_}, {v(b_)}, {v(c_)} bitop3:0x96")
    def cksum(d, ft): return [x3(d, s(sNonce) if k == 0 else v(d), PK + 8 * ft + 2 * k, PK + 8 * ft + 2 * k + 1) for k in range(4)]
    def psend(ft):
        it = []
        for k in range(2):
            it += [I(f"v_cvt_pk_bf16_f32 {v(PK + 8 * ft + 4 * k + j)}, {v(acc0 + 16 * ft + 8 * k + 2 * j)}, {v(acc0 + 16 * ft + 8 * k + 2 * j + 1)}") for j in range(4)]
            it += [gstore(v(PK0 + 8 * ft + 4 * k, 4), vL16, sWs, s(sPa), 2048 * ft + 1024 * k)] + cksum(CK + ft, ft)[2 * k:2 * k + 2]
        it += [gstore(v(CK + ft), CA, sWs, s(sPb), 256 * ft, op="dword")]
        return it
    paddr = [[I(f"s_lshl_b32 {s(sT2)}, {s(sRB)}, 4"), I(f"s_add_u32 {s(sT2)}, {s(sT2)}, {s(sCG)}"), I(f"s_lshl_b32 {s(sT2)}, {s(sT2)}, 2"),
              I(f"s_add_u32 {s(sT2)}, {s(sT2)}, {s(sW)}")], [I(f"s_lshl_b32 {s(sPa)}, {s(sT2)}, 13"), I(f"s_add_u32 {s(sPa)}, {s(sPa)}, {WS_PART}"),
              I(f"s_add_u32 {s(sPb)}, {s(sPa)}, 4096")], I(f"s_xor_b32 {s(sPc)}, {s(sPa)}, 32768"), I(f"s_xor_b32 {s(sPd)}, {s(sPb)}, 32768"),
             I(f"v_lshrrev_b32 {v(CA)}, 2, {v(vL16)}"),
             [I(f"s_mul_i32 {s(sT2)}, {s(sTB)}, 56"), I(f"s_lshl_b32 {s(sT1)}, {s(sCG)}, 2"), I(f"s_add_u32 {s(sT2)}, {s(sT2)}, {s(sT1)}"),
              I(f"s_lshl_b32 {s(sT2)}, {s(sT2)}, 10"), I(f"s_add_u32 {s(sYo)}, {s(sT2)}, {WS_Y}")],
             [I(f"s_lshl_b32 {s(sT2)}, {s(sTB)}, 4"), I(f"s_add_u32 {s(sT2)}, {s(sT2)}, {s(sCG)}"), I(f"s_lshl_b32 {s(sT2)}, {s(sT2)}, 8"),
              I(f"s_add_u32 {s(sYc)}, {s(sT2)}, {WS_YCK}")],
             [I(f"v_cmp_ne_u32 vcc, 0, {v(vL16)}"), I(f"v_bfrev_b32 {v(vWL)}, 1"), I("s_nop 0"), I(f"v_cndmask_b32 {v(vWL)}, 0, {v(vWL)}, vcc")]]
    def precv(ft):
        def loads(): return [gload(v(CK + ft), CA, sWs, s(sPd), 256 * ft, sc1=True, op="dword")] + [
            gload(v(PK + 8 * ft + 4 * k, 4), vL16, sWs, s(sPc), 2048 * ft + 1024 * k, sc1=True) for k in range(2)]
        ld = loads(); cr = T + ft
        ls, lb, ll = newlab("slow"), newlab("back"), newlab("loop")
        slow.extend([Label(ls), I(f"s_mov_b32 {s(sSpin)}, {OPT['spin']}"), Label(ll), I("s_sleep 1")] + loads() + [I("s_waitcnt vmcnt(0)")] + cksum(cr, ft) + [
            I(f"v_cmp_ne_u32 {s(sMask, 2)}, {v(CK + ft)}, {v(cr)}"), I("s_nop 1"), I(f"s_cmp_eq_u64 {s(sMask, 2)}, 0"), I(f"s_cbranch_scc1 {lb}"),
            I(f"s_sub_u32 {s(sSpin)}, {s(sSpin)}, 1"), I(f"s_cmp_lg_u32 {s(sSpin)}, 0"), I(f"s_cbranch_scc1 {ll}"), I(f"s_branch {lb}")])
        chk = [Wait(ld[2].tok)] + cksum(cr, ft) + [[I(f"v_cmp_ne_u32 {s(sMask, 2)}, {v(CK + ft)}, {v(cr)}"), I(f"s_cmp_lg_u64 {s(sMask, 2)}, 0"),
                                                    I(f"s_cbranch_scc1 {ls}"), Label(lb)]] + (stamp_n("pchk") if ft else [])
        for j in range(8):
            g = acc0 + 16 * ft + 2 * j; z = accB + 16 * ft + 2 * j
            chk += [I(f"v_and_b32 {v(g + 1)}, 0xffff0000, {v(PK + 8 * ft + j)}"), I(f"v_lshlrev_b32 {v(g)}, 16, {v(PK + 8 * ft + j)}"),
                    I(f"v_mul_f32 {v(g + 1)}, {v(g + 1)}, {v(z + 1)}"), I(f"v_mul_f32 {v(g)}, {v(g)}, {v(z)}")]
        return ld, chk
    ld0, chk0 = precv(0); ld1, chk1 = precv(1)
    chk0 += [[I(f"s_or_b32 {s(sT1)}, {s(sRB)}, {s(sCG)}"), I(f"s_cmp_eq_u32 {s(sT1)}, 0"), I(f"s_cselect_b32 {s(sT1)}, 0, 0x80000000"),
              I(f"v_or_b32 {v(T)}, {s(sT1)}, {v(vFL)}"), I(f"v_mov_b32 {v(T + 2)}, {s(sNonce)}"), gstore(v(T + 2), T, sWs, "0", WS_EPOCH, op="dword")]]
    ol = poll_issue(vPoll, vPollA)
    if OPT["sched"] < 2 and not WPRE: fill[0] += p3_setup()
    for q in bars:
        for x in SCHED[q]: fill[q] += ring_dma(x)
    if OPT["sched"] >= 2: fill[0] += p3_setup()
    y0 = y_epilogue(0)
    main = setup + [Wait(*(RT[0] + RT[1])), I("s_waitcnt lgkmcnt(0)"), BAR()] + stamp_n("q0")
    for n in range(LEAD): main += reads(n)
    for n in range(256):
        sp, ks = divmod(n, 64); d = acc0 + 16 * sp if sp < 2 else acc1 + 16 * (sp - 2)
        C = v(d, 16) if ks else ("0" if sp < 2 else v(Cb, 16))
        if n % 4 == 0: main += [Wait(*[rd[n + k].tok for k in range(4)])]
        main += [mfma(d, v(ZF + 4 * (n % 8), 4), a(4 * ks, 4), C)]
        nx = n + LEAD; q = nx // 16
        if q in bars and q and nx % 16 < 2: continue
        if q in bars and q and nx % 16 == 2:
            need = RT[q] + RT[q + 1] if q < 15 else []
            main += [[Wait(*([rd[16 * q - 1].tok] + need + pre[q])), BAR()] + stamp_n(f"q{q}") + post[q]]
            if nx < 256: main += reads(nx - 2) + reads(nx - 1)
        if nx < 256: main += reads(nx)
    for i, q in enumerate(bars):
        lo = 16 * q - LEAD + 3 if q else 0; hi = 16 * bars[i + 1] - LEAD + 2 if i + 1 < len(bars) else 256
        if q and hi - lo > 20: hi = min(hi, lo + OPT["fw"])
        main = weave(main, fill[q], lo, hi)
    main = weave(main, row_poll_addr(vPollA, F_O, 15) + [ol], 108, 118)
    main = weave(main, res_loads() + [poll_check(ol, vPoll, vPollA)], 156, 170)
    cb = [Wait(bl.tok), I(f"v_lshlrev_b32 {v(vBv)}, 16, {v(vBv)}")] + [I(f"v_mov_b32 {v(Cb + r)}, {v(vBv)}") for r in range(16)]
    if OPT["gp"] < 8: main = weave(main, gelu(accB + 4 * OPT["gp"], 32 - 4 * OPT["gp"], False, 32), OPT["gz0"], OPT["gz1"])
    main = weave(main, paddr, 40, 60)
    main = weave(main, psend(0), 74, 90)
    main = weave(main, cb, 95, 124)
    main = weave(main, ld0 + psend(1), 135, 152)
    main = weave(main, chk0, 170, 192)
    main = weave(main, y0, 197, 210)
    main = weave(main, ld1, OPT["pl0"], OPT["pl0"] + 3)
    oi = o_loads()
    cut = [k for k, e in enumerate(oi) if isinstance(e, Ins) and e.tok is OT[OPT["on"] - 1]][0] + 1
    main = weave(main, oi[:cut], 212, 236)
    main = weave(main, chk1, OPT["pl1"], 256)
    if not OPT["yck"]: main = weave(main, y_tag(0), OPT["y0t"], OPT["y0t"] + 1)
    return main + stamp_at(7) + y_epilogue(1) + stamp_n("ep") + oi[cut:]
sPa, sPb = 61, 62

def flat1(x):
    out = []
    for e in x:
        if isinstance(e, list) and e and all(isinstance(y, Ins) and (y.kind == "ds" or y.op == "v_add_u32") for y in e): out.extend(e)
        else: out.append(e)
    return out

def light2(otok):
    c = ring_setup_early() + p3_setup() + [Wait(*otok), BAR(), flag_store(F_O, 30)]
    if OPT["tw"] == 1: c += touch_out(True)
    if OPT["tz"]:
        va = T + 4
        c += [I(f"v_bfe_u32 {v(va)}, {v(vL16)}, 4, 4"), I(f"v_min_u32 {v(va)}, 13, {v(va)}"), I(f"v_lshrrev_b32 {v(va + 1)}, 8, {v(vL16)}"),
              I(f"v_lshl_add_u32 {v(va)}, {v(va + 1)}, 4, {v(va)}"), I(f"v_lshlrev_b32 {v(va)}, 8, {v(va)}"),
              I(f"s_lshl_b32 {s(sT1)}, {s(sP)}, 15"), I(f"s_add_u32 {s(sT1)}, {s(sT1)}, {WS_FLAGS + F_Z * 65536}"), I(f"v_add_u32 {v(va)}, {s(sT1)}, {v(va)}"),
              I(f"v_add_u32 {v(va + 1)}, 16384, {v(va)}")]
        for k in range(2):
            zl = poll_issue(va + 2, va + k); c += [zl, poll_check(zl, va + 2, va + k, sleep=8)]
        c += [I(f"v_and_b32 {v(va)}, 0x1f0, {v(vL16)}"), I(f"v_lshlrev_b32 {v(va)}, 3, {v(va)}"), I(f"v_lshrrev_b32 {v(va + 1)}, 9, {v(vL16)}"),
              I(f"v_lshl_add_u32 {v(va)}, {v(va + 1)}, 19, {v(va)}"),
              I(f"s_and_b32 {s(sT1)}, {s(sRB)}, 3"), I(f"s_lshl_b32 {s(sT1)}, {s(sT1)}, 2"), I(f"s_add_u32 {s(sT1)}, {s(sT1)}, {s(sW)}"), I(f"s_lshl_b32 {s(sT1)}, {s(sT1)}, 12"),
              I(f"s_lshl_b32 {s(sT2)}, {s(sP)}, 16"), I(f"s_add_u32 {s(sT1)}, {s(sT1)}, {s(sT2)}"), I(f"s_add_u32 {s(sT3)}, {s(sT1)}, {WS_Z}")]
        for sp in range(4 - OPT["tz"], 4):
            c += [I(f"s_{'xor' if sp < 2 else 'and'}_b32 {s(sT2)}, {s(sP)}, 1"), I(f"s_lshl_b32 {s(sT2)}, {s(sT2)}, 18"), I(f"s_add_u32 {s(sT2)}, {s(sT2)}, {s(sT3)}"),
                  I(f"s_add_u32 {s(sT2)}, {s(sT2)}, {(sp & 1) * 131072}")]
            for j in range(4):
                c += [VM(f"buffer_load_dword {v(va + 2)}, {v(va)}, {srd(sWs)}, {s(sT2)} offen sc1"), I(f"s_add_u32 {s(sT2)}, {s(sT2)}, {1 << 20}")]
    if OPT["tw"] == 2: c += touch_out(True)
    for q in ([16, 17, 18, 19, 23, 24, 25, 26, 20, 21] if WOF else range(16, 26)): c += ring_dma(q)
    c += res_loads()
    ol = poll_issue(vPoll, vPollA)
    c += row_poll_addr(vPollA, F_O, 15) + [ol, poll_check(ol, vPoll, vPollA, sleep=8)] + o_loads()
    c += [I(f"v_lshrrev_b32 {v(vCA)}, 2, {v(vL16)}")] + y_addr()
    return [VM(f"buffer_load_dword {v(T + 15)}, {v(vFL)}, {srd(sB)}, 0 offen", tok=t) for t in YT[2:]] + c

def phase3():
    c = []
    rd = {}
    F3 = ZF
    def where(n):
        if n < 16: return 23 + n // 4, n % 4
        k = (n - 16) % 14; return 16 + k // 2, (k & 1) + (2 if n >= 30 else 0)
    cur = [0]
    def reads(n):
        q, j = where(n); f = F3 + 8 * (n % 4)
        rd[n] = [dstr(v(f + 4 * u + 2 * e, 2), vTRp, slot(q) - win(q) + j * 2048 + e * 1024 + u * 512) for u in range(2) for e in range(2)]
        adj = rewin([vTRp], q, cur[0]); cur[0] = win(q)
        return adj + rd[n]
    YV, YK, yt, ybad = 160, 216, 224, 225
    accY = accB
    sYk = 84; sRho = 87
    yld = {}
    def gaddr():
        return [I(f"s_add_u32 {s(sPb)}, {s(sPa)}, {s(sR3y)}"), *([I(f"s_lshr_b32 {s(sT3)}, {s(sR3y)}, 4"), I(f"s_add_u32 {s(sT3)}, {s(sT3)}, {s(sYk)}")] if OPT["yck"] else []),
                I(f"s_add_u32 {s(sR3y)}, {s(sR3y)}, 4096"), I(f"s_cmp_eq_u32 {s(sR3y)}, {7 * 4096}"), I(f"s_cselect_b32 {s(sR3y)}, 0, {s(sR3y)}")]
    def gloads(part, g):
        return [gload(v(YV + 8 * g + 4 * i, 4) if OPT["yck"] else a(64 + 56 * part + 8 * g + 4 * i, 4), vL16, sWs, s(sPb), 1024 * (i + 2 * part), sc1=True) for i in range(2)] + ([
            gload(v(YK + g), vCA, sWs, s(sT3), sc1=True, op="dword")] if OPT["yck"] else [])
    def ygroup(part, g):
        ld = gloads(part, g)
        yld[16 + 14 * part + 2 * g] = ld[0]; yld[17 + 14 * part + 2 * g] = ld[-1]
        return gaddr() + ld
    def gcheck(g):
        b = YV + 8 * g
        return [xor3(yt, s(sNonce), b, b + 1), xor3(yt, v(yt), b + 2, b + 3), xor3(yt, v(yt), b + 4, b + 5), xor3(yt, v(yt), b + 6, b + 7),
                I(f"v_xor_b32 {v(ybad)}, {v(yt)}, {v(YK + g)}") if g == 0 else I(f"v_bitop3_b32 {v(ybad)}, {v(ybad)}, {v(yt)}, {v(YK + g)} bitop3:0xf6")]
    def ops(n):
        if n < 16: return a(4 * n, 4), (None if n == 0 else acc3), acc3
        k = (n - 16) % 14; B = v(YV + 4 * k, 4) if OPT["yck"] else a(4 * n, 4)
        if n < 30: return B, (acc3 if k == 0 else accY), accY
        return B, (accY if k == 0 else acc3), acc3
    def mm(n):
        f = F3 + 8 * (n % 4); B, C, D = ops(n)
        return [mfma(D + 16 * u, v(f + 4 * u, 4), B, "0" if C is None else v(C + 16 * u, 16)) for u in range(2)]
    def step(n, mid=(), end=()):
        m0, m1 = mm(n)
        o = [Wait(*(toks(rd[n]) + [OT[n] if n < 16 else yld[n].tok])), m0]
        r = reads(n + 4) if n + 4 < 44 else []
        chk = gcheck((n - 16) % 14 // 2) if n >= 16 and n & 1 and OPT['yck'] else []
        if mid: o += [m1] + list(mid) + r + chk
        else: o += r[:-2] + chk[:2] + [m1] + r[-2:] + chk[2:]
        return o + list(end)
    def verify(part):
        if not OPT["yck"]: return []
        ls, lb, ll, lr = newlab("yslow"), newlab("yback"), newlab("yloop"), newlab("yredo")
        w0 = cur[0]
        o = [Label(ls), I(f"s_mov_b32 {s(sSpin)}, {OPT['spin']}"), Label(ll), I("s_sleep 1")]
        for g in range(7): o += gaddr() + gloads(part, g)
        o += [I("s_waitcnt vmcnt(0)")]
        for g in range(7): o += gcheck(g)
        o += [I(f"v_cmp_ne_u32 {s(sMask, 2)}, 0, {v(ybad)}"), I("s_nop 1"), I(f"s_cmp_eq_u64 {s(sMask, 2)}, 0"), I(f"s_cbranch_scc1 {lr}"),
              I(f"s_sub_u32 {s(sSpin)}, {s(sSpin)}, 1"), I(f"s_cmp_lg_u32 {s(sSpin)}, 0"), I(f"s_cbranch_scc1 {ll}"), Label(lr), I("s_waitcnt lgkmcnt(0)")]
        keep = dict(rd)
        for n in range(16 + 14 * part, 30 + 14 * part): o += reads(n) + [I("s_waitcnt lgkmcnt(0)")] + mm(n)
        if part == 0:
            for n in range(30, 34): o += reads(n)
        assert cur[0] == w0
        rd.update(keep)
        o += [I("s_waitcnt lgkmcnt(0)"), I("s_nop 11"), I(f"s_branch {lb}")]
        slow2.append(o)
        return [I(f"v_cmp_ne_u32 {s(sMask, 2)}, 0, {v(ybad)}"), I(f"s_cmp_lg_u64 {s(sMask, 2)}, 0"), I(f"s_cbranch_scc1 {ls}"), Label(lb)]
    y0l = poll_issue(vPoll, vPollA)
    c += [I(f"v_bfe_u32 {v(vPollA)}, {v(vL16)}, 4, 3"), I(f"v_min_u32 {v(vPollA)}, 6, {v(vPollA)}"), I(f"v_lshlrev_b32 {v(vPollA)}, 8, {v(vPollA)}"),
          I(f"s_lshl_b32 {s(sT2)}, {s(sTok3)}, 4"), I(f"s_mul_i32 {s(sT1)}, {s(sKH)}, 7"), I(f"s_add_u32 {s(sT2)}, {s(sT2)}, {s(sT1)}"), I(f"s_lshl_b32 {s(sT2)}, {s(sT2)}, 8"),
          I(f"s_add_u32 {s(sYk)}, {s(sT2)}, {WS_YCK}"), I(f"s_add_u32 {s(sT2)}, {s(sT2)}, {WS_YTAG}"), I(f"v_add_u32 {v(vPollA)}, {s(sT2)}, {v(vPollA)}"), y0l]
    c += [I(f"s_mul_i32 {s(sT2)}, {s(sTok3)}, 56"), I(f"s_mul_i32 {s(sT1)}, {s(sKH)}, 28"), I(f"s_add_u32 {s(sT2)}, {s(sT2)}, {s(sT1)}"),
          I(f"s_lshl_b32 {s(sT2)}, {s(sT2)}, 10"), I(f"s_add_u32 {s(sPa)}, {s(sT2)}, {WS_Y}")]
    c += [Wait(*(RT[26] if WOF else RT[22] + RT[23] + RT[24])), BAR()]
    c += reads(0) + reads(1) + reads(2) + reads(3)
    y1l = poll_issue(vPoll, vPollA)
    yc = OPT["yc"]
    todo = list(range(7)); todo1 = list(range(7))
    for n in range(30):
        mid = []; end = []
        if n == 1: mid = [Wait(*toks(rd[3])), BAR()] + ring_dma(22 if WOF else 26)
        if n == 4 and not WOF: mid = [Wait(*RT[25]), BAR()]
        if n == 8 and not WOF: mid = [Wait(*RT[26]), BAR()]
        if n == 13 + 4 * WOF: mid = ([Wait(*RT[22])] if WOF else []) + [BAR()]
        if n == yc: end += poll_check(y0l, vPoll, vPollA, sleep=OPT['ys0']) + stamp_n("y0flag") + [I(f"v_add_u32 {v(vPollA)}, {1024 * 256}, {v(vPollA)}")]
        if n >= yc:
            for _ in range(1 if n < 15 else 7):
                if todo: end += ygroup(0, todo.pop(0))
        if n == OPT["yf"] and not OPT["yck"]: end += y_tag(1)
        if n == OPT["yp"]: end += [y1l]
        if n == 15: end += stamp_at(8)
        if not OPT["yck"] and OPT["y1c"] and n == OPT["y1c"]: end += poll_check(y1l, vPoll, vPollA, sleep=OPT['ys1']) + stamp_at(9)
        if not OPT["yck"] and OPT["y1c"] and n >= OPT["y1c"] and todo1: end += ygroup(1, todo1.pop(0))
        c += step(n, mid, end)
    c += verify(0) + [I(f"s_add_u32 {s(sYk)}, {s(sYk)}, {1024 * 256}")]
    wa, ra = 32, 40
    c += [I(f"v_bfe_u32 {v(T)}, {v(vL16)}, 4, 4"), I(f"v_lshrrev_b32 {v(T + 1)}, 9, {v(vL16)}"), I(f"v_xor_b32 {v(T)}, {v(T)}, {v(T + 1)}"),
          I(f"v_lshlrev_b32 {v(T)}, 4, {v(T)}"), I(f"v_and_b32 {v(T + 1)}, 0x1f0, {v(vL16)}"), I(f"v_lshl_add_u32 {v(T)}, {v(T + 1)}, 4, {v(T)}"),
          I(f"s_and_b32 {s(sT1)}, {s(sW)}, 1"), I(f"s_lshl_b32 {s(sT1)}, {s(sT1)}, 13"), I(f"s_mul_i32 {s(sT3)}, {s(sKH)}, {RED[1] - RED[0]}"),
          I(f"s_add_u32 {s(sT1)}, {s(sT1)}, {s(sT3)}"), I(f"s_add_u32 {s(sT1)}, {s(sT1)}, {RED[0]}"), I(f"v_add_u32 {v(wa)}, {s(sT1)}, {v(T)}")]
    for i in range(1, 8): c.append(I(f"v_xor_b32 {v(wa + i)}, {32 * i}, {v(wa)}"))
    c += [I(f"v_lshrrev_b32 {v(T)}, 7, {v(vL16)}"), I(f"s_lshl_b32 {s(sT1)}, {s(sW)}, 3"), I(f"v_add_u32 {v(T)}, {s(sT1)}, {v(T)}"),
          I(f"v_and_b32 {v(T + 1)}, 15, {v(T)}"), I(f"v_bfe_u32 {v(T + 2)}, {v(vL16)}, 4, 3"), I(f"v_lshlrev_b32 {v(T + 2)}, 1, {v(T + 2)}"),
          I(f"v_xor_b32 {v(T + 1)}, {v(T + 1)}, {v(T + 2)}"), I(f"v_lshlrev_b32 {v(T + 1)}, 4, {v(T + 1)}"), I(f"v_lshl_add_u32 {v(T)}, {v(T)}, 8, {v(T + 1)}"),
          I(f"v_add_u32 {v(ra)}, {RED[0]}, {v(T)}"), I(f"v_xor_b32 {v(ra + 1)}, 16, {v(ra)}")]
    if OPT["yck"] or not OPT["y1c"]:
        c += poll_check(y1l, vPoll, vPollA, sleep=OPT['ys1']) + stamp_at(9)
    while len(todo1) > 7 - OPT["yla"]: c += ygroup(1, todo1.pop(0))
    for n in range(30, 44):
        c += step(n, end=ygroup(1, todo1.pop(0)) if todo1 else [])
    c += verify(1)
    ws = [dsw(wa + 4 * u + q, v(acc3 + 16 * u + 4 * q, 4)) for u in range(2) for q in range(4)]
    c += stamp_n("y28") + ws + [Wait(*toks(ws)), BAR()] + stamp_n("red")
    D = 128
    rr = [[dsr(v(D + 16 * k + 8 * hf + 4 * j, 4), ra + j, k * 8192 + hf * (RED[1] - RED[0])) for hf in range(2) for j in range(2)] for k in range(2)]
    c += rr[0] + rr[1]
    for k in range(2):
        b = D + 16 * k; x = RES + 4 * k
        c += [Wait(*(toks(rr[k]) + [RSD[k]]))]
        c += [I(f"v_add_f32 {v(b + e)}, {v(b + e)}, {v(b + 8 + e)}") for e in range(8)]
        for j in range(4):
            c += [I(f"v_lshlrev_b32 {v(b + 8 + 2 * j)}, 16, {v(x + j)}"), I(f"v_and_b32 {v(b + 9 + 2 * j)}, 0xffff0000, {v(x + j)}")]
        c += [I(f"v_add_f32 {v(b + e)}, {v(b + e)}, {v(b + 8 + e)}") for e in range(8)]
        c += [I(f"v_cvt_pk_bf16_f32 {v(b + j)}, {v(b + 2 * j)}, {v(b + 2 * j + 1)}") for j in range(4)]
        c += [VM(f"buffer_store_dwordx4 {v(b, 4)}, {v(vOut + k)}, {srd(sOut)}, 0 offen" + ["", " sc1", " nt", " sc0 sc1", " sc1 nt", " sc0 sc1 nt"][OPT["ost"]])]
    c += stamp_at(10)
    if OPT["probe"]:
        c += [I("s_waitcnt lgkmcnt(0)"), I(f"s_sub_u32 {s(sT1)}, {s(sStamp + 2)}, {s(sStamp)}"), I(f"s_mul_i32 {s(sT1)}, {s(sT1)}, {0 if OPT['probe'] == 'end' else 4}"),
              I(f"s_cmp_eq_u32 {s(sC)}, 7"), I(f"s_cselect_b32 {s(sT1)}, 0, {s(sT1)}"), I(f"s_add_u32 {s(sT1)}, {s(sT1)}, 6000"), I(f"s_min_u32 {s(sT1)}, {s(sT1)}, 50000"), Label("L_probe"), I(f"s_memrealtime {s(sStamp + 4, 2)}"), I("s_waitcnt lgkmcnt(0)"),
              I(f"s_sub_u32 {s(sT2)}, {s(sStamp + 4)}, {s(sStamp)}"), I(f"s_cmp_lt_u32 {s(sT2)}, {s(sT1)}"), I("s_cbranch_scc1 L_probe")]
    if OPT["stamps"]:
        c += [I("s_waitcnt lgkmcnt(0)")]
        for i in range(7): c.append(I(f"v_mov_b32 {v(128 + i)}, {s(sStamp + 2 * i)}"))
        c += [I(f"s_lshl_b32 {s(sT1)}, s2, 8"), I(f"s_lshl_b32 {s(sT2)}, {s(sW)}, 6"), I(f"s_add_u32 {s(sT1)}, {s(sT1)}, {s(sT2)}"),
              I(f"s_add_u32 {s(sT1)}, {s(sT1)}, {WS_DBG}"), I(f"v_mov_b32 {v(140)}, 0")]
        for i in range(2): c.append(gstore(v(128 + 4 * i, 4), 140, sWs, s(sT1), 16 * i, sc1=False))
    return c

def build():
    fr, rest = front()
    lnf, wdF = rest(KFULL); lnl, wdL = rest(KLIGHT)
    spd, p1F, kdmF, zst = p1_main(KFULL, wdF, True)
    _, p1L, kdmL, _ = p1_main(KLIGHT, wdL, False)
    otok = [Tok("vm", "ost0"), Tok("vm", "ost1")]
    def hooks_full():
        zl = poll_issue(vPz, vPzA)
        h = {k: [] for k in range(18)}
        h[OPT["zf"]] = [Wait(*toks(zst)), BAR(), flag_store(F_Z, 126)]
        np_ = OPT['npl']
        left = list(range(OPT["sp1"], 16)); d = dict(spd)
        for i, w in enumerate(left):
            pl = (i * np_) // len(left)
            r = sp_read(w)
            h[pl] += [Wait(*toks(d[w]))] + r
            if w + 3 < 16:
                d[w + 3] = sp_dma(w + 3)
                h[pl + 1] = [Wait(*toks(r))] + d[w + 3] + h[pl + 1]
        if WPRE:
            k0 = ((len(left) - 1) * np_) // len(left) + 1
            h[k0] += [I("s_waitcnt lgkmcnt(0)"), BAR()] + ring_setup_early() + p3_setup(132)
            for i, x in enumerate(WPRE): h[k0 + 1 + i] += ring_dma(x)
        zp = OPT["zp"]
        h[zp] += ([] if WPRE else ring_setup_early()) + z_poll_addr(vPzA) + [zl]
        rest = [[poll_check(zl, vPz, vPzA)] + stamp_n("zchk") + ring_dma(PREFILL[0])] + [ring_dma(x) for x in PREFILL[1:]]
        h["end"] = []
        for i, x in enumerate(rest):
            k = zp + 3 + i
            h[k if k < 18 else "end"] += x
        return h
    segs = {}
    segs["front"] = flat(fr + [I(f"s_cmp_ge_u32 {s(sCG)}, 14"), I("s_cbranch_scc1 L_light")])
    segs["fullP1"] = flat(lnf + stamp_at(3) + p1F + att_setup(kdmF, zst) + [I(f"s_cmp_lt_u32 {s(sRB)}, 2"), I("s_cbranch_scc1 L_fedge")])
    segs["fullAtt"] = flat(attention(False, hooks_full(), otok))
    p2 = phase2(otok)
    segs["P2"] = flat([Label("L_p2")] + stamp_at(5) + p2)
    segs["P3"] = flat([Label("L_p3")] + phase3() + [Label("L_end"), I("s_endpgm")])
    segs["fullEdge"] = flat([Label("L_fedge")] + attention(True, hooks_full(), otok) + [I("s_branch L_p2")])
    segs["lightP1"] = flat([Label("L_light")] + lnl + stamp_at(3) + p1L + att_setup(kdmL, []) + [I(f"s_cmp_lt_u32 {s(sRB)}, 2"), I("s_cbranch_scc1 L_ledge")])
    segs["lightAtt"] = flat(attention(False, {}, otok))
    l2 = light2(otok)
    segs["light2"] = flat([Label("L_l2")] + stamp_at(5) + l2 + stamp_at(7) + [I("s_branch L_p3")])
    segs["lightEdge"] = flat([Label("L_ledge")] + attention(True, {}, otok) + [I("s_branch L_l2")])
    segs["attSlow"] = flat(attention_slow())
    def ablate(name, bits):
        out = []
        for x in segs[name]:
            isdma = x.kind == "vmem" and x.text.endswith("lds")
            if bits & 1 and isdma: continue
            if bits & 2 and x.kind == "vmem" and not isdma: continue
            if bits & 2 and x.op == "s_cbranch_scc1" and "slow" in x.text: continue
            if bits & 4 and x.kind == "barrier": continue
            if bits & 8 and x.kind in ("valu", "trans") : continue
            if bits & 16 and x.kind == "ds": continue
            out.append(x)
        segs[name] = out
    if OPT["reord"]:
        for nm in ("fullP1", "lightP1", "P2", "P3", "fullAtt", "fullEdge", "lightAtt", "lightEdge"): segs[nm] = reorder_gaps(segs[nm])
    import asmlib
    for nm, key in (("P2", "abl2"), ("fullP1", "abl1"), ("fullAtt", "abl3")):
        if OPT[key]: ablate(nm, OPT[key]); asmlib.LENIENT = True
    paths = [["front", "fullP1", "fullAtt", "P2", "P3"], ["front", "fullP1", "fullEdge", "P2", "P3"],
             ["front", "lightP1", "lightAtt", "light2", "P3"], ["front", "lightP1", "lightEdge", "light2", "P3"]]
    finalize([flat([segs[n] for n in p]) for p in paths] + [flat(slow), segs["attSlow"]] + [flat(x) for x in slow2])
    order = ["front", "fullP1", "fullAtt", "P2", "P3", "fullEdge", "lightP1", "lightAtt", "light2", "lightEdge", "attSlow"]
    body = "\n".join(render(segs[n]) for n in order) + "\n" + render(flat(slow)) + "\n" + render(flat(slow2)) + "\nL_codeend:\n  s_endpgm"
    hdr = open(__file__.rsplit("/", 1)[0] + "/../cdna_kernels/parallel_sum__sliding_block__mixer_gmlp__prompt.s.ref").read().split("; Override launch")[0]
    out = hdr + "; @launch grid=(256,1,1) block=(256,1,1) lds=163840\n" + f'''.amdgcn_target "amdgcn-amd-amdhsa--gfx950"
.text
.globl {KNAME}
.p2align 8
.type {KNAME},@function
{KNAME}:
{body}
.section .rodata,"a"
.p2align 6
.amdhsa_kernel {KNAME}
  .amdhsa_next_free_vgpr 512
  .amdhsa_next_free_sgpr 102
  .amdhsa_accum_offset 256
  .amdhsa_group_segment_fixed_size 0
  .amdhsa_kernarg_size 88
  .amdhsa_user_sgpr_count 2
  .amdhsa_user_sgpr_kernarg_segment_ptr 1
  .amdhsa_system_sgpr_workgroup_id_x 1
  .amdhsa_float_denorm_mode_32 3
.end_amdhsa_kernel
'''
    if OPT["stamps"]: out = out.replace("; @launch", "; stamps: " + " ".join(PROFS[OPT["stamps"]]) + "\n; @launch")
    open(sys.argv[1], "w").write(out)
    n = {k: len(x) for k, x in segs.items()}
    pads = {k: sum(i.pad for i in x) for k, x in segs.items()}
    print("instr counts", n, "pads", pads, file=sys.stderr)

build()
```
